```python
import torch

def _softmax(x, axis=-1):
    return torch.softmax(x, dim=axis)
def _gelu(x):
    return torch.nn.functional.gelu(x, approximate="tanh")
def _silu(x):
    return torch.nn.functional.silu(x)
def _sigmoid(x):
    return torch.sigmoid(x)
def _layernorm(x, axis=-1, eps=1e-5):
    m = x.mean(dim=axis, keepdim=True)
    v = x.var(dim=axis, keepdim=True, unbiased=False)
    return (x - m) / torch.sqrt(v + eps)
def _scatter_add(tgt, idx, src, axis=0):
    return tgt.clone().index_add_(axis, idx, src)
def _segment_sum(src, seg, n):
    out = torch.zeros((n,) + src.shape[1:], dtype=src.dtype)
    return out.index_add_(0, seg, src)
def _pad(x, pw):
    flat = tuple(v for pair in reversed(pw) for v in pair)
    return torch.nn.functional.pad(x, flat)

kernel_name = 'sequential_preLN__ssm_conv_h3__dense_activation_relu__prompt'

def setup_inputs():

    _w = (lambda a: (lambda t: t.to(torch.bfloat16) if t.is_floating_point() else t)(torch.as_tensor(a)))
    def _A_setup():
        B, S, D = 1, 2048, 576
        ks = 4
        return {
            "q": _w((lambda *s: torch.randn(*s, dtype=torch.bfloat16) * 0.05)(B, S, D)),
            "k": _w((lambda *s: torch.randn(*s, dtype=torch.bfloat16) * 0.4)(B, S, D)),
            "v": _w((lambda *s: torch.randn(*s, dtype=torch.bfloat16) * 0.4)(B, S, D)),
            "shift_k": _w((lambda *s: torch.randn(*s, dtype=torch.bfloat16) * 0.4)(D, ks) * 0.5),
            "ssm_k": _w((lambda *s: torch.randn(*s, dtype=torch.bfloat16) * 0.4)(D, S) * (1.0 / S ** 0.5)),
            "ssm_D": _w((lambda *s: torch.randn(*s, dtype=torch.bfloat16) * 0.4)(D)),
        }
    _A_in = _A_setup()

    def _B_setup():
        B, S, D, Dff = 1, 2048, 576, 4608
        return {
            "x": _w((lambda *s: torch.randn(*s, dtype=torch.bfloat16) * 0.05)(B, S, D)),
            "w1": _w((lambda *s: torch.randn(*s, dtype=torch.bfloat16) * 0.05)(D, Dff)),
            "w2": _w((lambda *s: torch.randn(*s, dtype=torch.bfloat16) * 0.05)(Dff, D)),
        }
    _B_in = _B_setup()

    return {
        "A_q": _A_in["q"],
        "A_k": _A_in["k"],
        "A_v": _A_in["v"],
        "A_shift_k": _A_in["shift_k"],
        "A_ssm_k": _A_in["ssm_k"],
        "A_ssm_D": _A_in["ssm_D"],
        "B_x": _B_in["x"],
        "B_w1": _B_in["w1"],
        "B_w2": _B_in["w2"],
    }

def reference(A_q, A_k, A_v, A_shift_k, A_ssm_k, A_ssm_D, B_x, B_w1, B_w2):
    def _A_ref(q, k, v, shift_k, ssm_k, ssm_D):
        B, S, D = q.shape
        ks = shift_k.shape[-1]
        k_pad = _pad(k, ((0, 0), (ks - 1, 0), (0, 0)))
        k_shift = torch.zeros_like(k)
        for t in range(ks):
            k_shift = k_shift + k_pad[:, t:t + S, :] * shift_k[:, ks - 1 - t][None, None, :]
        kv = k_shift * v
        L = 2 * S
        kv_pad = _pad(kv, ((0, 0), (0, S), (0, 0)))
        kf_pad = _pad(ssm_k, ((0, 0), (0, S)))
        kv_f = (lambda x, axes=(-2,-1): torch.fft.rfft2(x.float(), dim=axes))(kv_pad[:, None, :, :], axes=(1, 2))
        kf_f = (lambda x, axes=(-2,-1): torch.fft.rfft2(x.float(), dim=axes))(kf_pad[:, None, :], axes=(1, 2))
        kf_f = (lambda x, *d: x.permute(*d))(kf_f, 1, 2, 0)
        y_f = kv_f * kf_f[None, :, :, :]
        y = (lambda x, s, axes=(-2,-1): torch.fft.irfft2(x, s=s, dim=axes).to(torch.bfloat16))(y_f, (1, L), axes=(1, 2))[:, 0, :S, :]
        y = y + kv * ssm_D[None, None, :]
        return q * y

    def _B_ref(x, w1, w2):
        h = torch.einsum("bsd,df->bsf", x, w1)
        zero = torch.zeros_like(h)
        h = torch.maximum(h, zero)
        return torch.einsum("bsf,fd->bsd", h, w2)

    x = A_q
    h = x + _A_ref(_layernorm(x, axis=-1), A_k, A_v, A_shift_k, A_ssm_k, A_ssm_D)
    h2 = h + _B_ref(_layernorm(h, axis=-1), B_w1, B_w2)
    return h2
```

```python
import re
class Asm:
    def __init__(self):
        self.lines = []
        self.nlab = 0
    def __call__(self, s, *a):
        if a: s = s % a
        for l in s.strip("\n").split("\n"):
            if l.strip().startswith("buffer_"):
                m = re.search(r"offset:(\d+)", l)
                assert not m or int(m.group(1)) < 4096, l
            self.lines.append("  " + l.strip() if not l.strip().endswith(":") else l.strip())
    def label(self, name):
        self.lines.append(name + ":")
    def newlabel(self, p="L"):
        self.nlab += 1
        return "%s_%d" % (p, self.nlab)
    def comment(self, s):
        self.lines.append("  ; " + s)
    def text(self):
        return "\n".join(self.lines) + "\n"

def kernel_head(name):
    return f""".globl {name}
.p2align 8
.type {name},@function
{name}:
"""

def kernel_desc(name, vgpr, sgpr, accum):
    return f""".p2align 6
.amdhsa_kernel {name}
  .amdhsa_next_free_vgpr {vgpr}
  .amdhsa_next_free_sgpr {sgpr}
  .amdhsa_accum_offset {accum}
  .amdhsa_group_segment_fixed_size 0
  .amdhsa_kernarg_size 96
  .amdhsa_user_sgpr_count 2
  .amdhsa_user_sgpr_kernarg_segment_ptr 1
  .amdhsa_system_sgpr_workgroup_id_x 1
.end_amdhsa_kernel
"""

def make_file(kernels, header=""):
    out = header
    for k in kernels:
        out += f"; @launch kernel={k['name']} grid=({k['grid']},1,1) block=({k['block']},1,1) lds={k['lds']}\n"
    out += '.amdgcn_target "amdgcn-amd-amdhsa--gfx950"\n.text\n'
    seen = set()
    for k in kernels:
        if k['name'] in seen: continue
        seen.add(k['name'])
        out += kernel_head(k['name']) + k['body']
    out += '.section .rodata,"a"\n'
    seen = set()
    for k in kernels:
        if k['name'] in seen: continue
        seen.add(k['name'])
        out += kernel_desc(k['name'], k['vgpr'], k['sgpr'], k['accum'])
    return out
```

```python
from asmlib import *
from layout import *

def srd(a, dst, ptr, size):
    a("s_mov_b32 s%d, s%d" % (dst, ptr))
    a("s_mov_b32 s%d, s%d" % (dst+1, ptr+1))
    a("s_mov_b32 s%d, 0x%x" % (dst+2, size))
    a("s_mov_b32 s%d, 0x20000" % (dst+3))

def check_magic(mul, sh, div, n):
    for p in range(n):
        assert (p*mul) >> sh == p // div, (p, mul, sh, div)

STAMP = 0x6000000
def stamp(a, dbg, i):
    if dbg: a("s_memrealtime s[%d:%d]" % (64+2*i, 65+2*i))
def stamp_out(a, dbg, n, region, wsrd):
    if not dbg: return
    a("s_waitcnt lgkmcnt(0)")
    for i in range(n): a("v_mov_b32 v%d, s%d" % (8+i, 64+2*i))
    a("s_lshl_b32 s62, s2, 5")
    a("s_add_u32 s62, s62, %d" % (STAMP + region*65536))
    a("v_mov_b32 v7, 0")
    a("v_cmp_eq_u32 vcc, 0, v0")
    a("s_and_saveexec_b64 s[60:61], vcc")
    a("buffer_store_dwordx4 v[8:11], v7, %s, s62 offen" % wsrd)
    if n > 4: a("buffer_store_dwordx4 v[12:15], v7, %s, s62 offen offset:16" % wsrd)

def wave_id(a, sdst, vtmp):
    a("v_lshrrev_b32 v%d, 6, v0" % vtmp)
    a("s_nop 0")
    a("v_readfirstlane_b32 s%d, v%d" % (sdst, vtmp))
    a("s_nop 3")

def gen_k1(dbg=False):
    a = Asm()
    NKV, NPK = 288, 144
    a("s_cmp_ge_u32 s2, %d" % (NKV+NPK))
    a("s_cbranch_scc1 K1_end")
    a("""
    s_load_dwordx4 s[4:7], s[0:1], 8
    s_load_dwordx2 s[8:9], s[0:1], 24
    s_load_dwordx2 s[10:11], s[0:1], 56
    s_load_dwordx2 s[12:13], s[0:1], 88
    s_waitcnt lgkmcnt(0)
    """)
    srd(a, 16, 4, 2359296); srd(a, 20, 6, 2359296); srd(a, 24, 8, 4608); srd(a, 28, 12, WS_SIZE); srd(a, 32, 10, 5308416)
    stamp(a, dbg, 0)
    a("s_cmp_ge_u32 s2, %d" % NKV)
    a("s_cbranch_scc1 K1_pack")
    check_magic(7282, 16, 9, 288)
    a("""
    s_mul_i32 s36, s2, 7282
    s_lshr_b32 s36, s36, 16          ; rb
    s_mul_i32 s37, s36, 9
    s_sub_u32 s37, s2, s37           ; cb
    v_and_b32 v1, 31, v0             ; p
    v_lshrrev_b32 v2, 5, v0          ; rg
    s_lshl_b32 s38, s36, 6           ; 64 rb
    v_lshlrev_b32 v3, 3, v2
    v_add_u32 v3, s38, v3            ; s0
    s_movk_i32 s39, 1152
    v_mul_lo_u32 v4, v3, s39
    s_lshl_b32 s40, s37, 7           ; 128 cb
    v_lshlrev_b32 v5, 2, v1
    v_add3_u32 v4, v4, v5, s40       ; voff0
    v_add_u32 v6, 4608, v4           ; voff4
    v_subrev_u32 v7, 4608, v4        ; voffH
    v_cmp_eq_u32 vcc, 0, v3
    v_mov_b32 v8, 0x80000000
    s_nop 1
    v_cndmask_b32 v7, v7, v8, vcc
    v_lshlrev_b32 v9, 4, v1
    s_lshl_b32 s41, s37, 9           ; 64cb*8
    """)
    a("buffer_load_dwordx4 v[40:43], v9, s[24:27], s41 offen")
    for i in range(4): a("buffer_load_dword v%d, v7, s[16:19], 0 offen offset:%d" % (16+i, i*1152))
    for i in range(4): a("buffer_load_dword v%d, v4, s[16:19], 0 offen offset:%d" % (20+i, i*1152))
    for i in range(4): a("buffer_load_dword v%d, v6, s[16:19], 0 offen offset:%d" % (24+i, i*1152))
    a("buffer_load_dword v28, v7, s[20:23], 0 offen offset:3456")
    for i in range(4): a("buffer_load_dword v%d, v4, s[20:23], 0 offen offset:%d" % (29+i, i*1152))
    for i in range(4): a("buffer_load_dword v%d, v6, s[20:23], 0 offen offset:%d" % (33+i, i*1152))
    a("""
    v_lshlrev_b32 v10, 14, v1        ; 2p*8192
    s_lshl_b32 s42, s37, 19          ; 64cb*8192
    v_lshlrev_b32 v11, 1, v3
    v_sub_u32 v11, 4080, v11
    v_add3_u32 v10, v10, v11, s42
    v_add_u32 v12, 8192, v10
    s_mov_b32 s43, 0xffff0000
    s_waitcnt vmcnt(21)
    """)
    for j in range(4):
        for c in range(2):
            src = 40 + 2*c + (j >> 1)
            if j & 1: a("v_and_b32 v%d, s43, v%d" % (44+2*j+c, src))
            else:     a("v_lshlrev_b32 v%d, 16, v%d" % (44+2*j+c, src))
    a("s_waitcnt vmcnt(9)")
    for i in range(12):
        a("v_lshlrev_b32 v%d, 16, v%d" % (56+2*i, 16+i))
        a("v_and_b32 v%d, s43, v%d" % (57+2*i, 16+i))
    a("s_waitcnt vmcnt(0)")
    stamp(a, dbg, 1)
    for e in range(9):
        a("v_lshlrev_b32 v%d, 16, v%d" % (80+2*e, 28+e))
        a("v_and_b32 v%d, s43, v%d" % (81+2*e, 28+e))
    def rnd(r, t):
        a("v_cvt_pk_bf16_f32 v%d, v%d, v%d" % (t, r, r+1))
        a("v_lshlrev_b32 v%d, 16, v%d" % (r, t))
        a("v_and_b32 v%d, s43, v%d" % (r+1, t))
    for e in range(9):
        P = [120, 122, 124, 126]
        for q in range(4):
            j = 3 - q
            a("v_pk_mul_f32 v[%d:%d], v[%d:%d], v[%d:%d]" % (P[q], P[q]+1, 56+2*(e+q), 57+2*(e+q), 44+2*j, 45+2*j))
        for q in range(4): rnd(P[q], 128+q)
        a("v_pk_add_f32 v[120:121], v[120:121], v[122:123]"); rnd(120, 128)
        a("v_pk_add_f32 v[120:121], v[120:121], v[124:125]"); rnd(120, 128)
        a("v_pk_add_f32 v[120:121], v[120:121], v[126:127]"); rnd(120, 128)
        a("v_pk_mul_f32 v[%d:%d], v[120:121], v[%d:%d]" % (100+2*e, 101+2*e, 80+2*e, 81+2*e))
    for c in range(2):
        for cp in range(2):
            base = 16 + (c*2+cp)*4
            for q in range(4):
                hi_e = (8 if cp else 7) - 2*q
                a("v_cvt_pk_bf16_f32 v%d, v%d, v%d" % (base+q, 100+2*hi_e+c, 100+2*(hi_e-1)+c))
    for c in range(2):
        for cp in range(2):
            base = 16 + (c*2+cp)*4
            a("s_mov_b32 s44, %d" % (UG + cp*4096))
            a("buffer_store_dwordx4 v[%d:%d], v%d, s[28:31], s44 offen" % (base, base+3, 10 if c == 0 else 12))
    stamp(a, dbg, 2)
    if dbg: a("s_waitcnt vmcnt(0)")
    stamp(a, dbg, 3)
    stamp_out(a, dbg, 4, 0, "s[28:31]")
    a("s_endpgm")
    a.label("K1_pack")
    check_magic(7282, 16, 9, 144)
    check_magic(1821, 16, 36, 2304)
    a("""
    s_sub_u32 s36, s2, %d
    s_mul_i32 s37, s36, 7282
    s_lshr_b32 s37, s37, 16          ; j
    s_mul_i32 s38, s37, 9
    s_sub_u32 s38, s36, s38          ; kb
    """ % NKV)
    wave_id(a, 39, 1)
    a("""
    v_and_b32 v2, 63, v0             ; lane
    s_mul_i32 s40, s38, 589824       ; 64*9216*kb
    s_mul_i32 s41, s37, 576
    s_add_u32 s40, s40, s41
    s_mul_i32 s42, s39, 576          ; wave*9*64
    s_mul_i32 s43, s39, 9216
    s_movk_i32 s44, 1821
    s_movk_i32 s45, 9216
    """)
    for i in range(9):
        a("v_add_u32 v3, s42, v2")
        if i: a("v_add_u32 v3, %d, v3" % (64*i))
        a("v_mul_lo_u32 v4, v3, s44")
        a("v_lshrrev_b32 v4, 16, v4")
        a("v_mul_u32_u24 v5, 36, v4")
        a("v_sub_u32 v5, v3, v5")
        a("v_mul_lo_u32 v4, v4, s45")
        a("v_lshl_add_u32 v%d, v5, 4, v4" % (8+i))
        a("s_add_u32 m0, s43, %d" % (1024*i))
        a("s_nop 0")
        a("buffer_load_dwordx4 v%d, s[32:35], s40 offen lds" % (8+i))
    a("""
    v_lshrrev_b32 v3, 4, v2          ; g
    v_bfe_u32 v4, v2, 2, 2           ; r4
    v_lshl_add_u32 v3, v3, 3, v4     ; 8g+r4
    v_mul_u32_u24 v3, 576, v3
    v_and_b32 v4, 3, v2
    v_lshl_add_u32 v3, v4, 3, v3
    s_lshr_b32 s46, s39, 1           ; ksl
    s_and_b32 s47, s39, 1
    s_mul_i32 s48, s46, 18432
    s_mul_i32 s49, s47, 288
    s_add_u32 s48, s48, s49
    v_add_u32 v3, s48, v3
    v_lshlrev_b32 v4, 4, v2          ; lane*16
    s_mul_i32 s50, s37, %d           ; j*SLICE
    s_lshl_b32 s51, s38, 1
    s_add_u32 s51, s51, s46          ; ks
    s_mul_i32 s51, s51, 6144
    s_add_u32 s50, s50, s51
    s_add_u32 s50, s50, %d
    s_mul_i32 s52, s47, 9            ; T0
    s_waitcnt vmcnt(0)
    s_barrier
    """ % (SLICE, W1P))
    stamp(a, dbg, 1)
    for i in range(9):
        a("ds_read_b64_tr_b16 v[%d:%d], v3 offset:%d" % (20+4*i, 21+4*i, 32*i))
        a("ds_read_b64_tr_b16 v[%d:%d], v3 offset:%d" % (22+4*i, 23+4*i, 32*i + 4*576))
    check_magic(43, 8, 6, 18)
    for i in range(9):
        a("s_add_u32 s53, s52, %d" % i)
        a("s_mul_i32 s54, s53, 43")
        a("s_lshr_b32 s54, s54, 8")
        a("s_mul_i32 s55, s54, %d" % (110592 - 6*1024))
        a("s_lshl_b32 s53, s53, 10")
        a("s_add_u32 s55, s55, s53")
        a("s_add_u32 s55, s55, s50")
        a("s_waitcnt lgkmcnt(%d)" % (16 - 2*i if 16-2*i <= 15 else 15))
        if i == 0: a("s_waitcnt lgkmcnt(15)\n s_waitcnt lgkmcnt(14)")
        a("buffer_store_dwordx4 v[%d:%d], v4, s[28:31], s55 offen sc1" % (20+4*i, 23+4*i))
    stamp(a, dbg, 2)
    if dbg: a("s_waitcnt vmcnt(0)")
    stamp(a, dbg, 3)
    stamp_out(a, dbg, 4, 0, "s[28:31]")
    a.label("K1_end")
    a("s_endpgm")
    return dict(name="k1_kernel", grid=NKV+NPK, block=256, lds=36864, body=a.text(), vgpr=136, sgpr=80, accum=136)

def gen_k2(dbg=False):
    a = Asm()
    NCV, NPK = 192, 144
    a("s_cmp_ge_u32 s2, %d" % (NCV+NPK))
    a("s_cbranch_scc1 K2_end")
    a("""
    s_load_dwordx4 s[4:7], s[0:1], 32
    s_load_dwordx2 s[10:11], s[0:1], 64   ; w2
    s_load_dwordx2 s[12:13], s[0:1], 88
    s_waitcnt lgkmcnt(0)
    """)
    srd(a, 16, 4, 2359296); srd(a, 20, 6, 1152); srd(a, 28, 12, WS_SIZE); srd(a, 32, 10, 5308416)
    stamp(a, dbg, 0)
    wave_id(a, 39, 1)
    a("v_and_b32 v2, 63, v0")
    a("s_cmp_ge_u32 s2, %d" % NCV)
    a("s_cbranch_scc1 K2_pack")
    a("""
    s_mul_i32 s36, s2, 3             ; d0
    v_lshlrev_b32 v3, 4, v2          ; lane*16
    """)
    items = []
    for ch in range(3):
        for cp in range(2):
            for q in range(4):
                items.append(("u", ch, cp, q))
        for cpy in range(4):
            for q in range(4):
                items.append(("k", ch, cpy, q))
    for w in range(4):
        a.label("K2_ld%d" % w) if w else None
        if w < 3:
            a("s_cmp_lg_u32 s39, %d" % w)
            a("s_cbranch_scc1 K2_ld%d" % (w+1))
        for (kind, ch, cp, q) in items[w::4]:
            if kind == "u":
                lds = ch*CH_BYTES + 4*KC_STRIDE + cp*UC_STRIDE + q*1024
                a("s_add_u32 s40, s36, %d" % ch)
                a("s_lshl_b32 s40, s40, 13")
                a("s_add_u32 s40, s40, %d" % (UG + cp*4096 + q*1024))
                a("s_mov_b32 m0, %d" % lds)
                a("s_nop 0")
                a("buffer_load_dwordx4 v3, s[28:31], s40 offen lds")
            else:
                lds = ch*CH_BYTES + cp*KC_STRIDE + 64 + q*1024
                a("s_add_u32 s40, s36, %d" % ch)
                a("s_lshl_b32 s40, s40, 12")
                a("s_add_u32 s40, s40, %d" % (4 + 4*cp + q*1024))
                a("s_mov_b32 m0, %d" % lds)
                a("s_nop 0")
                a("buffer_load_dwordx4 v3, s[16:19], s40 offen lds")
        if w < 3:
            ch = w
            a("""
            v_lshrrev_b32 v4, 4, v2          ; a
            v_and_b32 v5, 15, v2             ; dw
            v_add_u32 v6, v4, v5
            v_subrev_u32 v6, 15, v6          ; dw-15+a
            v_lshlrev_b32 v7, 2, v6
            v_cmp_gt_i32 vcc, 0, v6
            v_mov_b32 v8, 0x80000000
            s_nop 1
            v_cndmask_b32 v7, v7, v8, vcc
            s_add_u32 s40, s36, %d
            s_lshl_b32 s40, s40, 12
            buffer_load_dword v9, v7, s[16:19], s40 offen
            v_mul_u32_u24 v4, %d, v4
            v_lshl_add_u32 v4, v5, 2, v4
            v_mov_b32 v10, 0
            v_mov_b32 v11, 0
            v_lshlrev_b32 v12, 3, v2
            v_add_u32 v12, %d, v12
            v_cmp_gt_u32 vcc, 56, v2
            s_and_saveexec_b64 s[44:45], vcc
            ds_write_b64 v12, v[10:11] offset:%d
            ds_write_b64 v12, v[10:11] offset:%d
            s_mov_b64 exec, s[44:45]
            s_waitcnt vmcnt(0)
            ds_write_b32 v4, v9 offset:%d
            """ % (ch, KC_STRIDE, 4*KC_STRIDE, ch*CH_BYTES + 4096, ch*CH_BYTES + UC_STRIDE + 4096, ch*CH_BYTES))
            a("s_branch K2_ldd")
    a.label("K2_ldd")
    a("""
    v_and_b32 v4, 15, v2             ; i16
    v_lshrrev_b32 v5, 4, v2          ; g
    v_and_b32 v6, 3, v4              ; a_lo
    v_lshrrev_b32 v7, 2, v4          ; a_hi
    v_sub_u32 v7, v7, v5
    v_lshlrev_b32 v7, 4, v7
    v_add_u32 v7, 48, v7
    v_mul_u32_u24 v6, %d, v6
    v_add_u32 v20, v6, v7            ; K lane addr
    v_and_b32 v6, 1, v4              ; b_lo
    v_lshrrev_b32 v7, 1, v4          ; b_hi
    v_lshlrev_b32 v7, 6, v7
    v_lshl_add_u32 v7, v5, 4, v7
    v_sub_u32 v7, %d, v7
    v_mul_u32_u24 v6, %d, v6
    v_add_u32 v21, v6, v7            ; U lane addr
    """ % (KC_STRIDE, 496 + 4*KC_STRIDE, UC_STRIDE))
    for r in range(64): a("v_mov_b32 v%d, 0" % (160+r))
    a("s_waitcnt vmcnt(0) lgkmcnt(0)")
    a("s_barrier")
    stamp(a, dbg, 1)
    RED = 3*CH_BYTES
    units_of = {0: [(0,p) for p in range(6)], 1: [(0,6),(0,7)]+[(1,p) for p in range(4)],
                2: [(1,p) for p in range(4,8)]+[(2,0),(2,1)], 3: [(2,p) for p in range(2,8)]}
    setid = {0: {0:0}, 1: {0:1, 1:2}, 2: {1:3, 2:4}, 3: {2:5}}
    for w in range(4):
        if w: a.label("K2_mm%d" % w)
        if w < 3:
            a("s_cmp_lg_u32 s39, %d" % w)
            a("s_cbranch_scc1 K2_mm%d" % (w+1))
        units = units_of[w]
        chs = sorted(set(c for c,_ in units))
        accbase = {c: 160 + 32*i for i, c in enumerate(chs)}
        def reads(ui):
            ch, phi = units[ui]
            fb = 32 + 64*(ui & 1)
            out = []
            for n in range(8):
                out.append("ds_read_b128 v[%d:%d], v21 offset:%d" % (fb+32+4*n, fb+35+4*n, ch*CH_BYTES + 3584 - 512*n + 64*phi))
                out.append("ds_read_b128 v[%d:%d], v20 offset:%d" % (fb+4*n, fb+3+4*n, ch*CH_BYTES + 512*n + 64*phi))
            return out
        for l in reads(0): a(l)
        for ui, (ch, phi) in enumerate(units):
            fb = 32 + 64*(ui & 1)
            nxt = reads(ui+1) if ui+1 < len(units) else []
            a("s_waitcnt lgkmcnt(0)")
            k = 0
            for t in range(8):
                for ap in range(t+1):
                    ac = accbase[ch] + 4*t
                    j = t - ap
                    a("v_mfma_f32_16x16x32_bf16 v[%d:%d], v[%d:%d], v[%d:%d], v[%d:%d]" % (ac, ac+3, fb+32+4*j, fb+35+4*j, fb+4*ap, fb+3+4*ap, ac, ac+3))
                    k += 1
                    if k % 2 == 0 and nxt: a(nxt.pop(0))
            assert not nxt
        a("s_nop 7\n s_nop 7")
        a("""
        v_lshlrev_b32 v6, 8, v5          ; 64g*4
        v_lshl_add_u32 v6, v4, 3, v6     ; + 2*i16*4
        """)
        for c in chs:
            slot = setid[w][c]
            a("v_add_u32 v7, %d, v6" % (RED + slot*8192))
            for t in range(8):
                ac = accbase[c] + 4*t
                a("ds_write_b64 v7, v[%d:%d] offset:%d" % (ac, ac+1, 1024*t))
                a("ds_write_b64 v7, v[%d:%d] offset:%d" % (ac+2, ac+3, 1024*t + 128))
        if w < 3: a("s_branch K2_mmd")
    a.label("K2_mmd")
    stamp(a, dbg, 2)
    a("""
    s_lshl_b32 s40, s36, 1
    v_mov_b32 v8, 0
    buffer_load_ushort v24, v8, s[20:23], s40 offen
    buffer_load_ushort v25, v8, s[20:23], s40 offen offset:2
    buffer_load_ushort v26, v8, s[20:23], s40 offen offset:4
    s_mov_b32 s43, 0xffff0000
    v_lshlrev_b32 v9, 5, v0          ; tid*32 : 8 fp32 outputs
    v_lshlrev_b32 v10, 4, v0         ; tid*16
    v_sub_u32 v11, %d, v10         ; U copy1 byte offset: y0 = 2040 - s0 -> *2
    s_waitcnt lgkmcnt(0)
    s_barrier
    """ % (4080 + 4*KC_STRIDE))
    for c in range(3):
        b = 32 + 24*c
        a("v_add_u32 v12, %d, v9" % (RED + 2*c*8192))
        a("ds_read_b128 v[%d:%d], v12" % (b, b+3))
        a("ds_read_b128 v[%d:%d], v12 offset:16" % (b+4, b+7))
        a("ds_read_b128 v[%d:%d], v12 offset:8192" % (b+8, b+11))
        a("ds_read_b128 v[%d:%d], v12 offset:8208" % (b+12, b+15))
        a("ds_read_b128 v[%d:%d], v11 offset:%d" % (b+16, b+19, c*CH_BYTES + UC_STRIDE))
    a("s_waitcnt vmcnt(0)")
    for c in range(3): a("v_lshlrev_b32 v%d, 16, v%d" % (24+c, 24+c))
    a("s_waitcnt lgkmcnt(0)")
    for c in range(3):
        b = 32 + 24*c
        for e in range(0, 8, 2):
            a("v_pk_add_f32 v[%d:%d], v[%d:%d], v[%d:%d]" % (b+e, b+e+1, b+e, b+e+1, b+8+e, b+9+e))
        for e in range(0, 8, 2):
            a("v_cvt_pk_bf16_f32 v%d, v%d, v%d" % (b+8, b+e, b+e+1))
            a("v_lshlrev_b32 v%d, 16, v%d" % (b+e, b+8))
            a("v_and_b32 v%d, s43, v%d" % (b+e+1, b+8))
        for q in range(4):
            e_hi = 7 - 2*q
            a("v_lshlrev_b32 v%d, 16, v%d" % (b+8+e_hi, b+16+q))
            a("v_and_b32 v%d, s43, v%d" % (b+8+e_hi-1, b+16+q))
        for e in range(8):
            a("v_mul_f32 v%d, v%d, v%d" % (b+8+e, b+8+e, 24+c))
        for e in range(0, 8, 2):
            a("v_cvt_pk_bf16_f32 v%d, v%d, v%d" % (b+16, b+8+e, b+9+e))
            a("v_lshlrev_b32 v%d, 16, v%d" % (b+8+e, b+16))
            a("v_and_b32 v%d, s43, v%d" % (b+9+e, b+16))
        for e in range(0, 8, 2):
            a("v_pk_add_f32 v[%d:%d], v[%d:%d], v[%d:%d]" % (b+e, b+e+1, b+e, b+e+1, b+8+e, b+9+e))
        for e in range(0, 8, 2):
            a("v_cvt_pk_bf16_f32 v%d, v%d, v%d" % (b+16+e//2, b+e, b+e+1))
        a("s_add_u32 s40, s36, %d" % c)
        a("s_lshl_b32 s40, s40, 12")
        a("s_add_u32 s40, s40, %d" % ZT)
        a("buffer_store_dwordx4 v[%d:%d], v10, s[28:31], s40 offen sc1" % (b+16, b+19))
    stamp(a, dbg, 3)
    if dbg: a("s_waitcnt vmcnt(0)")
    stamp(a, dbg, 4)
    stamp_out(a, dbg, 5, 1, "s[28:31]")
    a("s_endpgm")
    a.label("K2_pack")
    check_magic(1821, 16, 36, 144)
    check_magic(7282, 16, 9, 36)
    check_magic(86, 8, 3, 9)
    a("""
    s_sub_u32 s36, s2, %d            ; kk
    v_lshlrev_b32 v4, 4, v2          ; lane*16
    s_mul_i32 s40, s36, 36864
    s_mul_i32 s43, s39, 9216
    s_add_u32 s40, s40, s43
    """ % NCV)
    for i in range(9):
        a("s_add_u32 m0, s43, %d" % (1024*i))
        a("s_add_u32 s41, s40, %d" % (1024*i))
        a("buffer_load_dwordx4 v4, s[32:35], s41 offen lds")
    a("""
    v_mov_b32 v8, 0
    v_mov_b32 v9, 0
    v_lshlrev_b32 v10, 1, v0
    s_lshl_b32 s41, s36, 9
    s_add_u32 s41, s41, %d
    v_lshlrev_b32 v10, 1, v0
    buffer_store_short v8, v10, s[28:31], s41 offen sc1
    """ % FLAGS)
    a("""
    s_mul_i32 s44, s36, 1821
    s_lshr_b32 s44, s44, 16          ; s
    s_mul_i32 s45, s44, 36
    s_sub_u32 s45, s36, s45          ; kk%%36
    s_mul_i32 s46, s45, 7282
    s_lshr_b32 s46, s46, 16          ; nb
    s_mul_i32 s47, s46, 9
    s_sub_u32 s47, s45, s47          ; k9 = kk%%9
    s_mul_i32 s48, s47, 86
    s_lshr_b32 s48, s48, 8           ; ch (0..2)
    s_mul_i32 s49, s48, 3
    s_sub_u32 s49, s47, s49          ; st
    s_sub_u32 s50, s46, s39
    s_sub_u32 s50, s50, 1
    s_and_b32 s50, s50, 3            ; pr (3 == own)
    s_mul_i32 s51, s50, 3
    s_add_u32 s51, s51, s49          ; pr*3+st
    s_mul_i32 s52, s48, 9
    s_add_u32 s52, s52, 9
    s_add_u32 s52, s52, s51          ; e if partner early
    s_cmp_eq_u32 s50, 3
    s_cselect_b32 s52, s47, s52      ; e (own -> k9)
    s_cselect_b32 s53, 0, s48        ; own -> treat as early
    ; positions
    s_add_u32 s54, s52, 0            ; c2=0 early
    s_add_u32 s55, s52, 27
    s_add_u32 s56, s52, 72
    s_add_u32 s57, s51, 54
    s_add_u32 s58, s51, 63
    s_add_u32 s59, s51, 99
    s_cmp_eq_u32 s53, 2
    s_cselect_b32 s54, s57, s54
    s_cselect_b32 s55, s58, s55
    s_cselect_b32 s56, s59, s56
    s_lshl_b32 s60, s44, 2
    s_add_u32 s60, s60, s39
    s_mul_i32 s60, s60, %d
    s_add_u32 s60, s60, %d
    s_mul_i32 s54, s54, 3072
    s_mul_i32 s55, s55, 3072
    s_mul_i32 s56, s56, 3072
    s_add_u32 s54, s54, s60
    s_add_u32 s55, s55, s60
    s_add_u32 s56, s56, s60
    v_lshrrev_b32 v3, 4, v2          ; g
    v_bfe_u32 v5, v2, 2, 2           ; r4
    v_lshl_add_u32 v3, v3, 2, v5     ; 4g+r4
    v_mul_u32_u24 v3, 1152, v3
    v_and_b32 v5, 3, v2
    v_lshl_add_u32 v3, v5, 3, v3
    s_mul_i32 s61, s39, 288
    v_add_u32 v3, s61, v3
    s_waitcnt vmcnt(0)
    s_barrier
    """ % (SLICE, W2P))
    stamp(a, dbg, 1)
    for i in range(9):
        a("ds_read_b64_tr_b16 v[%d:%d], v3 offset:%d" % (20+4*i, 21+4*i, 32*i))
        a("ds_read_b64_tr_b16 v[%d:%d], v3 offset:%d" % (22+4*i, 23+4*i, 32*i + 16*1152))
    for i in range(9):
        a("s_waitcnt lgkmcnt(%d)" % min(15, 16 - 2*i))
        if i == 0: a("s_waitcnt lgkmcnt(14)")
        a("buffer_store_dwordx4 v[%d:%d], v4, s[28:31], s%d offen offset:%d sc1" % (20+4*i, 23+4*i, 54 + i//3, (i%3)*1024))
    stamp(a, dbg, 2)
    stamp(a, dbg, 3)
    if dbg: a("s_waitcnt vmcnt(0)")
    stamp(a, dbg, 4)
    stamp_out(a, dbg, 5, 1, "s[28:31]")
    a.label("K2_end")
    a("s_endpgm")
    lds = 3*CH_BYTES + 6*8192
    return dict(name="k2_kernel", grid=NCV+NPK, block=256, lds=lds, body=a.text(), vgpr=224, sgpr=80, accum=224)

if __name__ == "__main__":
    open("front.s", "w").write(make_file([gen_k1(), gen_k2()]))
    open("front_dbg.s", "w").write(make_file([gen_k1(True), gen_k2(True)]))
```

```python
UG    = 0x0000000
ZT    = 0x0500000
W1P   = 0x0800000
W2P   = 0x0E00000
XNF   = 0x1400000
HB    = 0x1700000
HF    = 0x1A00000
PART  = 0x3000000
FLAGS = 0x5000000
FLAG_BYTES = 576*128
WS_SIZE = 0x10000000
SLICE = 331776
KC_STRIDE = 4160
UC_STRIDE = 4576
CH_BYTES = 4*KC_STRIDE + 2*UC_STRIDE
```

```python
import copy
from asmlib import *
from layout import *
from gen_front import srd, check_magic, wave_id, stamp, stamp_out

ZL = 147456
RS = ZL + 9216
KB_LDS = RS + 512
F1 = FLAGS
F2 = FLAGS + 64*128
F3 = FLAGS + 320*128
RING = 16; VB = 16
HO = 80
ACC = [152, 200]
SPIN_MAX = 20000

class VM:
    def __init__(self): self.n = 0
    def issue(self): self.n += 1; return self.n
    def wait_cnt(self, seq): return self.n - seq

def order_units():
    E = [("o", 0, x) for x in range(9)] + [("p", pr, ch*3+st) for ch in range(2) for pr in range(3) for st in range(3)]
    L = [("p", pr, 6+st) for pr in range(3) for st in range(3)]
    return [(0,u) for u in E] + [(1,u) for u in E] + [(0,u) for u in L] + [(1,u) for u in L] + [(2,u) for u in E] + [(2,u) for u in L]

def areg_partner(pr, k9, mt):
    ch, st = divmod(k9, 3)
    base = {0: 144, 1: 0, 2: 72}[ch]
    return base + ((pr*3 + st)*2 + mt)*4

def acc2_reg(c2, tt, mt):
    base = {0: ACC[1], 1: ACC[1]+24, 2: ACC[0]}[c2]
    return base + (tt*2+mt)*4

def rnd_pair(a, r, t):
    a("v_cvt_pk_bf16_f32 v%d, v%d, v%d" % (t, r, r+1))
    a("v_lshlrev_b32 v%d, 16, v%d" % (r, t))
    a("v_and_b32 v%d, s43, v%d" % (r+1, t))

def rnd1(a, r):
    a("v_cvt_pk_bf16_f32 v%d, v%d, v%d" % (r, r, r))
    a("v_lshlrev_b32 v%d, 16, v%d" % (r, r))

def ln_stats(a, V, T, rnd_idx):
    a("v_pk_add_f32 v[%d:%d], v[%d:%d], v[%d:%d]" % (T, T+1, V, V+1, V+2, V+3))
    a("v_pk_add_f32 v[%d:%d], v[%d:%d], v[%d:%d]" % (T+2, T+3, V+4, V+5, V+6, V+7))
    for i in range(8, 24, 4):
        a("v_pk_add_f32 v[%d:%d], v[%d:%d], v[%d:%d]" % (T, T+1, T, T+1, V+i, V+i+1))
        a("v_pk_add_f32 v[%d:%d], v[%d:%d], v[%d:%d]" % (T+2, T+3, T+2, T+3, V+i+2, V+i+3))
    a("v_pk_add_f32 v[%d:%d], v[%d:%d], v[%d:%d]" % (T, T+1, T, T+1, T+2, T+3))
    a("v_add_f32 v%d, v%d, v%d" % (T, T, T+1))
    a("v_mul_f32 v%d, 0x3d2aaaab, v%d" % (T+4, T))
    for i in range(24):
        a("v_sub_f32 v%d, v%d, v%d" % (T+10+(i&3), V+i, T+4))
        if i < 4: a("v_mul_f32 v%d, v%d, v%d" % (T+6+i, T+10+i, T+10+i))
        else:     a("v_fmac_f32 v%d, v%d, v%d" % (T+6+(i&3), T+10+(i&3), T+10+(i&3)))
    a("v_add_f32 v%d, v%d, v%d" % (T+6, T+6, T+7))
    a("v_add_f32 v%d, v%d, v%d" % (T+8, T+8, T+9))
    a("v_add_f32 v%d, v%d, v%d" % (T+5, T+6, T+8))
    m, M2 = T+4, T+5
    def merge(am, bm, aM, bM, half_n):
        a("v_sub_f32 v%d, v%d, v%d" % (T+10, am, bm))
        a("v_add_f32 v%d, v%d, v%d" % (m, am, bm))
        a("v_add_f32 v%d, v%d, v%d" % (M2, aM, bM))
        a("v_mul_f32 v%d, v%d, v%d" % (T+10, T+10, T+10))
        a("v_mul_f32 v%d, 0.5, v%d" % (m, m))
        a("v_fmac_f32 v%d, %s, v%d" % (M2, half_n, T+10))
    a("s_nop 1")
    a("v_mov_b32_dpp v%d, v%d row_ror:8 row_mask:0xf bank_mask:0xf" % (T+6, m))
    a("v_mov_b32_dpp v%d, v%d row_ror:8 row_mask:0xf bank_mask:0xf" % (T+7, M2))
    merge(m, T+6, M2, T+7, "0x41400000")
    for op, hn in (("v_permlane16_swap_b32", "0x41c00000"), ("v_permlane32_swap_b32", "0x42400000")):
        a("v_mov_b32 v%d, v%d" % (T+6, m)); a("v_mov_b32 v%d, v%d" % (T+7, m))
        a("v_mov_b32 v%d, v%d" % (T+8, M2)); a("v_mov_b32 v%d, v%d" % (T+9, M2))
        a("s_nop 1")
        a("%s v%d, v%d" % (op, T+6, T+7))
        a("%s v%d, v%d" % (op, T+8, T+9))
        a("s_nop 1")
        merge(T+6, T+7, T+8, T+9, hn)
    a("ds_write_b64 v11, v[%d:%d] offset:%d" % (m, M2, rnd_idx*192))
    a("s_waitcnt lgkmcnt(0)")
    a("s_barrier")
    for w in range(3):
        a("ds_read_b64 v[%d:%d], v12 offset:%d" % (T+6+2*w, T+7+2*w, rnd_idx*192 + w*64))
    a("s_waitcnt lgkmcnt(0)")
    a("v_add_f32 v%d, v%d, v%d" % (m, T+6, T+8))
    a("v_add_f32 v%d, v%d, v%d" % (M2, T+7, T+9))
    a("v_add_f32 v%d, v%d, v%d" % (m, m, T+10))
    a("v_add_f32 v%d, v%d, v%d" % (M2, M2, T+11))
    a("v_mul_f32 v%d, 0x3eaaaaab, v%d" % (m, m))
    a("v_sub_f32 v%d, v%d, v%d" % (T+6, T+6, m))
    a("v_sub_f32 v%d, v%d, v%d" % (T+8, T+8, m))
    a("v_sub_f32 v%d, v%d, v%d" % (T+10, T+10, m))
    a("v_mul_f32 v%d, v%d, v%d" % (T+6, T+6, T+6))
    a("v_fmac_f32 v%d, v%d, v%d" % (T+6, T+8, T+8))
    a("v_fmac_f32 v%d, v%d, v%d" % (T+6, T+10, T+10))
    a("v_fmac_f32 v%d, 0x43400000, v%d" % (M2, T+6))
    a("v_mul_f32 v%d, 0x3ae38e39, v%d" % (M2, M2))
    rnd1(a, m); rnd1(a, M2)
    a("v_add_f32 v%d, 0x3727c5ac, v%d" % (M2, M2))
    rnd1(a, M2)
    a("v_sqrt_f32 v%d, v%d" % (M2, M2))
    a("s_nop 0")
    rnd1(a, M2)
    a("v_rcp_f32 v%d, v%d" % (T+2, M2))
    a("v_sub_f32 v%d, 0, v%d" % (T, m))
    a("v_sub_f32 v%d, 0, v%d" % (T+1, m))
    a("s_nop 0")
    a("v_mov_b32 v%d, v%d" % (T+3, T+2))

def poll_check(a, vm, seq, vflag, needed, mask, soff, vaddr, lab):
    a("s_waitcnt vmcnt(%d)" % vm.wait_cnt(seq))
    a("s_mov_b32 s58, 0")
    a.label(lab + "_chk")
    a("v_cmp_le_u32 vcc, %d, v%d" % (needed, vflag))
    a("s_nop 1")
    a("s_and_b32 s59, vcc_lo, 0x%x" % mask)
    a("s_cmp_eq_u32 s59, 0x%x" % mask)
    a("s_cbranch_scc1 %s_ok" % lab)
    a("s_add_u32 s58, s58, 1")
    a("s_cmp_gt_u32 s58, %d" % SPIN_MAX)
    a("s_cbranch_scc1 %s_ok" % lab)
    a("s_sleep 1")
    a("buffer_load_dword v%d, v%d, s[28:31], s%d offen sc1" % (vflag, vaddr, soff))
    a("s_waitcnt vmcnt(0)")
    a("s_branch %s_chk" % lab)
    a.label(lab + "_ok")

def gen_kb(dbg=False, LMAX=12, LB=6):
    a = Asm()
    vm = VM()
    a("s_cmp_ge_u32 s2, 256")
    a("s_cbranch_scc1 KB_end")
    a("""
    s_load_dwordx2 s[4:5], s[0:1], 0
    s_load_dwordx2 s[6:7], s[0:1], 72
    s_load_dwordx2 s[12:13], s[0:1], 88
    s_waitcnt lgkmcnt(0)
    """)
    srd(a, 16, 4, 2359296); srd(a, 20, 6, 2359296); srd(a, 28, 12, WS_SIZE)
    stamp(a, dbg, 0)
    wave_id(a, 39, 1)
    a("""
    s_and_b32 s32, s2, 3             ; s
    s_lshr_b32 s33, s2, 3            ; q
    s_and_b32 s34, s33, 3            ; n
    s_lshr_b32 s35, s33, 2
    s_bfe_u32 s36, s2, 0x10002       ; (b>>2)&1
    s_lshl_b32 s36, s36, 3
    s_add_u32 s35, s35, s36          ; m
    s_lshl_b32 s36, s32, 2
    s_add_u32 s36, s36, s34          ; j
    s_lshl_b32 s37, s35, 7
    s_lshl_b32 s38, s36, 3
    s_add_u32 s37, s37, s38          ; R0
    s_mov_b32 s43, 0xffff0000
    v_and_b32 v2, 63, v0             ; lane
    v_lshlrev_b32 v3, 4, v2          ; lane*16
    s_mul_i32 s40, s39, 9216         ; wave offset within stage (lds + global)
    s_mul_i32 s41, s36, %d
    s_add_u32 s41, s41, s40
    s_add_u32 s41, s41, %d           ; W1P global base for this wave
    s_add_u32 s42, s41, %d           ; W2P global base for this wave
    """ % (SLICE, W1P, W2P - W1P))
    for sl in range(4): a("v_add_u32 v%d, %d, v3" % (4+sl, sl*36864))
    def dma(stage, i):
        slot = stage % 4
        a("s_add_u32 m0, s40, %d" % (slot*36864 + i*1024))
        if stage < 9: a("s_add_u32 s44, s41, %d" % (stage*36864 + i*1024))
        else:         a("s_add_u32 s44, s42, %d" % ((stage-9)*36864 + i*1024))
        a("buffer_load_dwordx4 v3, s[28:31], s44 offen lds")
        return vm.issue()
    a("s_cmp_eq_u32 s39, 3")
    a("s_cbranch_scc1 KB_w3")
    vm3 = VM()
    a("""
    v_lshlrev_b32 v8, 12, v2         ; lane*4096
    s_mul_i32 s44, s39, 786432       ; 3w * 262144
    s_lshl_b32 s45, s37, 1
    s_add_u32 s44, s44, s45
    s_add_u32 s44, s44, %d
    s_mul_i32 s45, s39, 3072
    v_and_b32 v9, 7, v2              ; r
    v_lshrrev_b32 v10, 3, v2         ; l>>3
    v_mul_u32_u24 v13, 1152, v9
    v_lshl_add_u32 v13, v10, 4, v13  ; x voffset
    s_mul_i32 s46, s37, 1152
    s_mul_i32 s47, s39, 384
    s_add_u32 s46, s46, s47          ; x soffset (it=0)
    """ % ZT)
    for it in range(3):
        a("s_add_u32 m0, s45, %d" % (ZL + it*1024))
        a("s_add_u32 s47, s44, %d" % (it*262144))
        a("buffer_load_dwordx4 v8, s[28:31], s47 offen lds")
        zseq = vm.issue()
    for it in range(3):
        a("buffer_load_dwordx4 v[%d:%d], v13, s[16:19], s46 offen offset:%d" % (16+4*it, 19+4*it, it*128))
        xseq = vm.issue()
    for st in range(3):
        for i in range(9): dma(st, i)
    a("""
    v_lshlrev_b32 v12, 3, v9         ; r*8
    v_add_u32 v12, %d, v12
    s_lshl_b32 s47, s39, 6
    v_add_u32 v11, s47, v12          ; r*8 + w*64
    v_lshrrev_b32 v14, 4, v2         ; G
    v_lshlrev_b32 v14, 8, v14
    v_bfe_u32 v15, v2, 1, 1          ; c>>1
    v_lshl_add_u32 v14, v15, 7, v14
    v_bfe_u32 v15, v2, 2, 2          ; r4
    v_lshl_add_u32 v14, v15, 4, v14
    v_and_b32 v15, 1, v2
    v_lshl_add_u32 v14, v15, 3, v14
    v_add_u32 v14, s45, v14
    v_add_u32 v14, %d, v14           ; tr read addr (it=0)
    """ % (RS, ZL))
    a("s_waitcnt vmcnt(%d)" % vm.wait_cnt(xseq))
    stamp(a, dbg, 1)
    for it in range(3):
        a("ds_read_b64_tr_b16 v[%d:%d], v14 offset:%d" % (28+4*it, 29+4*it, it*1024))
        a("ds_read_b64_tr_b16 v[%d:%d], v14 offset:%d" % (30+4*it, 31+4*it, it*1024 + 64))
    X = 40
    for i in range(12):
        a("v_lshlrev_b32 v%d, 16, v%d" % (X+2*i, 16+i))
        a("v_and_b32 v%d, s43, v%d" % (X+2*i+1, 16+i))
    T = 100
    ln_stats(a, X, T, 0)
    Hh = 64
    for i in range(12):
        d = 120
        a("v_pk_add_f32 v[%d:%d], v[%d:%d], v[%d:%d]" % (d, d+1, X+2*i, X+2*i+1, T, T+1)); rnd_pair(a, d, d+4)
        a("v_pk_mul_f32 v[%d:%d], v[%d:%d], v[%d:%d]" % (d, d+1, d, d+1, T+2, T+3)); rnd_pair(a, d, d+4)
        a("v_lshlrev_b32 v%d, 16, v%d" % (d+2, 28+i))
        a("v_and_b32 v%d, s43, v%d" % (d+3, 28+i))
        a("v_pk_mul_f32 v[%d:%d], v[%d:%d], v[%d:%d]" % (d, d+1, d, d+1, d+2, d+3)); rnd_pair(a, d, d+4)
        a("v_pk_add_f32 v[%d:%d], v[%d:%d], v[%d:%d]" % (Hh+2*i, Hh+2*i+1, X+2*i, X+2*i+1, d, d+1)); rnd_pair(a, Hh+2*i, 16+i)
    a("s_add_u32 s47, s46, %d" % HB)
    for it in range(3):
        a("buffer_store_dwordx4 v[%d:%d], v13, s[28:31], s47 offen offset:%d sc1" % (16+4*it, 19+4*it, it*128)); vm.issue()
    ln_stats(a, Hh, T, 1)
    for i in range(12):
        d = 120
        a("v_pk_add_f32 v[%d:%d], v[%d:%d], v[%d:%d]" % (d, d+1, Hh+2*i, Hh+2*i+1, T, T+1)); rnd_pair(a, d, d+4)
        a("v_pk_mul_f32 v[%d:%d], v[%d:%d], v[%d:%d]" % (d, d+1, d, d+1, T+2, T+3))
        a("v_cvt_pk_bf16_f32 v%d, v%d, v%d" % (28+i, d, d+1))
    a("""
    v_lshrrev_b32 v8, 5, v2
    v_lshlrev_b32 v8, 10, v8
    v_bfe_u32 v15, v2, 3, 2
    v_lshl_add_u32 v8, v15, 8, v8
    v_lshl_add_u32 v8, v9, 4, v8     ; xn voffset
    s_lshr_b32 s47, s37, 4           ; mt_g
    s_mul_i32 s47, s47, 18
    s_mul_i32 s48, s39, 6
    s_add_u32 s47, s47, s48
    s_lshl_b32 s47, s47, 10
    s_and_b32 s48, s36, 1
    s_lshl_b32 s48, s48, 7
    s_add_u32 s47, s47, s48
    s_add_u32 s47, s47, %d
    """ % XNF)
    for it in range(3):
        if it == 2: a("s_add_u32 s47, s47, 4096")
        a("buffer_store_dwordx4 v[%d:%d], v8, s[28:31], s47 offen offset:%d sc1" % (28+4*it, 31+4*it, (it*2048) % 4096)); vm.issue()
    a("""
    s_lshl_b32 s47, s35, 2
    s_add_u32 s47, s47, s32
    s_lshl_b32 s47, s47, 7
    s_lshl_b32 s48, s34, 4
    s_add_u32 s47, s47, s48
    s_lshl_b32 s48, s39, 2
    s_add_u32 s47, s47, s48
    s_add_u32 s47, s47, %d
    v_mov_b32 v8, 0
    v_mov_b32 v9, 1
    s_waitcnt vmcnt(0)
    s_mov_b64 exec, 1
    buffer_store_dword v9, v8, s[28:31], s47 offen sc1
    s_mov_b64 exec, -1
    s_branch KB_lnd
    """ % F1)
    a.label("KB_w3")
    save = vm.n
    for st in range(3):
        for i in range(9): dma(st, i)
    vm.n = save
    a("s_barrier")
    a("s_barrier")
    a.label("KB_lnd")
    stamp(a, dbg, 2)
    a("""
    s_lshl_b32 s47, s35, 2
    s_add_u32 s47, s47, s39
    s_lshl_b32 s47, s47, 7
    s_add_u32 s47, s47, %d
    v_and_b32 v8, 15, v2
    v_lshlrev_b32 v8, 2, v8
    buffer_load_dword v9, v8, s[28:31], s47 offen sc1
    """ % F1)
    vm.n = 0
    seq = vm.issue()
    poll_check(a, vm, seq, 9, 1, 0x7777, 47, 8, "KB_p1")
    stamp(a, dbg, 3)
    a("""
    s_lshl_b32 s47, s35, 3
    s_lshl_b32 s48, s39, 1
    s_add_u32 s47, s47, s48
    s_mul_i32 s47, s47, 18432
    s_add_u32 s47, s47, %d
    """ % XNF)
    xn_seq = {}
    for ks in range(18):
        for mt in range(2):
            off = (mt*18 + ks)*1024
            a("s_add_u32 s48, s47, %d" % (off - off % 4096))
            r = (ks*2+mt)*4
            a("buffer_load_dwordx4 a[%d:%d], v3, s[28:31], s48 offen offset:%d sc1" % (r, r+3, off % 4096))
            xn_seq[(ks, mt)] = vm.issue()
    a("""
    s_lshl_b32 s45, s35, 2
    s_add_u32 s45, s45, s39          ; m*4+w
    s_mul_i32 s46, s45, 294912       ; *2*144*1024
    s_add_u32 s46, s46, %d           ; HF base for (m,w)
    s_mul_i32 s47, s36, 9216
    s_add_u32 s47, s47, s46          ; own HF base (kk = 9j)
    s_lshl_b32 s48, s35, 2
    s_add_u32 s48, s48, s32
    s_lshl_b32 s48, s48, 2
    s_add_u32 s48, s48, s39
    s_lshl_b32 s48, s48, 7
    s_add_u32 s48, s48, %d           ; F2 line (m,s,w)
    s_lshl_b32 s49, s35, 2
    s_add_u32 s49, s49, s34
    s_lshl_b32 s49, s49, 2
    s_add_u32 s49, s49, s39          ; (m*4+n)*4+w
    s_mul_i32 s50, s49, 73728
    s_add_u32 s50, s50, %d           ; PART base (m,n,w)
    s_lshl_b32 s49, s49, 7
    s_add_u32 s49, s49, %d           ; F3 line (m,n,w)
    v_and_b32 v8, 3, v2
    v_lshlrev_b32 v8, 2, v8          ; flag lane addr
    v_mov_b32 v10, 0
    s_lshl_b32 s51, s34, 2
    s_add_u32 s51, s51, s48          ; own F2 word
    s_lshl_b32 s52, s32, 2
    s_add_u32 s52, s52, s49          ; own F3 word
    """ % (HF, F2, PART, F3))
    for pr in range(3):
        a("s_add_u32 s%d, s34, %d" % (53+pr, 1+pr))
        a("s_and_b32 s%d, s%d, 3" % (53+pr, 53+pr))
        a("s_lshl_b32 s56, s32, 2")
        a("s_add_u32 s%d, s%d, s56" % (53+pr, 53+pr))
        a("s_mul_i32 s%d, s%d, 9216" % (53+pr, 53+pr))
        a("s_add_u32 s%d, s%d, s46" % (53+pr, 53+pr))
    a("""
    v_and_b32 v11, 15, v2
    v_mul_u32_u24 v11, 1152, v11
    v_lshrrev_b32 v12, 4, v2
    v_lshl_add_u32 v11, v12, 3, v11  ; (l&15)*1152 + g*8
    s_lshl_b32 s56, s35, 7
    s_lshl_b32 s57, s39, 5
    s_add_u32 s56, s56, s57
    s_mul_i32 s56, s56, 1152
    s_mul_i32 s57, s34, 288
    s_add_u32 s56, s56, s57          ; out soffset base
    s_add_u32 s57, s56, %d           ; h soffset base
    """ % HB)

    units = order_units()
    NF = 648
    def frag_mfmas(gf):
        st, f = divmod(gf, 36)
        rb = VB + (gf % RING)*4
        out = []
        if st < 9:
            c = st // 3; ks = 6*(st % 3) + f // 6; tt = f % 6
            for mt in range(2):
                ac = ACC[c & 1] + (tt*2+mt)*4
                xr = (ks*2+mt)*4
                src = "0" if ks == 0 else "v[%d:%d]" % (ac, ac+3)
                out.append("v_mfma_f32_16x16x32_bf16 v[%d:%d], v[%d:%d], a[%d:%d], %s" % (ac, ac+3, rb, rb+3, xr, xr+3, src))
        else:
            uu, tt = divmod(gf - 324, 3)
            c2, (kind, pr, k9) = units[uu]
            first = uu in (0, 27, 72)
            for mt in range(2):
                ac = acc2_reg(c2, tt, mt)
                if kind == "o": hr = "v[%d:%d]" % (HO + (k9*2+mt)*4, HO + (k9*2+mt)*4 + 3)
                else:
                    r = areg_partner(pr, k9, mt); hr = "a[%d:%d]" % (r, r+3)
                src = "0" if first else "v[%d:%d]" % (ac, ac+3)
                out.append("v_mfma_f32_16x16x32_bf16 v[%d:%d], v[%d:%d], %s, %s" % (ac, ac+3, rb, rb+3, hr, src))
        return out

    class S: pass
    def build_tasks(svar):
        tasks = {}
        def at(q, fn): tasks.setdefault(q, []).append(fn)
        for c in range(3):
            q0 = 108*(c+1) + 1
            k = 0
            for p in range(3):
                for mt in range(2):
                    hr = HO + ((3*c+p)*2+mt)*4
                    for half in range(2):
                        ac = ACC[c & 1] + ((2*p+half)*2+mt)*4
                        for e in range(2):
                            def f(a, S_, d=hr+2*half+e, s0=ac+2*e):
                                a("v_cvt_pk_bf16_f32 v%d, v%d, v%d" % (d, s0, s0+1))
                                a("v_pk_max_i16 v%d, v%d, 0" % (d, d)) if False else None
                            at(q0 + k//2, f); k += 1
                    def g(a, S_, hr=hr):
                        for e in range(4): a("v_pk_max_i16 v%d, v%d, v10" % (hr+e, hr+e))
                    at(q0 + k//2, g)
                    def h(a, S_, hr=hr, c=c, p=p, mt=mt):
                        off = mt*147456 + (3*c+p)*1024
                        a("s_add_u32 s60, s47, %d" % off)
                        a("buffer_store_dwordx4 v[%d:%d], v3, s[28:31], s60 offen sc1" % (hr, hr+3))
                        S_.hst[c] = S_.vm.issue()
                    at(q0 + k//2 + 1, h)
            def fl(a, S_, c=c):
                a("s_waitcnt vmcnt(%d)" % S_.vm.wait_cnt(S_.hst[c]))
                a("v_mov_b32 v9, %d" % (c+1))
                a("s_mov_b64 exec, 1")
                a("buffer_store_dword v9, v10, s[28:31], s51 offen sc1"); S_.vm.issue()
                a("s_mov_b64 exec, -1")
            at(q0 + 34, fl)
        for c, (qp, qc) in enumerate([(180, 192), (288, 300), (396, 408)]):
            def pl(a, S_):
                a("buffer_load_dword v13, v8, s[28:31], s48 offen sc1"); S_.fseq = S_.vm.issue()
            at(qp, pl)
            def pc(a, S_, c=c):
                poll_check(a, S_.vm, S_.fseq, 13, c+1, 0xf, 48, 8, "KB_p2_%d_%d" % (c, svar if qc >= SPLITQ else 9))
            at(qc, pc)
            k = 0
            for st3 in range(3):
                for pr in range(3):
                    for mt in range(2):
                        def ld(a, S_, pr=pr, k9=3*c+st3, mt=mt):
                            r = areg_partner(pr, k9, mt)
                            a("s_add_u32 s60, s%d, %d" % (53+pr, mt*147456 + k9*1024))
                            a("buffer_load_dwordx4 a[%d:%d], v3, s[28:31], s60 offen sc1" % (r, r+3))
                            S_.hld[(pr, k9, mt)] = S_.vm.issue()
                        at(qc + 1 + k, ld); k += 1
        for c2, qe in ((0, 324 + 63*3), (1, 324 + 72*3)):
            k = 0
            for tt in range(3):
                for mt in range(2):
                    tau = 6*c2 + 2*tt + mt
                    if tau % 4 == svar: continue
                    def ps(a, S_, tau=tau, ac=acc2_reg(c2, tt, mt)):
                        a("s_add_u32 s60, s50, %d" % ((tau*4 + svar)*1024))
                        a("buffer_store_dwordx4 v[%d:%d], v3, s[28:31], s60 offen sc1" % (ac, ac+3))
                        S_.pst = S_.vm.issue()
                    at(qe + 1 + k, ps); k += 1
        def fl3(a, S_):
            a("s_waitcnt vmcnt(%d)" % S_.vm.wait_cnt(S_.pst))
            a("v_mov_b32 v9, 1")
            a("s_mov_b64 exec, 1")
            a("buffer_store_dword v9, v10, s[28:31], s52 offen sc1"); S_.vm.issue()
            a("s_mov_b64 exec, -1")
        at(324 + 72*3 + 30, fl3)
        qp, qc = 612, 624
        def pl3(a, S_):
            a("buffer_load_dword v13, v8, s[28:31], s49 offen sc1"); S_.fseq = S_.vm.issue()
        at(qp, pl3)
        def pc3(a, S_):
            poll_check(a, S_.vm, S_.fseq, 13, 1, 0xf, 49, 8, "KB_p3a_%d" % svar)
        at(qc, pc3)
        own = [t for t in range(12) if t % 4 == svar]
        k = 0
        for i, tau in enumerate(own):
            for fn in fin_loads(tau, HO + 16*i, svar):
                at(qc + 1 + k, fn); k += 1
        assert max(tasks) < NF
        return tasks

    def tau_info(tau):
        c2, r = divmod(tau, 6); tt, mt = divmod(r, 2)
        return c2, tt, mt
    def fin_loads(tau, B, svar):
        c2, tt, mt = tau_info(tau)
        fns = []
        srcs = [s_ for s_ in range(4) if s_ != svar]
        for i, s_ in enumerate(srcs):
            def ld(a, S_, i=i, s_=s_):
                a("s_add_u32 s60, s50, %d" % ((tau*4 + s_)*1024))
                a("buffer_load_dwordx4 v[%d:%d], v3, s[28:31], s60 offen sc1" % (B+4*i, B+4*i+3))
                S_.fin[tau] = S_.vm.issue()
            fns.append(ld)
        def ldh(a, S_):
            a("s_add_u32 s60, s57, %d" % (mt*18432 + c2*96 + tt*32))
            a("buffer_load_dwordx2 v[%d:%d], v11, s[28:31], s60 offen sc1" % (B+12, B+13))
            S_.fin[tau] = S_.vm.issue()
        fns.append(ldh)
        return fns
    def fin_math(tau, B, svar):
        c2, tt, mt = tau_info(tau)
        ac = acc2_reg(c2, tt, mt)
        srcs = [s_ for s_ in range(4) if s_ != svar]
        regs = {}
        for i, s_ in enumerate(srcs): regs[s_] = B + 4*i
        regs[svar] = ac
        L = []
        def ins(s): L.append(lambda a, S_, s=s: a(s))
        L.append(lambda a, S_: a("s_waitcnt vmcnt(%d)" % S_.vm.wait_cnt(S_.fin[tau])))
        d = B + 0 if svar != 0 else B + 0
        for h_ in range(2):
            ins("v_pk_add_f32 v[%d:%d], v[%d:%d], v[%d:%d]" % (B+14 if False else ac+2*h_, ac+2*h_+1, regs[0]+2*h_, regs[0]+2*h_+1, regs[1]+2*h_, regs[1]+2*h_+1)) if svar in (0, 1) else \
            ins("v_pk_add_f32 v[%d:%d], v[%d:%d], v[%d:%d]" % (regs[0]+2*h_, regs[0]+2*h_+1, regs[0]+2*h_, regs[0]+2*h_+1, regs[1]+2*h_, regs[1]+2*h_+1))
        cur = ac if svar in (0, 1) else regs[0]
        for s_ in (2, 3):
            for h_ in range(2):
                ins("v_pk_add_f32 v[%d:%d], v[%d:%d], v[%d:%d]" % (cur+2*h_, cur+2*h_+1, cur+2*h_, cur+2*h_+1, regs[s_]+2*h_, regs[s_]+2*h_+1))
        t = B + 14
        for h_ in range(2):
            r = cur + 2*h_
            ins("v_cvt_pk_bf16_f32 v%d, v%d, v%d" % (t, r, r+1))
            ins("v_lshlrev_b32 v%d, 16, v%d" % (r, t))
            ins("v_and_b32 v%d, s43, v%d" % (r+1, t))
            ins("v_lshlrev_b32 v%d, 16, v%d" % (B+4+2*h_, B+12+h_))
            ins("v_and_b32 v%d, s43, v%d" % (B+5+2*h_, B+12+h_))
            ins("v_pk_add_f32 v[%d:%d], v[%d:%d], v[%d:%d]" % (r, r+1, r, r+1, B+4+2*h_, B+5+2*h_))
        for h_ in range(2):
            ins("v_cvt_pk_bf16_f32 v%d, v%d, v%d" % (B+8+h_, cur+2*h_, cur+2*h_+1))
        def st(a, S_):
            a("s_add_u32 s60, s56, %d" % (mt*18432 + c2*96 + tt*32))
            a("buffer_store_dwordx2 v[%d:%d], v11, s[20:23], s60 offen" % (B+8, B+9)); S_.vm.issue()
        L.append(st)
        return L

    SPLITQ = 504
    def run_main(a, S_, q_from, q_to, tasks):
        for q in range(q_from, q_to):
            st, f = divmod(q, 36)
            nb = S_.bar + 1
            if nb < 18 and q == max(0, 36*nb - LB):
                a("s_waitcnt lgkmcnt(0)") if nb > 0 else None
                S_.rd_done = S_.p
                a("s_waitcnt vmcnt(%d)" % min(63, S_.vm.wait_cnt(S_.dseq[nb])))
                a("s_barrier")
                if dbg and nb in (0,): stamp(a, dbg, 4)
                if dbg and nb in (9,): stamp(a, dbg, 5)
                S_.bar = nb
                assert not S_.pend
                if nb + 3 < 18: S_.pend = [(nb+3, i) for i in range(9)]
            nrd = 0
            while S_.p < NF and S_.p <= q + LMAX and S_.p < 36*(S_.bar+1) and nrd < (RING if q == 0 else 2):
                gp = S_.p; r = VB + (gp % RING)*4
                a("ds_read_b128 v[%d:%d], v%d offset:%d" % (r, r+3, 4 + (gp//36) % 4, (gp % 36)*1024))
                S_.p += 1; nrd += 1
            if q >= S_.rd_done:
                need = S_.p - q - 1
                a("s_waitcnt lgkmcnt(%d)" % min(15, need))
                S_.rd_done = q + 1
            if st < 9:
                ks = 6*(st % 3) + f // 6
                if st < 3 and f % 6 == 0:
                    a("s_waitcnt vmcnt(%d)" % min(63, S_.vm.wait_cnt(xn_seq[(ks, 1)])))
            else:
                uu, tt = divmod(q - 324, 3)
                c2, (kind, pr, k9) = units[uu]
                if kind == "p" and tt == 0 and (pr, k9) not in S_.hwaited:
                    S_.hwaited.add((pr, k9))
                    a("s_waitcnt vmcnt(%d)" % min(63, S_.vm.wait_cnt(S_.hld[(pr, k9, 1)])))
            for l in frag_mfmas(q): a(l)
            if S_.pend and (q % 3) == 1:
                stg, i = S_.pend.pop(0)
                S_.dseq[stg] = dma_(a, S_, stg, i)
            for fn in tasks.get(q, []): fn(a, S_)
    def dma_(a, S_, stage, i):
        slot = stage % 4
        a("s_add_u32 m0, s40, %d" % (slot*36864 + i*1024))
        if stage < 9: a("s_add_u32 s44, s41, %d" % (stage*36864 + i*1024))
        else:         a("s_add_u32 s44, s42, %d" % ((stage-9)*36864 + i*1024))
        a("buffer_load_dwordx4 v3, s[28:31], s44 offen lds")
        return S_.vm.issue()

    S0 = S(); S0.vm = vm; S0.bar = -1; S0.p = 0; S0.rd_done = 0; S0.pend = []
    S0.dseq = {0: 0, 1: 0, 2: 0}; S0.hst = {}; S0.hld = {}; S0.hwaited = set(); S0.fin = {}
    run_main(a, S0, 0, SPLITQ, build_tasks(0))
    for svar in range(4):
        if svar: a.label("KB_v%d" % svar)
        if svar < 3:
            a("s_cmp_lg_u32 s32, %d" % svar)
            a("s_cbranch_scc1 KB_v%d" % (svar+1))
        S_ = copy.deepcopy(S0)
        run_main(a, S_, SPLITQ, NF, build_tasks(svar))
        assert not S_.pend
        stamp(a, dbg, 6)
        a("s_nop 7")
        for tau in sorted(range(12, 18), key=lambda t: t):
            if tau % 4 == svar: continue
            c2, tt, mt = tau_info(tau); ac = acc2_reg(c2, tt, mt)
            a("s_add_u32 s60, s50, %d" % ((tau*4 + svar)*1024))
            a("buffer_store_dwordx4 v[%d:%d], v3, s[28:31], s60 offen sc1" % (ac, ac+3)); S_.vm.issue()
        for i, tau in enumerate([t for t in range(12) if t % 4 == svar]):
            for fn in fin_math(tau, HO + 16*i, svar): fn(a, S_)
        a("""
        v_mov_b32 v9, 2
        s_waitcnt vmcnt(0)
        s_mov_b64 exec, 1
        buffer_store_dword v9, v10, s[28:31], s52 offen sc1
        s_mov_b64 exec, -1
        buffer_load_dword v13, v8, s[28:31], s49 offen sc1
        """)
        S_.vm.issue(); seq = S_.vm.issue()
        poll_check(a, S_.vm, seq, 13, 2, 0xf, 49, 8, "KB_p3b_%d" % svar)
        own = [t for t in range(12, 18) if t % 4 == svar]
        for i, tau in enumerate(own):
            for fn in fin_loads(tau, HO + 16*i, svar): fn(a, S_)
        for i, tau in enumerate(own):
            for fn in fin_math(tau, HO + 16*i, svar): fn(a, S_)
        if dbg:
            a("s_waitcnt vmcnt(0)")
            stamp(a, dbg, 7)
            stamp_out(a, dbg, 8, 2, "s[28:31]")
        a("s_endpgm")
    a.label("KB_end")
    a("s_endpgm")
    return dict(name="kb_kernel", grid=256, block=256, lds=KB_LDS, body=a.text(), vgpr=512, sgpr=96, accum=256)

if __name__ == "__main__":
    from gen_front import gen_k1, gen_k2
    hdr = open("sequential_preLN__ssm_conv_h3__dense_activation_relu__prompt.s.ref").read().split("; Override")[0]
    open("full.s", "w").write(make_file([gen_k1(), gen_k2(), gen_kb()], hdr))
    open("full_dbg.s", "w").write(make_file([gen_k1(True), gen_k2(True), gen_kb(True)], hdr))
```

```python
from gen_kb import *
from gen_front import gen_k1, gen_k2
hdr = open("sequential_preLN__ssm_conv_h3__dense_activation_relu__prompt.s.ref").read().split("; Override")[0]
def ek(name):
    return dict(name=name+"_kernel", grid=256, block=256, lds=0, body="  s_endpgm\n", vgpr=16, sgpr=16, accum=16)
k = [gen_k1(), gen_k2(), gen_kb()]
open("varB.s","w").write(make_file(k + [ek("e1")], hdr))
open("varC.s","w").write(make_file(k + [ek("e1"), ek("e2"), ek("e3")], hdr))
open("varD.s","w").write(make_file([ek("e1")] + k, hdr))
open("varE.s","w").write(make_file([k[0], k[1], k[0], k[1], k[2]], hdr))
```

```python
from asmlib import *
from layout import *

def srd(a, dst, ptr, size):
    a("s_mov_b32 s%d, s%d" % (dst, ptr))
    a("s_mov_b32 s%d, s%d" % (dst+1, ptr+1))
    a("s_mov_b32 s%d, 0x%x" % (dst+2, size))
    a("s_mov_b32 s%d, 0x20000" % (dst+3))

def check_magic(mul, sh, div, n):
    for p in range(n):
        assert (p*mul) >> sh == p // div, (p, mul, sh, div)

STAMP = 0x6000000
def stamp(a, dbg, i):
    if dbg: a("s_memrealtime s[%d:%d]" % (64+2*i, 65+2*i))
def stamp_out(a, dbg, n, region, wsrd):
    if not dbg: return
    a("s_waitcnt lgkmcnt(0)")
    for i in range(n): a("v_mov_b32 v%d, s%d" % (8+i, 64+2*i))
    a("s_lshl_b32 s62, s2, %d" % (5 if n <= 8 else 7))
    a("s_add_u32 s62, s62, %d" % (STAMP + region*65536))
    a("v_mov_b32 v7, 0")
    a("v_cmp_eq_u32 vcc, 0, v0")
    a("s_and_saveexec_b64 s[60:61], vcc")
    a("buffer_store_dwordx4 v[8:11], v7, %s, s62 offen" % wsrd)
    for k_ in range(1, (n+3)//4): a("buffer_store_dwordx4 v[%d:%d], v7, %s, s62 offen offset:%d" % (8+4*k_, 11+4*k_, wsrd, 16*k_))

def wave_id(a, sdst, vtmp):
    a("v_lshrrev_b32 v%d, 6, v0" % vtmp)
    a("s_nop 0")
    a("v_readfirstlane_b32 s%d, v%d" % (sdst, vtmp))
    a("s_nop 3")

def gen_k1(dbg=False):
    a = Asm()
    NKV, NPK = 288, 144
    a("s_cmp_ge_u32 s2, %d" % (NKV+NPK))
    a("s_cbranch_scc1 K1_end")
    a("""
    s_load_dwordx4 s[4:7], s[0:1], 8
    s_load_dwordx2 s[8:9], s[0:1], 24
    s_load_dwordx2 s[10:11], s[0:1], 56
    s_load_dwordx2 s[12:13], s[0:1], 88
    s_waitcnt lgkmcnt(0)
    """)
    srd(a, 16, 4, 2359296); srd(a, 20, 6, 2359296); srd(a, 24, 8, 4608); srd(a, 28, 12, WS_SIZE); srd(a, 32, 10, 5308416)
    stamp(a, dbg, 0)
    a("s_cmp_ge_u32 s2, %d" % NKV)
    a("s_cbranch_scc1 K1_pack")
    check_magic(7282, 16, 9, 288)
    a("""
    s_mul_i32 s36, s2, 7282
    s_lshr_b32 s36, s36, 16          ; rb
    s_mul_i32 s37, s36, 9
    s_sub_u32 s37, s2, s37           ; cb
    v_and_b32 v1, 31, v0             ; p
    v_lshrrev_b32 v2, 5, v0          ; rg
    s_lshl_b32 s38, s36, 6           ; 64 rb
    v_lshlrev_b32 v3, 3, v2
    v_add_u32 v3, s38, v3            ; s0
    s_movk_i32 s39, 1152
    v_mul_lo_u32 v4, v3, s39
    s_lshl_b32 s40, s37, 7           ; 128 cb
    v_lshlrev_b32 v5, 2, v1
    v_add3_u32 v4, v4, v5, s40       ; voff0
    v_add_u32 v6, 4608, v4           ; voff4
    v_subrev_u32 v7, 4608, v4        ; voffH
    v_cmp_eq_u32 vcc, 0, v3
    v_mov_b32 v8, 0x80000000
    s_nop 1
    v_cndmask_b32 v7, v7, v8, vcc
    v_lshlrev_b32 v9, 4, v1
    s_lshl_b32 s41, s37, 9           ; 64cb*8
    """)
    a("buffer_load_dwordx4 v[40:43], v9, s[24:27], s41 offen")
    for i in range(4): a("buffer_load_dword v%d, v7, s[16:19], 0 offen offset:%d" % (16+i, i*1152))
    for i in range(4): a("buffer_load_dword v%d, v4, s[16:19], 0 offen offset:%d" % (20+i, i*1152))
    for i in range(4): a("buffer_load_dword v%d, v6, s[16:19], 0 offen offset:%d" % (24+i, i*1152))
    a("buffer_load_dword v28, v7, s[20:23], 0 offen offset:3456")
    for i in range(4): a("buffer_load_dword v%d, v4, s[20:23], 0 offen offset:%d" % (29+i, i*1152))
    for i in range(4): a("buffer_load_dword v%d, v6, s[20:23], 0 offen offset:%d" % (33+i, i*1152))
    a("""
    v_lshlrev_b32 v10, 14, v1        ; 2p*8192
    s_lshl_b32 s42, s37, 19          ; 64cb*8192
    v_lshlrev_b32 v11, 1, v3
    v_sub_u32 v11, 4080, v11
    v_add3_u32 v10, v10, v11, s42
    v_add_u32 v12, 8192, v10
    s_mov_b32 s43, 0xffff0000
    s_waitcnt vmcnt(21)
    """)
    for j in range(4):
        for c in range(2):
            src = 40 + 2*c + (j >> 1)
            if j & 1: a("v_and_b32 v%d, s43, v%d" % (44+2*j+c, src))
            else:     a("v_lshlrev_b32 v%d, 16, v%d" % (44+2*j+c, src))
    a("s_waitcnt vmcnt(9)")
    for i in range(12):
        a("v_lshlrev_b32 v%d, 16, v%d" % (56+2*i, 16+i))
        a("v_and_b32 v%d, s43, v%d" % (57+2*i, 16+i))
    a("s_waitcnt vmcnt(0)")
    stamp(a, dbg, 1)
    for e in range(9):
        a("v_lshlrev_b32 v%d, 16, v%d" % (80+2*e, 28+e))
        a("v_and_b32 v%d, s43, v%d" % (81+2*e, 28+e))
    def rnd(r, t):
        a("v_cvt_pk_bf16_f32 v%d, v%d, v%d" % (t, r, r+1))
        a("v_lshlrev_b32 v%d, 16, v%d" % (r, t))
        a("v_and_b32 v%d, s43, v%d" % (r+1, t))
    for e in range(9):
        P = [120, 122, 124, 126]
        for q in range(4):
            j = 3 - q
            a("v_pk_mul_f32 v[%d:%d], v[%d:%d], v[%d:%d]" % (P[q], P[q]+1, 56+2*(e+q), 57+2*(e+q), 44+2*j, 45+2*j))
        for q in range(4): rnd(P[q], 128+q)
        a("v_pk_add_f32 v[120:121], v[120:121], v[122:123]"); rnd(120, 128)
        a("v_pk_add_f32 v[120:121], v[120:121], v[124:125]"); rnd(120, 128)
        a("v_pk_add_f32 v[120:121], v[120:121], v[126:127]"); rnd(120, 128)
        a("v_pk_mul_f32 v[%d:%d], v[120:121], v[%d:%d]" % (100+2*e, 101+2*e, 80+2*e, 81+2*e))
    for c in range(2):
        for cp in range(2):
            base = 16 + (c*2+cp)*4
            for q in range(4):
                hi_e = (8 if cp else 7) - 2*q
                a("v_cvt_pk_bf16_f32 v%d, v%d, v%d" % (base+q, 100+2*hi_e+c, 100+2*(hi_e-1)+c))
    for c in range(2):
        for cp in range(2):
            base = 16 + (c*2+cp)*4
            a("s_mov_b32 s44, %d" % (UG + cp*4096))
            a("buffer_store_dwordx4 v[%d:%d], v%d, s[28:31], s44 offen" % (base, base+3, 10 if c == 0 else 12))
    stamp(a, dbg, 2)
    if dbg: a("s_waitcnt vmcnt(0)")
    stamp(a, dbg, 3)
    stamp_out(a, dbg, 4, 0, "s[28:31]")
    a("s_endpgm")
    a.label("K1_pack")
    check_magic(7282, 16, 9, 144)
    check_magic(1821, 16, 36, 2304)
    a("""
    s_sub_u32 s36, s2, %d
    s_mul_i32 s37, s36, 7282
    s_lshr_b32 s37, s37, 16          ; j
    s_mul_i32 s38, s37, 9
    s_sub_u32 s38, s36, s38          ; kb
    """ % NKV)
    wave_id(a, 39, 1)
    a("""
    v_and_b32 v2, 63, v0             ; lane
    s_mul_i32 s40, s38, 589824       ; 64*9216*kb
    s_mul_i32 s41, s37, 576
    s_add_u32 s40, s40, s41
    s_mul_i32 s42, s39, 576          ; wave*9*64
    s_mul_i32 s43, s39, 9216
    s_movk_i32 s44, 1821
    s_movk_i32 s45, 9216
    """)
    for i in range(9):
        a("v_add_u32 v3, s42, v2")
        if i: a("v_add_u32 v3, %d, v3" % (64*i))
        a("v_mul_lo_u32 v4, v3, s44")
        a("v_lshrrev_b32 v4, 16, v4")
        a("v_mul_u32_u24 v5, 36, v4")
        a("v_sub_u32 v5, v3, v5")
        a("v_mul_lo_u32 v4, v4, s45")
        a("v_lshl_add_u32 v%d, v5, 4, v4" % (8+i))
        a("s_add_u32 m0, s43, %d" % (1024*i))
        a("s_nop 0")
        a("buffer_load_dwordx4 v%d, s[32:35], s40 offen lds" % (8+i))
    a("""
    v_lshrrev_b32 v3, 4, v2          ; g
    v_bfe_u32 v4, v2, 2, 2           ; r4
    v_lshl_add_u32 v3, v3, 3, v4     ; 8g+r4
    v_mul_u32_u24 v3, 576, v3
    v_and_b32 v4, 3, v2
    v_lshl_add_u32 v3, v4, 3, v3
    s_lshr_b32 s46, s39, 1           ; ksl
    s_and_b32 s47, s39, 1
    s_mul_i32 s48, s46, 18432
    s_mul_i32 s49, s47, 288
    s_add_u32 s48, s48, s49
    v_add_u32 v3, s48, v3
    v_lshlrev_b32 v4, 4, v2          ; lane*16
    s_mul_i32 s50, s37, %d           ; j*SLICE
    s_lshl_b32 s51, s38, 1
    s_add_u32 s51, s51, s46          ; ks
    s_add_u32 s50, s50, %d
    s_mul_i32 s52, s47, 9            ; T0
    s_waitcnt vmcnt(0)
    s_barrier
    """ % (SLICE, W1P))
    stamp(a, dbg, 1)
    for i in range(9):
        a("ds_read_b64_tr_b16 v[%d:%d], v3 offset:%d" % (20+4*i, 21+4*i, 32*i))
        a("ds_read_b64_tr_b16 v[%d:%d], v3 offset:%d" % (22+4*i, 23+4*i, 32*i + 4*576))
    for i in range(9):
        a("s_add_u32 s53, s52, %d" % i)
        a("s_mul_i32 s54, s51, 6")
        a("s_add_u32 s54, s54, s53")
        a("s_lshl_b32 s54, s54, 10")
        a("s_lshr_b32 s55, s53, 1")
        a("s_mul_i32 s55, s55, 36")
        a("s_lshl_b32 s56, s51, 1")
        a("s_add_u32 s55, s55, s56")
        a("s_and_b32 s56, s53, 1")
        a("s_add_u32 s55, s55, s56")
        a("s_lshl_b32 s55, s55, 10")
        a("s_cmp_lt_u32 s53, 6")
        a("s_cselect_b32 s55, s54, s55")
        a("s_add_u32 s55, s55, s50")
        a("s_waitcnt lgkmcnt(%d)" % (16 - 2*i if 16-2*i <= 15 else 15))
        if i == 0: a("s_waitcnt lgkmcnt(15)\n s_waitcnt lgkmcnt(14)")
        a("buffer_store_dwordx4 v[%d:%d], v4, s[28:31], s55 offen sc1" % (20+4*i, 23+4*i))
    stamp(a, dbg, 2)
    if dbg: a("s_waitcnt vmcnt(0)")
    stamp(a, dbg, 3)
    stamp_out(a, dbg, 4, 0, "s[28:31]")
    a.label("K1_end")
    a("s_endpgm")
    return dict(name="k1_kernel", grid=NKV+NPK, block=256, lds=36864, body=a.text(), vgpr=136, sgpr=80, accum=136)

def gen_k2(dbg=False):
    a = Asm()
    NCV, NPK = 192, 144
    a("s_cmp_ge_u32 s2, %d" % (NCV+NPK))
    a("s_cbranch_scc1 K2_end")
    a("""
    s_load_dwordx4 s[4:7], s[0:1], 32
    s_load_dwordx2 s[10:11], s[0:1], 64   ; w2
    s_load_dwordx2 s[12:13], s[0:1], 88
    s_waitcnt lgkmcnt(0)
    """)
    srd(a, 16, 4, 2359296); srd(a, 20, 6, 1152); srd(a, 28, 12, WS_SIZE); srd(a, 32, 10, 5308416)
    stamp(a, dbg, 0)
    wave_id(a, 39, 1)
    a("v_and_b32 v2, 63, v0")
    a("s_cmp_ge_u32 s2, %d" % NCV)
    a("s_cbranch_scc1 K2_pack")
    a("""
    s_mul_i32 s36, s2, 3             ; d0
    v_lshlrev_b32 v3, 4, v2          ; lane*16
    """)
    items = []
    for ch in range(3):
        for cp in range(2):
            for q in range(4):
                items.append(("u", ch, cp, q))
        for cpy in range(4):
            for q in range(4):
                items.append(("k", ch, cpy, q))
    for w in range(4):
        a.label("K2_ld%d" % w) if w else None
        if w < 3:
            a("s_cmp_lg_u32 s39, %d" % w)
            a("s_cbranch_scc1 K2_ld%d" % (w+1))
        for (kind, ch, cp, q) in items[w::4]:
            if kind == "u":
                lds = ch*CH_BYTES + 4*KC_STRIDE + cp*UC_STRIDE + q*1024
                a("s_add_u32 s40, s36, %d" % ch)
                a("s_lshl_b32 s40, s40, 13")
                a("s_add_u32 s40, s40, %d" % (UG + cp*4096 + q*1024))
                a("s_mov_b32 m0, %d" % lds)
                a("s_nop 0")
                a("buffer_load_dwordx4 v3, s[28:31], s40 offen lds")
            else:
                lds = ch*CH_BYTES + cp*KC_STRIDE + 64 + q*1024
                a("s_add_u32 s40, s36, %d" % ch)
                a("s_lshl_b32 s40, s40, 12")
                a("s_add_u32 s40, s40, %d" % (4 + 4*cp + q*1024))
                a("s_mov_b32 m0, %d" % lds)
                a("s_nop 0")
                a("buffer_load_dwordx4 v3, s[16:19], s40 offen lds")
        if w < 3:
            ch = w
            a("""
            v_lshrrev_b32 v4, 4, v2          ; a
            v_and_b32 v5, 15, v2             ; dw
            v_add_u32 v6, v4, v5
            v_subrev_u32 v6, 15, v6          ; dw-15+a
            v_lshlrev_b32 v7, 2, v6
            v_cmp_gt_i32 vcc, 0, v6
            v_mov_b32 v8, 0x80000000
            s_nop 1
            v_cndmask_b32 v7, v7, v8, vcc
            s_add_u32 s40, s36, %d
            s_lshl_b32 s40, s40, 12
            buffer_load_dword v9, v7, s[16:19], s40 offen
            v_mul_u32_u24 v4, %d, v4
            v_lshl_add_u32 v4, v5, 2, v4
            v_mov_b32 v10, 0
            v_mov_b32 v11, 0
            v_lshlrev_b32 v12, 3, v2
            v_add_u32 v12, %d, v12
            v_cmp_gt_u32 vcc, 56, v2
            s_and_saveexec_b64 s[44:45], vcc
            ds_write_b64 v12, v[10:11] offset:%d
            ds_write_b64 v12, v[10:11] offset:%d
            s_mov_b64 exec, s[44:45]
            s_waitcnt vmcnt(0)
            ds_write_b32 v4, v9 offset:%d
            """ % (ch, KC_STRIDE, 4*KC_STRIDE, ch*CH_BYTES + 4096, ch*CH_BYTES + UC_STRIDE + 4096, ch*CH_BYTES))
            a("s_branch K2_ldd")
    a.label("K2_ldd")
    a("""
    v_and_b32 v4, 15, v2             ; i16
    v_lshrrev_b32 v5, 4, v2          ; g
    v_and_b32 v6, 3, v4              ; a_lo
    v_lshrrev_b32 v7, 2, v4          ; a_hi
    v_sub_u32 v7, v7, v5
    v_lshlrev_b32 v7, 4, v7
    v_add_u32 v7, 48, v7
    v_mul_u32_u24 v6, %d, v6
    v_add_u32 v20, v6, v7            ; K lane addr
    v_and_b32 v6, 1, v4              ; b_lo
    v_lshrrev_b32 v7, 1, v4          ; b_hi
    v_lshlrev_b32 v7, 6, v7
    v_lshl_add_u32 v7, v5, 4, v7
    v_sub_u32 v7, %d, v7
    v_mul_u32_u24 v6, %d, v6
    v_add_u32 v21, v6, v7            ; U lane addr
    """ % (KC_STRIDE, 496 + 4*KC_STRIDE, UC_STRIDE))
    for r in range(64): a("v_mov_b32 v%d, 0" % (160+r))
    a("s_waitcnt vmcnt(0) lgkmcnt(0)")
    a("s_barrier")
    stamp(a, dbg, 1)
    RED = 3*CH_BYTES
    units_of = {0: [(0,p) for p in range(6)], 1: [(0,6),(0,7)]+[(1,p) for p in range(4)],
                2: [(1,p) for p in range(4,8)]+[(2,0),(2,1)], 3: [(2,p) for p in range(2,8)]}
    setid = {0: {0:0}, 1: {0:1, 1:2}, 2: {1:3, 2:4}, 3: {2:5}}
    for w in range(4):
        if w: a.label("K2_mm%d" % w)
        if w < 3:
            a("s_cmp_lg_u32 s39, %d" % w)
            a("s_cbranch_scc1 K2_mm%d" % (w+1))
        units = units_of[w]
        chs = sorted(set(c for c,_ in units))
        accbase = {c: 160 + 32*i for i, c in enumerate(chs)}
        def reads(ui):
            ch, phi = units[ui]
            fb = 32 + 64*(ui & 1)
            out = []
            for n in range(8):
                out.append("ds_read_b128 v[%d:%d], v21 offset:%d" % (fb+32+4*n, fb+35+4*n, ch*CH_BYTES + 3584 - 512*n + 64*phi))
                out.append("ds_read_b128 v[%d:%d], v20 offset:%d" % (fb+4*n, fb+3+4*n, ch*CH_BYTES + 512*n + 64*phi))
            return out
        for l in reads(0): a(l)
        for ui, (ch, phi) in enumerate(units):
            fb = 32 + 64*(ui & 1)
            nxt = reads(ui+1) if ui+1 < len(units) else []
            a("s_waitcnt lgkmcnt(0)")
            k = 0
            for t in range(8):
                for ap in range(t+1):
                    ac = accbase[ch] + 4*t
                    j = t - ap
                    a("v_mfma_f32_16x16x32_bf16 v[%d:%d], v[%d:%d], v[%d:%d], v[%d:%d]" % (ac, ac+3, fb+32+4*j, fb+35+4*j, fb+4*ap, fb+3+4*ap, ac, ac+3))
                    k += 1
                    if k % 2 == 0 and nxt: a(nxt.pop(0))
            assert not nxt
        a("s_nop 7\n s_nop 7")
        a("""
        v_lshlrev_b32 v6, 8, v5          ; 64g*4
        v_lshl_add_u32 v6, v4, 3, v6     ; + 2*i16*4
        """)
        for c in chs:
            slot = setid[w][c]
            a("v_add_u32 v7, %d, v6" % (RED + slot*8192))
            for t in range(8):
                ac = accbase[c] + 4*t
                a("ds_write_b64 v7, v[%d:%d] offset:%d" % (ac, ac+1, 1024*t))
                a("ds_write_b64 v7, v[%d:%d] offset:%d" % (ac+2, ac+3, 1024*t + 128))
        if w < 3: a("s_branch K2_mmd")
    a.label("K2_mmd")
    stamp(a, dbg, 2)
    a("""
    s_lshl_b32 s40, s36, 1
    v_mov_b32 v8, 0
    buffer_load_ushort v24, v8, s[20:23], s40 offen
    buffer_load_ushort v25, v8, s[20:23], s40 offen offset:2
    buffer_load_ushort v26, v8, s[20:23], s40 offen offset:4
    s_mov_b32 s43, 0xffff0000
    v_lshlrev_b32 v9, 5, v0          ; tid*32 : 8 fp32 outputs
    v_lshlrev_b32 v10, 4, v0         ; tid*16
    v_sub_u32 v11, %d, v10         ; U copy1 byte offset: y0 = 2040 - s0 -> *2
    s_waitcnt lgkmcnt(0)
    s_barrier
    """ % (4080 + 4*KC_STRIDE))
    for c in range(3):
        b = 32 + 24*c
        a("v_add_u32 v12, %d, v9" % (RED + 2*c*8192))
        a("ds_read_b128 v[%d:%d], v12" % (b, b+3))
        a("ds_read_b128 v[%d:%d], v12 offset:16" % (b+4, b+7))
        a("ds_read_b128 v[%d:%d], v12 offset:8192" % (b+8, b+11))
        a("ds_read_b128 v[%d:%d], v12 offset:8208" % (b+12, b+15))
        a("ds_read_b128 v[%d:%d], v11 offset:%d" % (b+16, b+19, c*CH_BYTES + UC_STRIDE))
    a("s_waitcnt vmcnt(0)")
    for c in range(3): a("v_lshlrev_b32 v%d, 16, v%d" % (24+c, 24+c))
    a("s_waitcnt lgkmcnt(0)")
    for c in range(3):
        b = 32 + 24*c
        for e in range(0, 8, 2):
            a("v_pk_add_f32 v[%d:%d], v[%d:%d], v[%d:%d]" % (b+e, b+e+1, b+e, b+e+1, b+8+e, b+9+e))
        for e in range(0, 8, 2):
            a("v_cvt_pk_bf16_f32 v%d, v%d, v%d" % (b+8, b+e, b+e+1))
            a("v_lshlrev_b32 v%d, 16, v%d" % (b+e, b+8))
            a("v_and_b32 v%d, s43, v%d" % (b+e+1, b+8))
        for q in range(4):
            e_hi = 7 - 2*q
            a("v_lshlrev_b32 v%d, 16, v%d" % (b+8+e_hi, b+16+q))
            a("v_and_b32 v%d, s43, v%d" % (b+8+e_hi-1, b+16+q))
        for e in range(8):
            a("v_mul_f32 v%d, v%d, v%d" % (b+8+e, b+8+e, 24+c))
        for e in range(0, 8, 2):
            a("v_cvt_pk_bf16_f32 v%d, v%d, v%d" % (b+16, b+8+e, b+9+e))
            a("v_lshlrev_b32 v%d, 16, v%d" % (b+8+e, b+16))
            a("v_and_b32 v%d, s43, v%d" % (b+9+e, b+16))
        for e in range(0, 8, 2):
            a("v_pk_add_f32 v[%d:%d], v[%d:%d], v[%d:%d]" % (b+e, b+e+1, b+e, b+e+1, b+8+e, b+9+e))
        for e in range(0, 8, 2):
            a("v_cvt_pk_bf16_f32 v%d, v%d, v%d" % (b+16+e//2, b+e, b+e+1))
        a("s_add_u32 s40, s36, %d" % c)
        a("s_lshl_b32 s40, s40, 12")
        a("s_add_u32 s40, s40, %d" % ZT)
        a("buffer_store_dwordx4 v[%d:%d], v10, s[28:31], s40 offen sc1" % (b+16, b+19))
    stamp(a, dbg, 3)
    if dbg: a("s_waitcnt vmcnt(0)")
    stamp(a, dbg, 4)
    stamp_out(a, dbg, 5, 1, "s[28:31]")
    a("s_endpgm")
    a.label("K2_pack")
    check_magic(1821, 16, 36, 144)
    check_magic(7282, 16, 9, 36)
    check_magic(86, 8, 3, 9)
    a("""
    s_sub_u32 s36, s2, %d            ; kk
    v_lshlrev_b32 v4, 4, v2          ; lane*16
    s_mul_i32 s40, s36, 36864
    s_mul_i32 s43, s39, 9216
    s_add_u32 s40, s40, s43
    """ % NCV)
    for i in range(9):
        a("s_add_u32 m0, s43, %d" % (1024*i))
        a("s_add_u32 s41, s40, %d" % (1024*i))
        a("buffer_load_dwordx4 v4, s[32:35], s41 offen lds")
    a("""
    v_mov_b32 v8, 0
    v_mov_b32 v9, 0
    v_lshlrev_b32 v10, 1, v0
    s_lshl_b32 s41, s36, 9
    s_add_u32 s41, s41, %d
    v_lshlrev_b32 v10, 1, v0
    buffer_store_short v8, v10, s[28:31], s41 offen sc1
    """ % FLAGS)
    a("""
    s_mul_i32 s44, s36, 1821
    s_lshr_b32 s44, s44, 16          ; s
    s_mul_i32 s45, s44, 36
    s_sub_u32 s45, s36, s45          ; kk%%36
    s_mul_i32 s46, s45, 7282
    s_lshr_b32 s46, s46, 16          ; nb
    s_mul_i32 s47, s46, 9
    s_sub_u32 s47, s45, s47          ; k9 = kk%%9
    s_mul_i32 s48, s47, 86
    s_lshr_b32 s48, s48, 8           ; ch (0..2)
    s_mul_i32 s49, s48, 3
    s_sub_u32 s49, s47, s49          ; st
    s_sub_u32 s50, s46, s39
    s_sub_u32 s50, s50, 1
    s_and_b32 s50, s50, 3            ; pr (3 == own)
    s_mul_i32 s51, s47, 3
    s_add_u32 s51, s51, s50          ; i = 3*k9 + pr
    s_add_u32 s54, s51, 27           ; early c2=0
    s_add_u32 s55, s51, 45           ; early c2=1
    s_add_u32 s57, s51, 45           ; late c2=0: 63 + (i-18)
    s_add_u32 s58, s51, 54           ; late c2=1: 72 + (i-18)
    s_cmp_ge_u32 s47, 6
    s_cselect_b32 s54, s57, s54
    s_cselect_b32 s55, s58, s55
    s_add_u32 s56, s51, 81
    s_add_u32 s57, s47, 9
    s_add_u32 s58, s47, 18
    s_cmp_eq_u32 s50, 3
    s_cselect_b32 s54, s47, s54
    s_cselect_b32 s55, s57, s55
    s_cselect_b32 s56, s58, s56
    s_lshl_b32 s60, s44, 2
    s_add_u32 s60, s60, s39
    s_mul_i32 s60, s60, %d
    s_add_u32 s60, s60, %d
    s_mul_i32 s54, s54, 3072
    s_mul_i32 s55, s55, 3072
    s_mul_i32 s56, s56, 3072
    s_add_u32 s54, s54, s60
    s_add_u32 s55, s55, s60
    s_add_u32 s56, s56, s60
    v_lshrrev_b32 v3, 4, v2          ; g
    v_bfe_u32 v5, v2, 2, 2           ; r4
    v_lshl_add_u32 v3, v3, 2, v5     ; 4g+r4
    v_mul_u32_u24 v3, 1152, v3
    v_and_b32 v5, 3, v2
    v_lshl_add_u32 v3, v5, 3, v3
    s_mul_i32 s61, s39, 288
    v_add_u32 v3, s61, v3
    s_waitcnt vmcnt(0)
    s_barrier
    """ % (SLICE, W2P))
    stamp(a, dbg, 1)
    for i in range(9):
        a("ds_read_b64_tr_b16 v[%d:%d], v3 offset:%d" % (20+4*i, 21+4*i, 32*i))
        a("ds_read_b64_tr_b16 v[%d:%d], v3 offset:%d" % (22+4*i, 23+4*i, 32*i + 16*1152))
    for i in range(9):
        a("s_waitcnt lgkmcnt(%d)" % min(15, 16 - 2*i))
        if i == 0: a("s_waitcnt lgkmcnt(14)")
        a("buffer_store_dwordx4 v[%d:%d], v4, s[28:31], s%d offen offset:%d sc1" % (20+4*i, 23+4*i, 54 + i//3, (i%3)*1024))
    stamp(a, dbg, 2)
    stamp(a, dbg, 3)
    if dbg: a("s_waitcnt vmcnt(0)")
    stamp(a, dbg, 4)
    stamp_out(a, dbg, 5, 1, "s[28:31]")
    a.label("K2_end")
    a("s_endpgm")
    lds = 3*CH_BYTES + 6*8192
    return dict(name="k2_kernel", grid=NCV+NPK, block=256, lds=lds, body=a.text(), vgpr=224, sgpr=80, accum=224)

if __name__ == "__main__":
    open("front.s", "w").write(make_file([gen_k1(), gen_k2()]))
    open("front_dbg.s", "w").write(make_file([gen_k1(True), gen_k2(True)]))
```

```python
import os
BASE = int(os.environ.get('WSBASE', '0'), 0)
UG    = BASE + 0x0000000
ZT    = BASE + 0x0500000
W1P   = BASE + 0x0800000
W2P   = BASE + 0x0E00000
XNF   = BASE + 0x1400000
HB    = BASE + 0x1700000
HF    = BASE + 0x1A00000
PART  = BASE + 0x3000000
FLAGS = BASE + 0x5000000
FLAG_BYTES = 576*128
WS_SIZE = 0x10000000
SLICE = 331776
KC_STRIDE = 4160
UC_STRIDE = 4576
CH_BYTES = 4*KC_STRIDE + 2*UC_STRIDE
HFS = 147456 + 1280
```

```python
import copy
from asmlib import *
from layout import *
from gen_front import srd, check_magic, wave_id, stamp, stamp_out

ZL = 147456
RS = ZL + 9216
KB_LDS = RS + 512
F1 = FLAGS
F2 = FLAGS + 64*128
F3 = FLAGS + 320*128
RING = 16; VB = 16
HO = 80
ACC = [152, 200]
SPIN_MAX = 20000

class VM:
    def __init__(self): self.n = 0
    def issue(self): self.n += 1; return self.n
    def wait_cnt(self, seq): return self.n - seq

def order_units():
    O = [("o", 0, x) for x in range(9)]
    Pe = [("p", pr, k9) for k9 in range(6) for pr in range(3)]
    Pl = [("p", pr, k9) for k9 in range(6, 9) for pr in range(3)]
    seq = [(0,O),(1,O),(2,O),(0,Pe),(1,Pe),(0,Pl),(1,Pl),(2,Pe),(2,Pl)]
    return [(c2, u) for c2, L in seq for u in L]

def areg_partner(pr, k9, mt):
    i = 3*k9 + pr
    base = 144 + 8*i if i < 14 else 8*(i-14)
    return base + 4*mt

def acc2_reg(c2, tt, mt):
    base = {0: ACC[0], 1: ACC[0]+24, 2: ACC[1]+24}[c2]
    return base + (tt*2+mt)*4

def acc1_reg(T, mt):
    if T < 6: return ACC[0] + (T*2+mt)*4
    return ACC[1] + 16*((T >> 1) & 1) + ((T & 1)*2+mt)*4

def rnd_pair(a, r, t):
    a("v_cvt_pk_bf16_f32 v%d, v%d, v%d" % (t, r, r+1))
    a("v_lshlrev_b32 v%d, 16, v%d" % (r, t))
    a("v_and_b32 v%d, s43, v%d" % (r+1, t))

def rnd1(a, r):
    a("v_cvt_pk_bf16_f32 v%d, v%d, v%d" % (r, r, r))
    a("v_lshlrev_b32 v%d, 16, v%d" % (r, r))

def ln_stats(a, V, T, rnd_idx):
    a("v_pk_add_f32 v[%d:%d], v[%d:%d], v[%d:%d]" % (T, T+1, V, V+1, V+2, V+3))
    a("v_pk_add_f32 v[%d:%d], v[%d:%d], v[%d:%d]" % (T+2, T+3, V+4, V+5, V+6, V+7))
    for i in range(8, 24, 4):
        a("v_pk_add_f32 v[%d:%d], v[%d:%d], v[%d:%d]" % (T, T+1, T, T+1, V+i, V+i+1))
        a("v_pk_add_f32 v[%d:%d], v[%d:%d], v[%d:%d]" % (T+2, T+3, T+2, T+3, V+i+2, V+i+3))
    a("v_pk_add_f32 v[%d:%d], v[%d:%d], v[%d:%d]" % (T, T+1, T, T+1, T+2, T+3))
    a("v_add_f32 v%d, v%d, v%d" % (T, T, T+1))
    a("v_mul_f32 v%d, 0x3d2aaaab, v%d" % (T+4, T))
    for i in range(24):
        a("v_sub_f32 v%d, v%d, v%d" % (T+10+(i&3), V+i, T+4))
        if i < 4: a("v_mul_f32 v%d, v%d, v%d" % (T+6+i, T+10+i, T+10+i))
        else:     a("v_fmac_f32 v%d, v%d, v%d" % (T+6+(i&3), T+10+(i&3), T+10+(i&3)))
    a("v_add_f32 v%d, v%d, v%d" % (T+6, T+6, T+7))
    a("v_add_f32 v%d, v%d, v%d" % (T+8, T+8, T+9))
    a("v_add_f32 v%d, v%d, v%d" % (T+5, T+6, T+8))
    m, M2 = T+4, T+5
    def merge(am, bm, aM, bM, half_n):
        a("v_sub_f32 v%d, v%d, v%d" % (T+10, am, bm))
        a("v_add_f32 v%d, v%d, v%d" % (m, am, bm))
        a("v_add_f32 v%d, v%d, v%d" % (M2, aM, bM))
        a("v_mul_f32 v%d, v%d, v%d" % (T+10, T+10, T+10))
        a("v_mul_f32 v%d, 0.5, v%d" % (m, m))
        a("v_fmac_f32 v%d, %s, v%d" % (M2, half_n, T+10))
    a("s_nop 1")
    a("v_mov_b32_dpp v%d, v%d row_ror:8 row_mask:0xf bank_mask:0xf" % (T+6, m))
    a("v_mov_b32_dpp v%d, v%d row_ror:8 row_mask:0xf bank_mask:0xf" % (T+7, M2))
    merge(m, T+6, M2, T+7, "0x41400000")
    for op, hn in (("v_permlane16_swap_b32", "0x41c00000"), ("v_permlane32_swap_b32", "0x42400000")):
        a("v_mov_b32 v%d, v%d" % (T+6, m)); a("v_mov_b32 v%d, v%d" % (T+7, m))
        a("v_mov_b32 v%d, v%d" % (T+8, M2)); a("v_mov_b32 v%d, v%d" % (T+9, M2))
        a("s_nop 1")
        a("%s v%d, v%d" % (op, T+6, T+7))
        a("%s v%d, v%d" % (op, T+8, T+9))
        a("s_nop 1")
        merge(T+6, T+7, T+8, T+9, hn)
    a("ds_write_b64 v11, v[%d:%d] offset:%d" % (m, M2, rnd_idx*192))
    a("s_waitcnt lgkmcnt(0)")
    a("s_barrier")
    for w in range(3):
        a("ds_read_b64 v[%d:%d], v12 offset:%d" % (T+6+2*w, T+7+2*w, rnd_idx*192 + w*64))
    a("s_waitcnt lgkmcnt(0)")
    a("v_add_f32 v%d, v%d, v%d" % (m, T+6, T+8))
    a("v_add_f32 v%d, v%d, v%d" % (M2, T+7, T+9))
    a("v_add_f32 v%d, v%d, v%d" % (m, m, T+10))
    a("v_add_f32 v%d, v%d, v%d" % (M2, M2, T+11))
    a("v_mul_f32 v%d, 0x3eaaaaab, v%d" % (m, m))
    a("v_sub_f32 v%d, v%d, v%d" % (T+6, T+6, m))
    a("v_sub_f32 v%d, v%d, v%d" % (T+8, T+8, m))
    a("v_sub_f32 v%d, v%d, v%d" % (T+10, T+10, m))
    a("v_mul_f32 v%d, v%d, v%d" % (T+6, T+6, T+6))
    a("v_fmac_f32 v%d, v%d, v%d" % (T+6, T+8, T+8))
    a("v_fmac_f32 v%d, v%d, v%d" % (T+6, T+10, T+10))
    a("v_fmac_f32 v%d, 0x43400000, v%d" % (M2, T+6))
    a("v_mul_f32 v%d, 0x3ae38e39, v%d" % (M2, M2))
    rnd1(a, m); rnd1(a, M2)
    a("v_add_f32 v%d, 0x3727c5ac, v%d" % (M2, M2))
    rnd1(a, M2)
    a("v_sqrt_f32 v%d, v%d" % (M2, M2))
    a("s_nop 0")
    rnd1(a, M2)
    a("v_rcp_f32 v%d, v%d" % (T+2, M2))
    a("v_sub_f32 v%d, 0, v%d" % (T, m))
    a("v_sub_f32 v%d, 0, v%d" % (T+1, m))
    a("s_nop 0")
    a("v_mov_b32 v%d, v%d" % (T+3, T+2))

def poll_check(a, vm, seq, vflag, needed, mask, soff, vaddr, lab):
    a("s_waitcnt vmcnt(%d)" % vm.wait_cnt(seq))
    a("s_mov_b32 s58, 0")
    a.label(lab + "_chk")
    a("v_cmp_le_u32 vcc, %d, v%d" % (needed, vflag))
    a("s_nop 1")
    a("s_and_b32 s59, vcc_lo, 0x%x" % mask)
    a("s_cmp_eq_u32 s59, 0x%x" % mask)
    a("s_cbranch_scc1 %s_ok" % lab)
    a("s_add_u32 s58, s58, 1")
    a("s_cmp_gt_u32 s58, %d" % SPIN_MAX)
    a("s_cbranch_scc1 %s_ok" % lab)
    a("s_sleep 1")
    a("buffer_load_dword v%d, v%d, s[28:31], s%d offen sc1" % (vflag, vaddr, soff))
    a("s_waitcnt vmcnt(0)")
    a("s_branch %s_chk" % lab)
    a.label(lab + "_ok")

def gen_kb(dbg=False, LMAX=12, LB=6, sdbg=False, qst=None, hsc='sc1', hlc='sc1', exp=0, FLAGD=(36, 36), CHKD=25, POLLS=((208, 3, 0, 9), (272, 5, 9, 15), (340, 7, 15, 21), (410, 9, 21, 27)), DSP=4, VPS=2, SSP=10, PSP=5, verbose=False, touch=False):
    a = Asm()
    vm = VM()
    a("s_cmp_ge_u32 s2, 256")
    a("s_cbranch_scc1 KB_end")
    a("""
    s_load_dwordx2 s[4:5], s[0:1], 0
    s_load_dwordx2 s[6:7], s[0:1], 72
    s_load_dwordx2 s[12:13], s[0:1], 88
    s_waitcnt lgkmcnt(0)
    """)
    srd(a, 16, 4, 2359296); srd(a, 20, 6, 2359296); srd(a, 28, 12, WS_SIZE)
    stamp(a, dbg, 0)
    wave_id(a, 39, 1)
    a("""
    s_and_b32 s32, s2, 3             ; s
    s_lshr_b32 s33, s2, 3            ; q
    s_and_b32 s34, s33, 3            ; n
    s_lshr_b32 s35, s33, 2
    s_bfe_u32 s36, s2, 0x10002       ; (b>>2)&1
    s_lshl_b32 s36, s36, 3
    s_add_u32 s35, s35, s36          ; m
    s_lshl_b32 s36, s32, 2
    s_add_u32 s36, s36, s34          ; j
    s_lshl_b32 s37, s35, 7
    s_lshl_b32 s38, s36, 3
    s_add_u32 s37, s37, s38          ; R0
    s_mov_b32 s43, 0xffff0000
    v_and_b32 v2, 63, v0             ; lane
    v_lshlrev_b32 v3, 4, v2          ; lane*16
    s_mul_i32 s40, s39, 9216         ; wave offset within stage (lds + global)
    s_mul_i32 s41, s36, %d
    s_add_u32 s41, s41, s40
    s_add_u32 s41, s41, %d           ; W1P global base for this wave
    s_add_u32 s42, s41, %d           ; W2P global base for this wave
    """ % (SLICE, W1P, W2P - W1P))
    for sl in range(4): a("v_add_u32 v%d, %d, v3" % (4+sl, sl*36864))
    def dma(stage, i):
        slot = stage % 4
        a("s_add_u32 m0, s40, %d" % (slot*36864 + i*1024))
        if stage < 9: a("s_add_u32 s44, s41, %d" % (stage*36864 + i*1024))
        else:         a("s_add_u32 s44, s42, %d" % ((stage-9)*36864 + i*1024))
        a("buffer_load_dwordx4 v3, s[28:31], s44 offen lds")
        return vm.issue()
    if touch:
        a("""
        s_lshl_b32 s45, s35, 2
        s_add_u32 s45, s45, s39
        s_mul_i32 s46, s45, %d
        s_add_u32 s46, s46, %d
        s_mul_i32 s47, s32, 36864
        s_add_u32 s46, s46, s47
        v_lshlrev_b32 v8, 9, v2
        buffer_load_dword v240, v8, s[28:31], s46 offen
        s_add_u32 s46, s46, %d
        buffer_load_dword v241, v8, s[28:31], s46 offen
        s_lshl_b32 s45, s35, 2
        s_add_u32 s45, s45, s34
        s_lshl_b32 s45, s45, 2
        s_add_u32 s45, s45, s39
        s_mul_i32 s46, s45, 73728
        s_add_u32 s46, s46, %d
        v_lshlrev_b32 v8, 10, v2
        buffer_load_dword v242, v8, s[28:31], s46 offen
        s_mul_i32 s46, s37, 1152
        v_mov_b32 v8, 0
        buffer_load_dword v243, v8, s[20:23], s46 offen
        """ % (2*HFS, HF, HFS, PART))
        for _ in range(4): vm.issue()
    a("s_cmp_eq_u32 s39, 3")
    a("s_cbranch_scc1 KB_w3")
    vm3 = VM()
    a("""
    v_lshlrev_b32 v8, 12, v2         ; lane*4096
    s_mul_i32 s44, s39, 786432       ; 3w * 262144
    s_lshl_b32 s45, s37, 1
    s_add_u32 s44, s44, s45
    s_add_u32 s44, s44, %d
    s_mul_i32 s45, s39, 3072
    v_and_b32 v9, 7, v2              ; r
    v_lshrrev_b32 v10, 3, v2         ; l>>3
    v_mul_u32_u24 v13, 1152, v9
    v_lshl_add_u32 v13, v10, 4, v13  ; x voffset
    s_mul_i32 s46, s37, 1152
    s_mul_i32 s47, s39, 384
    s_add_u32 s46, s46, s47          ; x soffset (it=0)
    """ % ZT)
    for it in range(3):
        a("s_add_u32 m0, s45, %d" % (ZL + it*1024))
        a("s_add_u32 s47, s44, %d" % (it*262144))
        a("buffer_load_dwordx4 v8, s[28:31], s47 offen lds")
        zseq = vm.issue()
    for it in range(3):
        a("buffer_load_dwordx4 v[%d:%d], v13, s[16:19], s46 offen offset:%d" % (16+4*it, 19+4*it, it*128))
        xseq = vm.issue()
    for st in range(3):
        for i in range(9): dma(st, i)
    a("""
    v_lshlrev_b32 v12, 3, v9         ; r*8
    v_add_u32 v12, %d, v12
    s_lshl_b32 s47, s39, 6
    v_add_u32 v11, s47, v12          ; r*8 + w*64
    v_lshrrev_b32 v14, 4, v2         ; G
    v_lshlrev_b32 v14, 8, v14
    v_bfe_u32 v15, v2, 1, 1          ; c>>1
    v_lshl_add_u32 v14, v15, 7, v14
    v_bfe_u32 v15, v2, 2, 2          ; r4
    v_lshl_add_u32 v14, v15, 4, v14
    v_and_b32 v15, 1, v2
    v_lshl_add_u32 v14, v15, 3, v14
    v_add_u32 v14, s45, v14
    v_add_u32 v14, %d, v14           ; tr read addr (it=0)
    """ % (RS, ZL))
    a("s_waitcnt vmcnt(%d)" % vm.wait_cnt(xseq))
    stamp(a, dbg, 1)
    for it in range(3):
        a("ds_read_b64_tr_b16 v[%d:%d], v14 offset:%d" % (28+4*it, 29+4*it, it*1024))
        a("ds_read_b64_tr_b16 v[%d:%d], v14 offset:%d" % (30+4*it, 31+4*it, it*1024 + 64))
    X = 40
    for i in range(12):
        a("v_lshlrev_b32 v%d, 16, v%d" % (X+2*i, 16+i))
        a("v_and_b32 v%d, s43, v%d" % (X+2*i+1, 16+i))
    T = 100
    ln_stats(a, X, T, 0)
    Hh = 64
    for i in range(12):
        d = 120
        a("v_pk_add_f32 v[%d:%d], v[%d:%d], v[%d:%d]" % (d, d+1, X+2*i, X+2*i+1, T, T+1)); rnd_pair(a, d, d+4)
        a("v_pk_mul_f32 v[%d:%d], v[%d:%d], v[%d:%d]" % (d, d+1, d, d+1, T+2, T+3)); rnd_pair(a, d, d+4)
        a("v_lshlrev_b32 v%d, 16, v%d" % (d+2, 28+i))
        a("v_and_b32 v%d, s43, v%d" % (d+3, 28+i))
        a("v_pk_mul_f32 v[%d:%d], v[%d:%d], v[%d:%d]" % (d, d+1, d, d+1, d+2, d+3)); rnd_pair(a, d, d+4)
        a("v_pk_add_f32 v[%d:%d], v[%d:%d], v[%d:%d]" % (Hh+2*i, Hh+2*i+1, X+2*i, X+2*i+1, d, d+1)); rnd_pair(a, Hh+2*i, 16+i)
    a("s_add_u32 s47, s46, %d" % HB)
    for it in range(3):
        a("buffer_store_dwordx4 v[%d:%d], v13, s[28:31], s47 offen offset:%d sc1" % (16+4*it, 19+4*it, it*128)); vm.issue()
    ln_stats(a, Hh, T, 1)
    for i in range(12):
        d = 120
        a("v_pk_add_f32 v[%d:%d], v[%d:%d], v[%d:%d]" % (d, d+1, Hh+2*i, Hh+2*i+1, T, T+1)); rnd_pair(a, d, d+4)
        a("v_pk_mul_f32 v[%d:%d], v[%d:%d], v[%d:%d]" % (d, d+1, d, d+1, T+2, T+3))
        a("v_cvt_pk_bf16_f32 v%d, v%d, v%d" % (28+i, d, d+1))
    a("""
    v_lshrrev_b32 v8, 5, v2
    v_lshlrev_b32 v8, 10, v8
    v_bfe_u32 v15, v2, 3, 2
    v_lshl_add_u32 v8, v15, 8, v8
    v_lshl_add_u32 v8, v9, 4, v8     ; xn voffset
    s_lshr_b32 s47, s37, 4           ; mt_g
    s_mul_i32 s47, s47, 18
    s_mul_i32 s48, s39, 6
    s_add_u32 s47, s47, s48
    s_lshl_b32 s47, s47, 10
    s_and_b32 s48, s36, 1
    s_lshl_b32 s48, s48, 7
    s_add_u32 s47, s47, s48
    s_add_u32 s47, s47, %d
    """ % XNF)
    for it in range(3):
        if it == 2: a("s_add_u32 s47, s47, 4096")
        a("buffer_store_dwordx4 v[%d:%d], v8, s[28:31], s47 offen offset:%d sc1" % (28+4*it, 31+4*it, (it*2048) % 4096)); vm.issue()
    a("""
    s_lshl_b32 s47, s35, 2
    s_add_u32 s47, s47, s32
    s_lshl_b32 s47, s47, 7
    s_lshl_b32 s48, s34, 4
    s_add_u32 s47, s47, s48
    s_lshl_b32 s48, s39, 2
    s_add_u32 s47, s47, s48
    s_add_u32 s47, s47, %d
    v_mov_b32 v8, 0
    v_mov_b32 v9, 1
    s_waitcnt vmcnt(0)
    s_mov_b64 exec, 1
    buffer_store_dword v9, v8, s[28:31], s47 offen sc1
    s_mov_b64 exec, -1
    s_branch KB_lnd
    """ % F1)
    a.label("KB_w3")
    save = vm.n
    for st in range(3):
        for i in range(9): dma(st, i)
    vm.n = save
    a("s_barrier")
    a("s_barrier")
    a.label("KB_lnd")
    stamp(a, dbg, 2)
    a("""
    s_lshl_b32 s47, s35, 2
    s_add_u32 s47, s47, s39
    s_lshl_b32 s47, s47, 7
    s_add_u32 s47, s47, %d
    v_and_b32 v8, 15, v2
    v_lshlrev_b32 v8, 2, v8
    buffer_load_dword v9, v8, s[28:31], s47 offen sc1
    """ % F1)
    vm.n = 0
    seq = vm.issue()
    poll_check(a, vm, seq, 9, 1, 0x7777, 47, 8, "KB_p1")
    stamp(a, dbg, 3)
    a("""
    s_lshl_b32 s47, s35, 3
    s_lshl_b32 s48, s39, 1
    s_add_u32 s47, s47, s48
    s_mul_i32 s47, s47, 18432
    s_add_u32 s47, s47, %d
    """ % XNF)
    xn_seq = {}
    for ks in range(18):
        for mt in range(2):
            off = (mt*18 + ks)*1024
            a("s_add_u32 s48, s47, %d" % (off - off % 4096))
            r = (ks*2+mt)*4
            a("buffer_load_dwordx4 a[%d:%d], v3, s[28:31], s48 offen offset:%d sc1" % (r, r+3, off % 4096))
            xn_seq[(ks, mt)] = vm.issue()
    a("""
    s_lshl_b32 s45, s35, 2
    s_add_u32 s45, s45, s39          ; m*4+w
    s_mul_i32 s46, s45, %d
    s_add_u32 s46, s46, %d           ; HF base for (m,w)
    s_mul_i32 s47, s36, 9216
    s_add_u32 s47, s47, s46          ; own HF base (kk = 9j)
    s_lshl_b32 s48, s35, 2
    s_add_u32 s48, s48, s32
    s_lshl_b32 s48, s48, 2
    s_add_u32 s48, s48, s39
    s_lshl_b32 s48, s48, 7
    s_add_u32 s48, s48, %d           ; F2 line (m,s,w)
    s_lshl_b32 s49, s35, 2
    s_add_u32 s49, s49, s34
    s_lshl_b32 s49, s49, 2
    s_add_u32 s49, s49, s39          ; (m*4+n)*4+w
    s_mul_i32 s50, s49, 73728
    s_add_u32 s50, s50, %d           ; PART base (m,n,w)
    s_lshl_b32 s49, s49, 7
    s_add_u32 s49, s49, %d           ; F3 line (m,n,w)
    v_and_b32 v8, 3, v2
    v_lshlrev_b32 v8, 2, v8          ; flag lane addr
    v_mov_b32 v10, 0
    s_lshl_b32 s51, s34, 2
    s_add_u32 s51, s51, s48          ; own F2 word
    s_lshl_b32 s52, s32, 2
    s_add_u32 s52, s52, s49          ; own F3 word
    """ % (2*HFS, HF, F2, PART, F3))
    for pr in range(3):
        a("s_add_u32 s%d, s34, %d" % (53+pr, 1+pr))
        a("s_and_b32 s%d, s%d, 3" % (53+pr, 53+pr))
        a("s_lshl_b32 s56, s32, 2")
        a("s_add_u32 s%d, s%d, s56" % (53+pr, 53+pr))
        a("s_mul_i32 s%d, s%d, 9216" % (53+pr, 53+pr))
        a("s_add_u32 s%d, s%d, s46" % (53+pr, 53+pr))
    a("""
    v_and_b32 v11, 15, v2
    v_mul_u32_u24 v11, 1152, v11
    v_lshrrev_b32 v12, 4, v2
    v_lshl_add_u32 v11, v12, 3, v11  ; (l&15)*1152 + g*8
    s_lshl_b32 s56, s35, 7
    s_lshl_b32 s57, s39, 5
    s_add_u32 s56, s56, s57
    s_mul_i32 s56, s56, 1152
    s_mul_i32 s57, s34, 288
    s_add_u32 s56, s56, s57          ; out soffset base
    s_add_u32 s57, s56, %d           ; h soffset base
    """ % HB)

    units = order_units()
    NF = 648
    def frag_mfmas(gf):
        st, f = divmod(gf, 36)
        rb = VB + (gf % RING)*4
        out = []
        if st < 9:
            if st < 3: ks = 6*st + f // 6; T = f % 6
            else:      ks = f // 2; T = 2*st + (f & 1)
            for mt in range(2):
                ac = acc1_reg(T, mt)
                xr = (ks*2+mt)*4
                src = "0" if ks == 0 else "v[%d:%d]" % (ac, ac+3)
                out.append("v_mfma_f32_16x16x32_bf16 v[%d:%d], v[%d:%d], a[%d:%d], %s" % (ac, ac+3, rb, rb+3, xr, xr+3, src))
        else:
            uu, tt = divmod(gf - 324, 3)
            c2, (kind, pr, k9) = units[uu]
            first = uu in (0, 9, 18)
            for mt in range(2):
                ac = acc2_reg(c2, tt, mt)
                if kind == "o": hr = "v[%d:%d]" % (HO + (k9*2+mt)*4, HO + (k9*2+mt)*4 + 3)
                else:
                    r = areg_partner(pr, k9, mt); hr = "a[%d:%d]" % (r, r+3)
                src = "0" if first else "v[%d:%d]" % (ac, ac+3)
                out.append("v_mfma_f32_16x16x32_bf16 v[%d:%d], v[%d:%d], %s, %s" % (ac, ac+3, rb, rb+3, hr, src))
        return out

    class S: pass
    def build_tasks(svar):
        tasks = {}
        def at(q, fn): tasks.setdefault(q, []).append(fn)
        busy = set()
        for nb in range(15):
            b0 = max(0, 36*nb - LB)
            for i in range(9): busy.add(b0 + 1 + (DSP if nb else 3)*i)
        def vslot(q):
            while q in busy or (q-1) in busy or (q+1) in busy: q += 1
            busy.add(q); return q
        lastq = 0; kq = 0
        for k9 in range(9):
            q0 = max(108, 36*(k9+1)) + 1
            kq = max(kq, q0*VPS)
            for mt in range(2):
                hr = HO + (k9*2+mt)*4
                for half in range(2):
                    ac = acc1_reg(2*k9+half, mt)
                    for e in range(2):
                        def f(a, S_, d=hr+2*half+e, s0=ac+2*e):
                            a("v_cvt_pk_bf16_f32 v%d, v%d, v%d" % (d, s0, s0+1))
                        f.valu = True; at(kq//VPS, f); kq += 1
                for e in range(4):
                    def g(a, S_, r=hr+e): a("v_pk_max_i16 v%d, v%d, v10" % (r, r))
                    g.valu = True; at(kq//VPS, g); kq += 1
                def h(a, S_, hr=hr, k9=k9, mt=mt):
                    a("s_add_u32 s60, s47, %d" % (mt*HFS + k9*1024))
                    a("buffer_store_dwordx4 v[%d:%d], v3, s[28:31], s60 offen %s" % (hr, hr+3, hsc))
                    S_.hst[k9] = S_.vm.issue()
                lastq = vslot(max(lastq + (SSP if k9 > 2 else 6), kq//VPS + 1))
                at(lastq, h)
            if k9 in (2, 4, 6, 8):
                def fl(a, S_, k9=k9):
                    a("s_waitcnt vmcnt(%d)" % S_.vm.wait_cnt(S_.hst[k9]))
                    a("v_mov_b32 v9, %d" % (k9+1))
                    a("s_mov_b64 exec, 1")
                    a("buffer_store_dword v9, v10, s[28:31], s51 offen sc1"); S_.vm.issue()
                    a("s_mov_b64 exec, -1")
                fq = vslot(lastq + FLAGD[0]); at(fq, fl)
                if svar == 0 and verbose: print("flag", k9+1, "at", fq)
        lastq = 0
        pq = [vslot(p[0]) for p in POLLS]
        for pi, (qp, need, lo, hi) in enumerate(POLLS):
            def pl(a, S_):
                a("buffer_load_dword v13, v8, s[28:31], s48 offen sc1"); S_.fseq = S_.vm.issue()
            qp = pq[pi]; at(qp, pl)
            qc = qp + CHKD
            def pc(a, S_, pi=pi, need=need, qc=qc):
                poll_check(a, S_.vm, S_.fseq, 13, need, 0xf, 48, 8, "KB_p2_%d_%d" % (pi, svar if qc >= SPLITQ else 9))
            at(qc, pc)
            lastq = max(lastq, qc + 1)
            for i in range(lo, hi):
                k9, pr = divmod(i, 3)
                assert k9 < need
                if i >= 14: lastq = max(lastq, 326)
                for mt in range(2):
                    def ld(a, S_, pr=pr, k9=k9, mt=mt):
                        r = areg_partner(pr, k9, mt)
                        a("s_add_u32 s60, s%d, %d" % (53+pr, mt*HFS + k9*1024))
                        a("buffer_load_dwordx4 a[%d:%d], v3, s[28:31], s60 offen %s" % (r, r+3, hlc))
                        S_.hld[(pr, k9, mt)] = S_.vm.issue()
                    lastq = vslot(lastq); at(lastq, ld)
            if svar == 0 and verbose: print("poll", pi, "check", qc, "loads until slot", lastq)
        lastq = 0
        for c2, qe in ((0, 324 + 72*3), (1, 324 + 81*3)):
            for tt in range(3):
                for mt in range(2):
                    tau = 6*c2 + 2*tt + mt
                    if tau % 4 == svar: continue
                    def ps(a, S_, tau=tau, ac=acc2_reg(c2, tt, mt)):
                        a("s_add_u32 s60, s50, %d" % ((tau*4 + svar)*1024))
                        a("buffer_store_dwordx4 v[%d:%d], v3, s[28:31], s60 offen sc1" % (ac, ac+3))
                        S_.pst = S_.vm.issue()
                    lastq = vslot(max(lastq + PSP, qe + 1)); at(lastq, ps)
        def fl3(a, S_):
            a("s_waitcnt vmcnt(%d)" % S_.vm.wait_cnt(S_.pst))
            a("v_mov_b32 v9, 1")
            a("s_mov_b64 exec, 1")
            a("buffer_store_dword v9, v10, s[28:31], s52 offen sc1"); S_.vm.issue()
            a("s_mov_b64 exec, -1")
        at(min(NF-1, lastq + FLAGD[1]), fl3)
        if svar == 0 and verbose: print('last partial store', lastq)
        assert max(tasks) < NF
        return tasks

    def tau_info(tau):
        c2, r = divmod(tau, 6); tt, mt = divmod(r, 2)
        return c2, tt, mt
    def fin_loads(tau, B, svar):
        c2, tt, mt = tau_info(tau)
        fns = []
        srcs = [s_ for s_ in range(4) if s_ != svar]
        for i, s_ in enumerate(srcs):
            def ld(a, S_, i=i, s_=s_):
                a("s_add_u32 s60, s50, %d" % ((tau*4 + s_)*1024))
                a("buffer_load_dwordx4 v[%d:%d], v3, s[28:31], s60 offen sc1" % (B+4*i, B+4*i+3))
                S_.fin[tau] = S_.vm.issue()
            fns.append(ld)
        def ldh(a, S_):
            a("s_add_u32 s60, s57, %d" % (mt*18432 + c2*96 + tt*32))
            a("buffer_load_dwordx2 v[%d:%d], v11, s[28:31], s60 offen sc1" % (B+12, B+13))
            S_.fin[tau] = S_.vm.issue()
        fns.append(ldh)
        return fns
    def fin_math(tau, B, svar):
        c2, tt, mt = tau_info(tau)
        ac = acc2_reg(c2, tt, mt)
        srcs = [s_ for s_ in range(4) if s_ != svar]
        regs = {}
        for i, s_ in enumerate(srcs): regs[s_] = B + 4*i
        regs[svar] = ac
        L = []
        def ins(s): L.append(lambda a, S_, s=s: a(s))
        L.append(lambda a, S_: a("s_waitcnt vmcnt(%d)" % S_.vm.wait_cnt(S_.fin[tau])))
        d = B + 0 if svar != 0 else B + 0
        for h_ in range(2):
            ins("v_pk_add_f32 v[%d:%d], v[%d:%d], v[%d:%d]" % (B+14 if False else ac+2*h_, ac+2*h_+1, regs[0]+2*h_, regs[0]+2*h_+1, regs[1]+2*h_, regs[1]+2*h_+1)) if svar in (0, 1) else \
            ins("v_pk_add_f32 v[%d:%d], v[%d:%d], v[%d:%d]" % (regs[0]+2*h_, regs[0]+2*h_+1, regs[0]+2*h_, regs[0]+2*h_+1, regs[1]+2*h_, regs[1]+2*h_+1))
        cur = ac if svar in (0, 1) else regs[0]
        for s_ in (2, 3):
            for h_ in range(2):
                ins("v_pk_add_f32 v[%d:%d], v[%d:%d], v[%d:%d]" % (cur+2*h_, cur+2*h_+1, cur+2*h_, cur+2*h_+1, regs[s_]+2*h_, regs[s_]+2*h_+1))
        t = B + 14
        for h_ in range(2):
            r = cur + 2*h_
            ins("v_cvt_pk_bf16_f32 v%d, v%d, v%d" % (t, r, r+1))
            ins("v_lshlrev_b32 v%d, 16, v%d" % (r, t))
            ins("v_and_b32 v%d, s43, v%d" % (r+1, t))
            ins("v_lshlrev_b32 v%d, 16, v%d" % (B+4+2*h_, B+12+h_))
            ins("v_and_b32 v%d, s43, v%d" % (B+5+2*h_, B+12+h_))
            ins("v_pk_add_f32 v[%d:%d], v[%d:%d], v[%d:%d]" % (r, r+1, r, r+1, B+4+2*h_, B+5+2*h_))
        for h_ in range(2):
            ins("v_cvt_pk_bf16_f32 v%d, v%d, v%d" % (B+8+h_, cur+2*h_, cur+2*h_+1))
        def st(a, S_):
            a("s_add_u32 s60, s56, %d" % (mt*18432 + c2*96 + tt*32))
            a("buffer_store_dwordx2 v[%d:%d], v11, s[20:23], s60 offen" % (B+8, B+9)); S_.vm.issue()
        L.append(st)
        return L

    SPLITQ = 536
    def run_main(a, S_, q_from, q_to, tasks):
        for q in range(q_from, q_to):
            st, f = divmod(q, 36)
            nb = S_.bar + 1
            if nb < 18 and q == max(0, 36*nb - LB):
                a("s_waitcnt lgkmcnt(0)") if nb > 0 else None
                S_.rd_done = S_.p
                a("s_waitcnt vmcnt(%d)" % min(63, S_.vm.wait_cnt(S_.dseq[nb])))
                a("s_barrier")
                if sdbg and not qst: stamp(a, True, nb)
                if dbg and nb in (0,): stamp(a, dbg, 4)
                if dbg and nb in (9,): stamp(a, dbg, 5)
                S_.bar = nb
                assert not S_.pend
                if nb + 3 < 18: S_.pend = [(nb+3, i) for i in range(9)]
            def rd():
                if S_.p < NF and S_.p <= q + LMAX and S_.p < 36*(S_.bar+1):
                    gp = S_.p; r = VB + (gp % RING)*4
                    a("ds_read_b128 v[%d:%d], v%d offset:%d" % (r, r+3, 4 + (gp//36) % 4, (gp % 36)*1024))
                    S_.p += 1
                    return True
                return False
            if q == 0:
                while rd(): pass
            if q >= S_.rd_done:
                tgt = min(q + 1, S_.p - 1)
                a("s_waitcnt lgkmcnt(%d)" % min(15, S_.p - tgt - 1))
                S_.rd_done = tgt + 1
            if st < 9:
                ks = 6*(st % 3) + f // 6
                if st < 3 and f % 6 == 0:
                    a("s_waitcnt vmcnt(%d)" % min(63, S_.vm.wait_cnt(xn_seq[(ks, 1)])))
            else:
                uu, tt = divmod(q - 324, 3)
                c2, (kind, pr, k9) = units[uu]
                if kind == "p" and tt == 0 and (pr, k9) not in S_.hwaited:
                    S_.hwaited.add((pr, k9))
                    a("s_waitcnt vmcnt(%d)" % min(63, S_.vm.wait_cnt(S_.hld[(pr, k9, 1)])))
            if qst and q in qst: stamp(a, True, qst.index(q))
            m1, m2 = frag_mfmas(q)
            tl = list(tasks.get(q, []))
            a(m1)
            rd()
            if tl and getattr(tl[0], "valu", False): tl.pop(0)(a, S_)
            a(m2)
            did = False
            if S_.pend and (q - max(0, 36*S_.bar - LB)) % (DSP if S_.bar else 3) == 1:
                stg, i = S_.pend.pop(0)
                S_.dseq[stg] = dma_(a, S_, stg, i); did = True
            for fn in tl: fn(a, S_); did = True
            if not did: rd()
    def dma_(a, S_, stage, i):
        slot = stage % 4
        if i % 4 == 0:
            a("s_add_u32 m0, s40, %d" % (slot*36864 + i*1024))
            if stage < 9: a("s_add_u32 s44, s41, %d" % (stage*36864 + i*1024))
            else:         a("s_add_u32 s44, s42, %d" % ((stage-9)*36864 + i*1024))
        a("buffer_load_dwordx4 v3, s[28:31], s44 offen offset:%d lds" % ((i % 4)*1024))
        return S_.vm.issue()

    S0 = S(); S0.vm = vm; S0.bar = -1; S0.p = 0; S0.rd_done = 0; S0.pend = []
    S0.dseq = {0: 0, 1: 0, 2: 0}; S0.hst = {}; S0.hld = {}; S0.hwaited = set(); S0.fin = {}
    run_main(a, S0, 0, SPLITQ, build_tasks(0))
    for svar in range(4):
        if svar: a.label("KB_v%d" % svar)
        if svar < 3:
            a("s_cmp_lg_u32 s32, %d" % svar)
            a("s_cbranch_scc1 KB_v%d" % (svar+1))
        S_ = copy.deepcopy(S0)
        run_main(a, S_, SPLITQ, NF, build_tasks(svar))
        assert not S_.pend
        stamp(a, dbg, 6)
        a("s_nop 7")
        for tau in sorted(range(12, 18), key=lambda t: t):
            if tau % 4 == svar: continue
            c2, tt, mt = tau_info(tau); ac = acc2_reg(c2, tt, mt)
            a("s_add_u32 s60, s50, %d" % ((tau*4 + svar)*1024))
            a("buffer_store_dwordx4 v[%d:%d], v3, s[28:31], s60 offen sc1" % (ac, ac+3)); S_.vm.issue()
        a("buffer_load_dword v13, v8, s[28:31], s49 offen sc1"); seq = S_.vm.issue()
        a("v_mov_b32 v9, 2")
        a("s_waitcnt vmcnt(0)")
        a("""
        s_mov_b64 exec, 1
        buffer_store_dword v9, v10, s[28:31], s52 offen sc1
        s_mov_b64 exec, -1
        """); S_.vm.issue()
        poll_check(a, S_.vm, seq, 13, 1, 0xf, 49, 8, "KB_p3a_%d" % svar)
        own01 = [t for t in range(12) if t % 4 == svar]
        for i, tau in enumerate(own01):
            for fn in fin_loads(tau, HO + 16*i, svar): fn(a, S_)
        a("buffer_load_dword v13, v8, s[28:31], s49 offen sc1"); seq = S_.vm.issue()
        own = [t for t in range(12, 18) if t % 4 == svar]
        poll_check(a, S_.vm, seq, 13, 2, 0xf, 49, 8, "KB_p3b_%d" % svar)
        for i, tau in enumerate(own):
            for fn in fin_loads(tau, VB + 16*i, svar): fn(a, S_)
        for i, tau in enumerate(own01):
            for fn in fin_math(tau, HO + 16*i, svar): fn(a, S_)
        for i, tau in enumerate(own):
            for fn in fin_math(tau, VB + 16*i, svar): fn(a, S_)
        if sdbg: stamp_out(a, True, 18, 2, "s[28:31]")
        if dbg:
            a("s_waitcnt vmcnt(0)")
            stamp(a, dbg, 7)
            stamp_out(a, dbg, 8, 2, "s[28:31]")
        a("s_endpgm")
    a.label("KB_end")
    a("s_endpgm")
    return dict(name="kb_kernel", grid=256, block=256, lds=KB_LDS, body=a.text(), vgpr=512, sgpr=102, accum=256)

if __name__ == "__main__":
    from gen_front import gen_k1, gen_k2
    hdr = open("sequential_preLN__ssm_conv_h3__dense_activation_relu__prompt.s.ref").read().split("; Override")[0]
    t_ = make_file([gen_k1(), gen_k2(), gen_kb(verbose=True)], hdr); open("full.s", "w").write(t_)
    open("full_dbg.s", "w").write(make_file([gen_k1(True), gen_k2(True), gen_kb(True)], hdr))
    open("full_sdbg.s", "w").write(make_file([gen_k1(), gen_k2(), gen_kb(sdbg=True)], hdr))
    open("full_qdbg.s", "w").write(make_file([gen_k1(), gen_k2(), gen_kb(sdbg=True, qst=list(range(246, 282, 2)))], hdr).replace("s_memrealtime", "s_memtime"))
```

```python
import copy
from asmlib import *
from layout import *
from gen_front import srd, check_magic, wave_id, stamp, stamp_out

ZL = 147456
RS = ZL + 9216
KB_LDS = RS + 512
F1 = FLAGS
F2 = FLAGS + 64*128
F3 = FLAGS + 320*128
RING = 16; VB = 16
HO = 80
ACC = [152, 200]
SPIN_MAX = 20000

class VM:
    def __init__(self): self.n = 0
    def issue(self): self.n += 1; return self.n
    def wait_cnt(self, seq): return self.n - seq

def order_units():
    O = [("o", 0, x) for x in range(9)]
    Pe = [("p", pr, k9) for k9 in range(6) for pr in range(3)]
    Pl = [("p", pr, k9) for k9 in range(6, 9) for pr in range(3)]
    seq = [(0,O),(1,O),(2,O),(0,Pe),(1,Pe),(0,Pl),(1,Pl),(2,Pe),(2,Pl)]
    return [(c2, u) for c2, L in seq for u in L]

def areg_partner(pr, k9, mt):
    i = 3*k9 + pr
    base = 144 + 8*i if i < 14 else 8*(i-14)
    return base + 4*mt

def acc2_reg(c2, tt, mt):
    base = {0: ACC[0], 1: ACC[0]+24, 2: ACC[1]+24}[c2]
    return base + (tt*2+mt)*4

def acc1_reg(T, mt):
    if T < 6: return ACC[0] + (T*2+mt)*4
    return ACC[1] + 16*((T >> 1) & 1) + ((T & 1)*2+mt)*4

def rnd_pair(a, r, t):
    a("v_cvt_pk_bf16_f32 v%d, v%d, v%d" % (t, r, r+1))
    a("v_lshlrev_b32 v%d, 16, v%d" % (r, t))
    a("v_and_b32 v%d, s43, v%d" % (r+1, t))

def rnd1(a, r):
    a("v_cvt_pk_bf16_f32 v%d, v%d, v%d" % (r, r, r))
    a("v_lshlrev_b32 v%d, 16, v%d" % (r, r))

def ln_stats(a, V, T, rnd_idx, spin=None):
    a("v_pk_add_f32 v[%d:%d], v[%d:%d], v[%d:%d]" % (T, T+1, V, V+1, V+2, V+3))
    a("v_pk_add_f32 v[%d:%d], v[%d:%d], v[%d:%d]" % (T+2, T+3, V+4, V+5, V+6, V+7))
    for i in range(8, 24, 4):
        a("v_pk_add_f32 v[%d:%d], v[%d:%d], v[%d:%d]" % (T, T+1, T, T+1, V+i, V+i+1))
        a("v_pk_add_f32 v[%d:%d], v[%d:%d], v[%d:%d]" % (T+2, T+3, T+2, T+3, V+i+2, V+i+3))
    a("v_pk_add_f32 v[%d:%d], v[%d:%d], v[%d:%d]" % (T, T+1, T, T+1, T+2, T+3))
    a("v_add_f32 v%d, v%d, v%d" % (T, T, T+1))
    a("v_mul_f32 v%d, 0x3d2aaaab, v%d" % (T+4, T))
    for i in range(24):
        a("v_sub_f32 v%d, v%d, v%d" % (T+10+(i&3), V+i, T+4))
        if i < 4: a("v_mul_f32 v%d, v%d, v%d" % (T+6+i, T+10+i, T+10+i))
        else:     a("v_fmac_f32 v%d, v%d, v%d" % (T+6+(i&3), T+10+(i&3), T+10+(i&3)))
    a("v_add_f32 v%d, v%d, v%d" % (T+6, T+6, T+7))
    a("v_add_f32 v%d, v%d, v%d" % (T+8, T+8, T+9))
    a("v_add_f32 v%d, v%d, v%d" % (T+5, T+6, T+8))
    m, M2 = T+4, T+5
    def merge(am, bm, aM, bM, half_n):
        a("v_sub_f32 v%d, v%d, v%d" % (T+10, am, bm))
        a("v_add_f32 v%d, v%d, v%d" % (m, am, bm))
        a("v_add_f32 v%d, v%d, v%d" % (M2, aM, bM))
        a("v_mul_f32 v%d, v%d, v%d" % (T+10, T+10, T+10))
        a("v_mul_f32 v%d, 0.5, v%d" % (m, m))
        a("v_fmac_f32 v%d, %s, v%d" % (M2, half_n, T+10))
    a("s_nop 1")
    a("v_mov_b32_dpp v%d, v%d row_ror:8 row_mask:0xf bank_mask:0xf" % (T+6, m))
    a("v_mov_b32_dpp v%d, v%d row_ror:8 row_mask:0xf bank_mask:0xf" % (T+7, M2))
    merge(m, T+6, M2, T+7, "0x41400000")
    for op, hn in (("v_permlane16_swap_b32", "0x41c00000"), ("v_permlane32_swap_b32", "0x42400000")):
        a("v_mov_b32 v%d, v%d" % (T+6, m)); a("v_mov_b32 v%d, v%d" % (T+7, m))
        a("v_mov_b32 v%d, v%d" % (T+8, M2)); a("v_mov_b32 v%d, v%d" % (T+9, M2))
        a("s_nop 1")
        a("%s v%d, v%d" % (op, T+6, T+7))
        a("%s v%d, v%d" % (op, T+8, T+9))
        a("s_nop 1")
        merge(T+6, T+7, T+8, T+9, hn)
    if spin is None:
        a("ds_write_b64 v11, v[%d:%d] offset:%d" % (m, M2, rnd_idx*192))
        a("s_waitcnt lgkmcnt(0)")
        a("s_barrier")
        for w in range(3):
            a("ds_read_b64 v[%d:%d], v12 offset:%d" % (T+6+2*w, T+7+2*w, rnd_idx*192 + w*64))
        a("s_waitcnt lgkmcnt(0)")
    else:
        lab = a.newlabel("L_lns")
        a("v_mov_b32 v%d, s%d" % (T+12, spin))
        a("ds_write_b64 v11, v[%d:%d] offset:%d" % (m, M2, rnd_idx*192))
        a("ds_write_b32 v11, v%d offset:%d" % (T+12, 384))
        a("s_mov_b32 s58, 0")
        a.label(lab)
        for w in range(3): a("ds_read_b32 v%d, v12 offset:%d" % (T+13+w, 384 + w*64))
        a("s_waitcnt lgkmcnt(0)")
        a("v_cmp_eq_u32 vcc, v%d, v%d" % (T+12, T+13))
        a("v_cmp_eq_u32 s[60:61], v%d, v%d" % (T+12, T+14))
        a("v_cmp_eq_u32 s[62:63], v%d, v%d" % (T+12, T+15))
        a("s_add_u32 s58, s58, 1")
        a("s_and_b64 vcc, vcc, s[60:61]")
        a("s_and_b64 vcc, vcc, s[62:63]")
        a("s_cmp_gt_u32 s58, 4000000")
        a("s_cbranch_scc1 %s_ok" % lab)
        a("s_cmp_eq_u64 vcc, -1")
        a("s_cbranch_scc0 %s" % lab)
        a.label(lab + "_ok")
        for w in range(3):
            a("ds_read_b64 v[%d:%d], v12 offset:%d" % (T+6+2*w, T+7+2*w, rnd_idx*192 + w*64))
        a("s_waitcnt lgkmcnt(0)")
    a("v_add_f32 v%d, v%d, v%d" % (m, T+6, T+8))
    a("v_add_f32 v%d, v%d, v%d" % (M2, T+7, T+9))
    a("v_add_f32 v%d, v%d, v%d" % (m, m, T+10))
    a("v_add_f32 v%d, v%d, v%d" % (M2, M2, T+11))
    a("v_mul_f32 v%d, 0x3eaaaaab, v%d" % (m, m))
    a("v_sub_f32 v%d, v%d, v%d" % (T+6, T+6, m))
    a("v_sub_f32 v%d, v%d, v%d" % (T+8, T+8, m))
    a("v_sub_f32 v%d, v%d, v%d" % (T+10, T+10, m))
    a("v_mul_f32 v%d, v%d, v%d" % (T+6, T+6, T+6))
    a("v_fmac_f32 v%d, v%d, v%d" % (T+6, T+8, T+8))
    a("v_fmac_f32 v%d, v%d, v%d" % (T+6, T+10, T+10))
    a("v_fmac_f32 v%d, 0x43400000, v%d" % (M2, T+6))
    a("v_mul_f32 v%d, 0x3ae38e39, v%d" % (M2, M2))
    rnd1(a, m); rnd1(a, M2)
    a("v_add_f32 v%d, 0x3727c5ac, v%d" % (M2, M2))
    rnd1(a, M2)
    a("v_sqrt_f32 v%d, v%d" % (M2, M2))
    a("s_nop 0")
    rnd1(a, M2)
    a("v_rcp_f32 v%d, v%d" % (T+2, M2))
    a("v_sub_f32 v%d, 0, v%d" % (T, m))
    a("v_sub_f32 v%d, 0, v%d" % (T+1, m))
    a("s_nop 0")
    a("v_mov_b32 v%d, v%d" % (T+3, T+2))

def poll_check(a, vm, seq, vflag, needed, mask, soff, vaddr, lab):
    a("s_waitcnt vmcnt(%d)" % vm.wait_cnt(seq))
    a("s_mov_b32 s58, 0")
    a.label(lab + "_chk")
    a("v_cmp_le_u32 vcc, %d, v%d" % (needed, vflag))
    a("s_nop 1")
    a("s_and_b32 s59, vcc_lo, 0x%x" % mask)
    a("s_cmp_eq_u32 s59, 0x%x" % mask)
    a("s_cbranch_scc1 %s_ok" % lab)
    a("s_add_u32 s58, s58, 1")
    a("s_cmp_gt_u32 s58, %d" % SPIN_MAX)
    a("s_cbranch_scc1 %s_ok" % lab)
    a("s_sleep 1")
    a("buffer_load_dword v%d, v%d, s[28:31], s%d offen sc1" % (vflag, vaddr, soff))
    a("s_waitcnt vmcnt(0)")
    a("s_branch %s_chk" % lab)
    a.label(lab + "_ok")

def gen_kb(dbg=False, LMAX=12, LB=6, sdbg=False, qst=None, hsc='sc1', hlc='sc1', exp=0, FLAGD=(36, 36), CHKD=25, POLLS=((208, 3, 0, 9), (272, 5, 9, 15), (340, 7, 15, 21), (410, 9, 21, 27)), DSP=4, VPS=2, SSP=10, PSP=5, verbose=False, touch=False):
    a = Asm()
    vm = VM()
    a("s_cmp_ge_u32 s2, 256")
    a("s_cbranch_scc1 KB_end")
    a("""
    s_load_dwordx2 s[4:5], s[0:1], 0
    s_load_dwordx2 s[6:7], s[0:1], 72
    s_load_dwordx2 s[12:13], s[0:1], 88
    s_waitcnt lgkmcnt(0)
    """)
    srd(a, 16, 4, 2359296); srd(a, 20, 6, 2359296); srd(a, 28, 12, WS_SIZE)
    stamp(a, dbg, 0)
    wave_id(a, 39, 1)
    a("""
    s_and_b32 s32, s2, 3             ; s
    s_lshr_b32 s33, s2, 3            ; q
    s_and_b32 s34, s33, 3            ; n
    s_lshr_b32 s35, s33, 2
    s_bfe_u32 s36, s2, 0x10002       ; (b>>2)&1
    s_lshl_b32 s36, s36, 3
    s_add_u32 s35, s35, s36          ; m
    s_lshl_b32 s36, s32, 2
    s_add_u32 s36, s36, s34          ; j
    s_lshl_b32 s37, s35, 7
    s_lshl_b32 s38, s36, 3
    s_add_u32 s37, s37, s38          ; R0
    s_mov_b32 s43, 0xffff0000
    v_and_b32 v2, 63, v0             ; lane
    v_lshlrev_b32 v3, 4, v2          ; lane*16
    s_mul_i32 s40, s39, 9216         ; wave offset within stage (lds + global)
    s_mul_i32 s41, s36, %d
    s_add_u32 s41, s41, s40
    s_add_u32 s41, s41, %d           ; W1P global base for this wave
    s_add_u32 s42, s41, %d           ; W2P global base for this wave
    """ % (SLICE, W1P, W2P - W1P))
    for sl in range(4): a("v_add_u32 v%d, %d, v3" % (4+sl, sl*36864))
    def dma(stage, i):
        slot = stage % 4
        a("s_add_u32 m0, s40, %d" % (slot*36864 + i*1024))
        if stage < 9: a("s_add_u32 s44, s41, %d" % (stage*36864 + i*1024))
        else:         a("s_add_u32 s44, s42, %d" % ((stage-9)*36864 + i*1024))
        a("buffer_load_dwordx4 v3, s[28:31], s44 offen lds")
        return vm.issue()
    if touch:
        a("""
        s_lshl_b32 s45, s35, 2
        s_add_u32 s45, s45, s39
        s_mul_i32 s46, s45, %d
        s_add_u32 s46, s46, %d
        v_mov_b32 v8, 0
        buffer_load_dword v240, v8, s[28:31], s46 offen
        s_add_u32 s46, s46, %d
        buffer_load_dword v241, v8, s[28:31], s46 offen
        s_add_u32 s46, s46, %d
        buffer_load_dword v242, v8, s[28:31], s46 offen
        """ % (2*HFS, HF - 1280 + 128, HFS, HFS))
        for _ in range(3): vm.issue()
    a("s_cmp_eq_u32 s39, 3")
    a("s_cbranch_scc1 KB_w3")
    vm3 = VM()
    a("""
    v_lshlrev_b32 v8, 12, v2         ; lane*4096
    s_mul_i32 s44, s39, 786432       ; 3w * 262144
    s_lshl_b32 s45, s37, 1
    s_add_u32 s44, s44, s45
    s_add_u32 s44, s44, %d
    s_mul_i32 s45, s39, 3072
    v_and_b32 v9, 7, v2              ; r
    v_lshrrev_b32 v10, 3, v2         ; l>>3
    v_mul_u32_u24 v13, 1152, v9
    v_lshl_add_u32 v13, v10, 4, v13  ; x voffset
    s_mul_i32 s46, s37, 1152
    s_mul_i32 s47, s39, 384
    s_add_u32 s46, s46, s47          ; x soffset (it=0)
    """ % ZT)
    for it in range(3):
        a("s_add_u32 m0, s45, %d" % (ZL + it*1024))
        a("s_add_u32 s47, s44, %d" % (it*262144))
        a("buffer_load_dwordx4 v8, s[28:31], s47 offen lds")
        zseq = vm.issue()
    for it in range(3):
        a("buffer_load_dwordx4 v[%d:%d], v13, s[16:19], s46 offen offset:%d" % (16+4*it, 19+4*it, it*128))
        xseq = vm.issue()
    for st in range(3):
        for i in range(9): dma(st, i)
    a("""
    v_lshlrev_b32 v12, 3, v9         ; r*8
    v_add_u32 v12, %d, v12
    s_lshl_b32 s47, s39, 6
    v_add_u32 v11, s47, v12          ; r*8 + w*64
    v_lshrrev_b32 v14, 4, v2         ; G
    v_lshlrev_b32 v14, 8, v14
    v_bfe_u32 v15, v2, 1, 1          ; c>>1
    v_lshl_add_u32 v14, v15, 7, v14
    v_bfe_u32 v15, v2, 2, 2          ; r4
    v_lshl_add_u32 v14, v15, 4, v14
    v_and_b32 v15, 1, v2
    v_lshl_add_u32 v14, v15, 3, v14
    v_add_u32 v14, s45, v14
    v_add_u32 v14, %d, v14           ; tr read addr (it=0)
    """ % (RS, ZL))
    a("s_waitcnt vmcnt(%d)" % vm.wait_cnt(xseq))
    stamp(a, dbg, 1)
    for it in range(3):
        a("ds_read_b64_tr_b16 v[%d:%d], v14 offset:%d" % (28+4*it, 29+4*it, it*1024))
        a("ds_read_b64_tr_b16 v[%d:%d], v14 offset:%d" % (30+4*it, 31+4*it, it*1024 + 64))
    X = 40
    for i in range(12):
        a("v_lshlrev_b32 v%d, 16, v%d" % (X+2*i, 16+i))
        a("v_and_b32 v%d, s43, v%d" % (X+2*i+1, 16+i))
    T = 100
    ln_stats(a, X, T, 0)
    Hh = 64
    for i in range(12):
        d = 120
        a("v_pk_add_f32 v[%d:%d], v[%d:%d], v[%d:%d]" % (d, d+1, X+2*i, X+2*i+1, T, T+1)); rnd_pair(a, d, d+4)
        a("v_pk_mul_f32 v[%d:%d], v[%d:%d], v[%d:%d]" % (d, d+1, d, d+1, T+2, T+3)); rnd_pair(a, d, d+4)
        a("v_lshlrev_b32 v%d, 16, v%d" % (d+2, 28+i))
        a("v_and_b32 v%d, s43, v%d" % (d+3, 28+i))
        a("v_pk_mul_f32 v[%d:%d], v[%d:%d], v[%d:%d]" % (d, d+1, d, d+1, d+2, d+3)); rnd_pair(a, d, d+4)
        a("v_pk_add_f32 v[%d:%d], v[%d:%d], v[%d:%d]" % (Hh+2*i, Hh+2*i+1, X+2*i, X+2*i+1, d, d+1)); rnd_pair(a, Hh+2*i, 16+i)
    a("s_add_u32 s47, s46, %d" % HB)
    for it in range(3):
        a("buffer_store_dwordx4 v[%d:%d], v13, s[28:31], s47 offen offset:%d sc1" % (16+4*it, 19+4*it, it*128)); vm.issue()
    ln_stats(a, Hh, T, 1)
    for i in range(12):
        d = 120
        a("v_pk_add_f32 v[%d:%d], v[%d:%d], v[%d:%d]" % (d, d+1, Hh+2*i, Hh+2*i+1, T, T+1)); rnd_pair(a, d, d+4)
        a("v_pk_mul_f32 v[%d:%d], v[%d:%d], v[%d:%d]" % (d, d+1, d, d+1, T+2, T+3))
        a("v_cvt_pk_bf16_f32 v%d, v%d, v%d" % (28+i, d, d+1))
    a("""
    v_lshrrev_b32 v8, 5, v2
    v_lshlrev_b32 v8, 10, v8
    v_bfe_u32 v15, v2, 3, 2
    v_lshl_add_u32 v8, v15, 8, v8
    v_lshl_add_u32 v8, v9, 4, v8     ; xn voffset
    s_lshr_b32 s47, s37, 4           ; mt_g
    s_mul_i32 s47, s47, 18
    s_mul_i32 s48, s39, 6
    s_add_u32 s47, s47, s48
    s_lshl_b32 s47, s47, 10
    s_and_b32 s48, s36, 1
    s_lshl_b32 s48, s48, 7
    s_add_u32 s47, s47, s48
    s_add_u32 s47, s47, %d
    """ % XNF)
    for it in range(3):
        if it == 2: a("s_add_u32 s47, s47, 4096")
        a("buffer_store_dwordx4 v[%d:%d], v8, s[28:31], s47 offen offset:%d sc1" % (28+4*it, 31+4*it, (it*2048) % 4096)); vm.issue()
    a("""
    s_lshl_b32 s47, s35, 2
    s_add_u32 s47, s47, s32
    s_lshl_b32 s47, s47, 7
    s_lshl_b32 s48, s34, 4
    s_add_u32 s47, s47, s48
    s_lshl_b32 s48, s39, 2
    s_add_u32 s47, s47, s48
    s_add_u32 s47, s47, %d
    v_mov_b32 v8, 0
    v_mov_b32 v9, 1
    s_waitcnt vmcnt(0)
    s_mov_b64 exec, 1
    buffer_store_dword v9, v8, s[28:31], s47 offen sc1
    s_mov_b64 exec, -1
    s_branch KB_lnd
    """ % F1)
    a.label("KB_w3")
    save = vm.n
    for st in range(3):
        for i in range(9): dma(st, i)
    vm.n = save
    a("s_barrier")
    a("s_barrier")
    a.label("KB_lnd")
    stamp(a, dbg, 2)
    a("""
    s_lshl_b32 s47, s35, 2
    s_add_u32 s47, s47, s39
    s_lshl_b32 s47, s47, 7
    s_add_u32 s47, s47, %d
    v_and_b32 v8, 15, v2
    v_lshlrev_b32 v8, 2, v8
    buffer_load_dword v9, v8, s[28:31], s47 offen sc1
    """ % F1)
    vm.n = 0
    seq = vm.issue()
    poll_check(a, vm, seq, 9, 1, 0x7777, 47, 8, "KB_p1")
    stamp(a, dbg, 3)
    a("""
    s_lshl_b32 s47, s35, 3
    s_lshl_b32 s48, s39, 1
    s_add_u32 s47, s47, s48
    s_mul_i32 s47, s47, 18432
    s_add_u32 s47, s47, %d
    """ % XNF)
    xn_seq = {}
    for ks in range(18):
        for mt in range(2):
            off = (mt*18 + ks)*1024
            a("s_add_u32 s48, s47, %d" % (off - off % 4096))
            r = (ks*2+mt)*4
            a("buffer_load_dwordx4 a[%d:%d], v3, s[28:31], s48 offen offset:%d sc1" % (r, r+3, off % 4096))
            xn_seq[(ks, mt)] = vm.issue()
    a("""
    s_lshl_b32 s45, s35, 2
    s_add_u32 s45, s45, s39          ; m*4+w
    s_mul_i32 s46, s45, %d
    s_add_u32 s46, s46, %d           ; HF base for (m,w)
    s_mul_i32 s47, s36, 9216
    s_add_u32 s47, s47, s46          ; own HF base (kk = 9j)
    s_lshl_b32 s48, s35, 2
    s_add_u32 s48, s48, s32
    s_lshl_b32 s48, s48, 2
    s_add_u32 s48, s48, s39
    s_lshl_b32 s48, s48, 7
    s_add_u32 s48, s48, %d           ; F2 line (m,s,w)
    s_lshl_b32 s49, s35, 2
    s_add_u32 s49, s49, s34
    s_lshl_b32 s49, s49, 2
    s_add_u32 s49, s49, s39          ; (m*4+n)*4+w
    s_mul_i32 s50, s49, 73728
    s_add_u32 s50, s50, %d           ; PART base (m,n,w)
    s_lshl_b32 s49, s49, 7
    s_add_u32 s49, s49, %d           ; F3 line (m,n,w)
    v_and_b32 v8, 3, v2
    v_lshlrev_b32 v8, 2, v8          ; flag lane addr
    v_mov_b32 v10, 0
    s_lshl_b32 s51, s34, 2
    s_add_u32 s51, s51, s48          ; own F2 word
    s_lshl_b32 s52, s32, 2
    s_add_u32 s52, s52, s49          ; own F3 word
    """ % (2*HFS, HF, F2, PART, F3))
    for pr in range(3):
        a("s_add_u32 s%d, s34, %d" % (53+pr, 1+pr))
        a("s_and_b32 s%d, s%d, 3" % (53+pr, 53+pr))
        a("s_lshl_b32 s56, s32, 2")
        a("s_add_u32 s%d, s%d, s56" % (53+pr, 53+pr))
        a("s_mul_i32 s%d, s%d, 9216" % (53+pr, 53+pr))
        a("s_add_u32 s%d, s%d, s46" % (53+pr, 53+pr))
    a("""
    v_and_b32 v11, 15, v2
    v_mul_u32_u24 v11, 1152, v11
    v_lshrrev_b32 v12, 4, v2
    v_lshl_add_u32 v11, v12, 3, v11  ; (l&15)*1152 + g*8
    s_lshl_b32 s56, s35, 7
    s_lshl_b32 s57, s39, 5
    s_add_u32 s56, s56, s57
    s_mul_i32 s56, s56, 1152
    s_mul_i32 s57, s34, 288
    s_add_u32 s56, s56, s57          ; out soffset base
    s_add_u32 s57, s56, %d           ; h soffset base
    """ % HB)

    units = order_units()
    NF = 648
    def frag_mfmas(gf):
        st, f = divmod(gf, 36)
        rb = VB + (gf % RING)*4
        out = []
        if st < 9:
            if st < 3: ks = 6*st + f // 6; T = f % 6
            else:      ks = f // 2; T = 2*st + (f & 1)
            for mt in range(2):
                ac = acc1_reg(T, mt)
                xr = (ks*2+mt)*4
                src = "0" if ks == 0 else "v[%d:%d]" % (ac, ac+3)
                out.append("v_mfma_f32_16x16x32_bf16 v[%d:%d], v[%d:%d], a[%d:%d], %s" % (ac, ac+3, rb, rb+3, xr, xr+3, src))
        else:
            uu, tt = divmod(gf - 324, 3)
            c2, (kind, pr, k9) = units[uu]
            first = uu in (0, 9, 18)
            for mt in range(2):
                ac = acc2_reg(c2, tt, mt)
                if kind == "o": hr = "v[%d:%d]" % (HO + (k9*2+mt)*4, HO + (k9*2+mt)*4 + 3)
                else:
                    r = areg_partner(pr, k9, mt); hr = "a[%d:%d]" % (r, r+3)
                src = "0" if first else "v[%d:%d]" % (ac, ac+3)
                out.append("v_mfma_f32_16x16x32_bf16 v[%d:%d], v[%d:%d], %s, %s" % (ac, ac+3, rb, rb+3, hr, src))
        return out

    class S: pass
    def build_tasks(svar):
        tasks = {}
        def at(q, fn): tasks.setdefault(q, []).append(fn)
        busy = set()
        for nb in range(15):
            b0 = max(0, 36*nb - LB)
            for i in range(9): busy.add(b0 + 1 + (DSP if nb else 3)*i)
        def vslot(q):
            while q in busy or (q-1) in busy or (q+1) in busy: q += 1
            busy.add(q); return q
        lastq = 0; kq = 0
        for k9 in range(9):
            q0 = max(108, 36*(k9+1)) + 1
            kq = max(kq, q0*VPS)
            for mt in range(2):
                hr = HO + (k9*2+mt)*4
                for half in range(2):
                    ac = acc1_reg(2*k9+half, mt)
                    for e in range(2):
                        def f(a, S_, d=hr+2*half+e, s0=ac+2*e):
                            a("v_cvt_pk_bf16_f32 v%d, v%d, v%d" % (d, s0, s0+1))
                        f.valu = True; at(kq//VPS, f); kq += 1
                for e in range(4):
                    def g(a, S_, r=hr+e): a("v_pk_max_i16 v%d, v%d, v10" % (r, r))
                    g.valu = True; at(kq//VPS, g); kq += 1
                def h(a, S_, hr=hr, k9=k9, mt=mt):
                    a("s_add_u32 s60, s47, %d" % (mt*HFS + k9*1024))
                    a("buffer_store_dwordx4 v[%d:%d], v3, s[28:31], s60 offen %s" % (hr, hr+3, hsc))
                    S_.hst[k9] = S_.vm.issue()
                lastq = vslot(max(lastq + (SSP if k9 > 2 else 6), kq//VPS + 1))
                at(lastq, h)
            if k9 in (2, 4, 6, 8):
                def fl(a, S_, k9=k9):
                    a("s_waitcnt vmcnt(%d)" % S_.vm.wait_cnt(S_.hst[k9]))
                    a("v_mov_b32 v9, %d" % (k9+1))
                    a("s_mov_b64 exec, 1")
                    a("buffer_store_dword v9, v10, s[28:31], s51 offen sc1"); S_.vm.issue()
                    a("s_mov_b64 exec, -1")
                fq = vslot(lastq + FLAGD[0]); at(fq, fl)
                if svar == 0 and verbose: print("flag", k9+1, "at", fq)
        lastq = 0
        pq = [vslot(p[0]) for p in POLLS]
        for pi, (qp, need, lo, hi) in enumerate(POLLS):
            def pl(a, S_):
                a("buffer_load_dword v13, v8, s[28:31], s48 offen sc1"); S_.fseq = S_.vm.issue()
            qp = pq[pi]; at(qp, pl)
            qc = qp + CHKD
            def pc(a, S_, pi=pi, need=need, qc=qc):
                poll_check(a, S_.vm, S_.fseq, 13, need, 0xf, 48, 8, "KB_p2_%d_%d" % (pi, svar if qc >= SPLITQ else 9))
            at(qc, pc)
            lastq = max(lastq, qc + 1)
            for i in range(lo, hi):
                k9, pr = divmod(i, 3)
                assert k9 < need
                if i >= 14: lastq = max(lastq, 326)
                for mt in range(2):
                    def ld(a, S_, pr=pr, k9=k9, mt=mt):
                        r = areg_partner(pr, k9, mt)
                        a("s_add_u32 s60, s%d, %d" % (53+pr, mt*HFS + k9*1024))
                        a("buffer_load_dwordx4 a[%d:%d], v3, s[28:31], s60 offen %s" % (r, r+3, hlc))
                        S_.hld[(pr, k9, mt)] = S_.vm.issue()
                    lastq = vslot(lastq); at(lastq, ld)
            if svar == 0 and verbose: print("poll", pi, "check", qc, "loads until slot", lastq)
        lastq = 0
        for c2, qe in ((0, 324 + 72*3), (1, 324 + 81*3)):
            for tt in range(3):
                for mt in range(2):
                    tau = 6*c2 + 2*tt + mt
                    if tau % 4 == svar: continue
                    def ps(a, S_, tau=tau, ac=acc2_reg(c2, tt, mt)):
                        a("s_add_u32 s60, s50, %d" % ((tau*4 + svar)*1024))
                        a("buffer_store_dwordx4 v[%d:%d], v3, s[28:31], s60 offen sc1" % (ac, ac+3))
                        S_.pst = S_.vm.issue()
                    lastq = vslot(max(lastq + PSP, qe + 1)); at(lastq, ps)
        def fl3(a, S_):
            a("s_waitcnt vmcnt(%d)" % S_.vm.wait_cnt(S_.pst))
            a("v_mov_b32 v9, 1")
            a("s_mov_b64 exec, 1")
            a("buffer_store_dword v9, v10, s[28:31], s52 offen sc1"); S_.vm.issue()
            a("s_mov_b64 exec, -1")
        at(min(NF-1, lastq + FLAGD[1]), fl3)
        if svar == 0 and verbose: print('last partial store', lastq)
        assert max(tasks) < NF
        return tasks

    def tau_info(tau):
        c2, r = divmod(tau, 6); tt, mt = divmod(r, 2)
        return c2, tt, mt
    def fin_loads(tau, B, svar):
        c2, tt, mt = tau_info(tau)
        fns = []
        srcs = [s_ for s_ in range(4) if s_ != svar]
        for i, s_ in enumerate(srcs):
            def ld(a, S_, i=i, s_=s_):
                a("s_add_u32 s60, s50, %d" % ((tau*4 + s_)*1024))
                a("buffer_load_dwordx4 v[%d:%d], v3, s[28:31], s60 offen sc1" % (B+4*i, B+4*i+3))
                S_.fin[tau] = S_.vm.issue()
            fns.append(ld)
        def ldh(a, S_):
            a("s_add_u32 s60, s57, %d" % (mt*18432 + c2*96 + tt*32))
            a("buffer_load_dwordx2 v[%d:%d], v11, s[28:31], s60 offen sc1" % (B+12, B+13))
            S_.fin[tau] = S_.vm.issue()
        fns.append(ldh)
        return fns
    def fin_math(tau, B, svar):
        c2, tt, mt = tau_info(tau)
        ac = acc2_reg(c2, tt, mt)
        srcs = [s_ for s_ in range(4) if s_ != svar]
        regs = {}
        for i, s_ in enumerate(srcs): regs[s_] = B + 4*i
        regs[svar] = ac
        L = []
        def ins(s): L.append(lambda a, S_, s=s: a(s))
        L.append(lambda a, S_: a("s_waitcnt vmcnt(%d)" % S_.vm.wait_cnt(S_.fin[tau])))
        d = B + 0 if svar != 0 else B + 0
        for h_ in range(2):
            ins("v_pk_add_f32 v[%d:%d], v[%d:%d], v[%d:%d]" % (B+14 if False else ac+2*h_, ac+2*h_+1, regs[0]+2*h_, regs[0]+2*h_+1, regs[1]+2*h_, regs[1]+2*h_+1)) if svar in (0, 1) else \
            ins("v_pk_add_f32 v[%d:%d], v[%d:%d], v[%d:%d]" % (regs[0]+2*h_, regs[0]+2*h_+1, regs[0]+2*h_, regs[0]+2*h_+1, regs[1]+2*h_, regs[1]+2*h_+1))
        cur = ac if svar in (0, 1) else regs[0]
        for s_ in (2, 3):
            for h_ in range(2):
                ins("v_pk_add_f32 v[%d:%d], v[%d:%d], v[%d:%d]" % (cur+2*h_, cur+2*h_+1, cur+2*h_, cur+2*h_+1, regs[s_]+2*h_, regs[s_]+2*h_+1))
        t = B + 14
        for h_ in range(2):
            r = cur + 2*h_
            ins("v_cvt_pk_bf16_f32 v%d, v%d, v%d" % (t, r, r+1))
            ins("v_lshlrev_b32 v%d, 16, v%d" % (r, t))
            ins("v_and_b32 v%d, s43, v%d" % (r+1, t))
            ins("v_lshlrev_b32 v%d, 16, v%d" % (B+4+2*h_, B+12+h_))
            ins("v_and_b32 v%d, s43, v%d" % (B+5+2*h_, B+12+h_))
            ins("v_pk_add_f32 v[%d:%d], v[%d:%d], v[%d:%d]" % (r, r+1, r, r+1, B+4+2*h_, B+5+2*h_))
        for h_ in range(2):
            ins("v_cvt_pk_bf16_f32 v%d, v%d, v%d" % (B+8+h_, cur+2*h_, cur+2*h_+1))
        def st(a, S_):
            a("s_add_u32 s60, s56, %d" % (mt*18432 + c2*96 + tt*32))
            a("buffer_store_dwordx2 v[%d:%d], v11, s[20:23], s60 offen" % (B+8, B+9)); S_.vm.issue()
        L.append(st)
        return L

    SPLITQ = 536
    def run_main(a, S_, q_from, q_to, tasks):
        for q in range(q_from, q_to):
            st, f = divmod(q, 36)
            nb = S_.bar + 1
            if nb < 18 and q == max(0, 36*nb - LB):
                a("s_waitcnt lgkmcnt(0)") if nb > 0 else None
                S_.rd_done = S_.p
                a("s_waitcnt vmcnt(%d)" % min(63, S_.vm.wait_cnt(S_.dseq[nb])))
                a("s_barrier")
                if sdbg and not qst: stamp(a, True, nb)
                if dbg and nb in (0,): stamp(a, dbg, 4)
                if dbg and nb in (9,): stamp(a, dbg, 5)
                S_.bar = nb
                assert not S_.pend
                if nb + 3 < 18: S_.pend = [(nb+3, i) for i in range(9)]
            def rd():
                if S_.p < NF and S_.p <= q + LMAX and S_.p < 36*(S_.bar+1):
                    gp = S_.p; r = VB + (gp % RING)*4
                    a("ds_read_b128 v[%d:%d], v%d offset:%d" % (r, r+3, 4 + (gp//36) % 4, (gp % 36)*1024))
                    S_.p += 1
                    return True
                return False
            if q == 0:
                while rd(): pass
            if q >= S_.rd_done:
                tgt = min(q + 1, S_.p - 1)
                a("s_waitcnt lgkmcnt(%d)" % min(15, S_.p - tgt - 1))
                S_.rd_done = tgt + 1
            if st < 9:
                ks = 6*(st % 3) + f // 6
                if st < 3 and f % 6 == 0:
                    a("s_waitcnt vmcnt(%d)" % min(63, S_.vm.wait_cnt(xn_seq[(ks, 1)])))
            else:
                uu, tt = divmod(q - 324, 3)
                c2, (kind, pr, k9) = units[uu]
                if kind == "p" and tt == 0 and (pr, k9) not in S_.hwaited:
                    S_.hwaited.add((pr, k9))
                    a("s_waitcnt vmcnt(%d)" % min(63, S_.vm.wait_cnt(S_.hld[(pr, k9, 1)])))
            if qst and q in qst: stamp(a, True, qst.index(q))
            m1, m2 = frag_mfmas(q)
            tl = list(tasks.get(q, []))
            a(m1)
            rd()
            if tl and getattr(tl[0], "valu", False): tl.pop(0)(a, S_)
            a(m2)
            did = False
            if S_.pend and (q - max(0, 36*S_.bar - LB)) % (DSP if S_.bar else 3) == 1:
                stg, i = S_.pend.pop(0)
                S_.dseq[stg] = dma_(a, S_, stg, i); did = True
            for fn in tl: fn(a, S_); did = True
            if not did: rd()
    def dma_(a, S_, stage, i):
        slot = stage % 4
        if i % 4 == 0:
            a("s_add_u32 m0, s40, %d" % (slot*36864 + i*1024))
            if stage < 9: a("s_add_u32 s44, s41, %d" % (stage*36864 + i*1024))
            else:         a("s_add_u32 s44, s42, %d" % ((stage-9)*36864 + i*1024))
        a("buffer_load_dwordx4 v3, s[28:31], s44 offen offset:%d lds" % ((i % 4)*1024))
        return S_.vm.issue()

    S0 = S(); S0.vm = vm; S0.bar = -1; S0.p = 0; S0.rd_done = 0; S0.pend = []
    S0.dseq = {0: 0, 1: 0, 2: 0}; S0.hst = {}; S0.hld = {}; S0.hwaited = set(); S0.fin = {}
    run_main(a, S0, 0, SPLITQ, build_tasks(0))
    for svar in range(4):
        if svar: a.label("KB_v%d" % svar)
        if svar < 3:
            a("s_cmp_lg_u32 s32, %d" % svar)
            a("s_cbranch_scc1 KB_v%d" % (svar+1))
        S_ = copy.deepcopy(S0)
        run_main(a, S_, SPLITQ, NF, build_tasks(svar))
        assert not S_.pend
        stamp(a, dbg, 6)
        a("s_nop 7")
        for tau in sorted(range(12, 18), key=lambda t: t):
            if tau % 4 == svar: continue
            c2, tt, mt = tau_info(tau); ac = acc2_reg(c2, tt, mt)
            a("s_add_u32 s60, s50, %d" % ((tau*4 + svar)*1024))
            a("buffer_store_dwordx4 v[%d:%d], v3, s[28:31], s60 offen sc1" % (ac, ac+3)); S_.vm.issue()
        a("buffer_load_dword v13, v8, s[28:31], s49 offen sc1"); seq = S_.vm.issue()
        a("v_mov_b32 v9, 2")
        a("s_waitcnt vmcnt(0)")
        a("""
        s_mov_b64 exec, 1
        buffer_store_dword v9, v10, s[28:31], s52 offen sc1
        s_mov_b64 exec, -1
        """); S_.vm.issue()
        poll_check(a, S_.vm, seq, 13, 1, 0xf, 49, 8, "KB_p3a_%d" % svar)
        own01 = [t for t in range(12) if t % 4 == svar]
        for i, tau in enumerate(own01):
            for fn in fin_loads(tau, HO + 16*i, svar): fn(a, S_)
        a("buffer_load_dword v13, v8, s[28:31], s49 offen sc1"); seq = S_.vm.issue()
        own = [t for t in range(12, 18) if t % 4 == svar]
        poll_check(a, S_.vm, seq, 13, 2, 0xf, 49, 8, "KB_p3b_%d" % svar)
        for i, tau in enumerate(own):
            for fn in fin_loads(tau, VB + 16*i, svar): fn(a, S_)
        for i, tau in enumerate(own01):
            for fn in fin_math(tau, HO + 16*i, svar): fn(a, S_)
        for i, tau in enumerate(own):
            for fn in fin_math(tau, VB + 16*i, svar): fn(a, S_)
        if sdbg: stamp_out(a, True, 18, 2, "s[28:31]")
        if dbg:
            a("s_waitcnt vmcnt(0)")
            stamp(a, dbg, 7)
            stamp_out(a, dbg, 8, 2, "s[28:31]")
        a("s_endpgm")
    a.label("KB_end")
    a("s_endpgm")
    return dict(name="kb_kernel", grid=256, block=256, lds=KB_LDS, body=a.text(), vgpr=512, sgpr=102, accum=256)

if __name__ == "__main__":
    from gen_front import gen_k1, gen_k2
    hdr = open("sequential_preLN__ssm_conv_h3__dense_activation_relu__prompt.s.ref").read().split("; Override")[0]
    t_ = make_file([gen_k1(), gen_k2(), gen_kb(verbose=True)], hdr); open("full.s", "w").write(t_)
    open("full_dbg.s", "w").write(make_file([gen_k1(True), gen_k2(True), gen_kb(True)], hdr))
    open("full_sdbg.s", "w").write(make_file([gen_k1(), gen_k2(), gen_kb(sdbg=True)], hdr))
    open("full_qdbg.s", "w").write(make_file([gen_k1(), gen_k2(), gen_kb(sdbg=True, qst=list(range(246, 282, 2)))], hdr).replace("s_memrealtime", "s_memtime"))
    open("full_sdbg_touch.s", "w").write(make_file([gen_k1(), gen_k2(), gen_kb(sdbg=True, touch=True)], hdr).replace("s_memrealtime", "s_memtime"))
```

```python
import copy
from asmlib import *
from layout import *
from gen_front import srd, check_magic
from gen_kb import VM, order_units, areg_partner, acc2_reg, acc1_reg, rnd_pair, rnd1, ln_stats, ZL, RS, KB_LDS, RING, VB, HO, ACC

KNAME = "sequential_preLN__ssm_conv_h3__dense_activation_relu__prompt_kernel"
FA  = FLAGS
FZ  = FLAGS + 0x2000
FP1 = FLAGS + 0x3000
FP2 = FLAGS + 0x5000
F1  = FLAGS + 0x7000
F2  = FLAGS + 0x10000
F3  = FLAGS + 0x18000
SPIN_MAX = 20000
STAMP = 0x6000000 + BASE
SN0, SN1 = 88, 89
ZT = UG; ZTS = 8192
ZL = 110592; RS = ZL + 9216; LW = RS + 640
SBUF = 3*CH_BYTES + 6*8192
ONE_LDS = SBUF + 36864
XQ = 232

def stamp(a, dbg, i):
    if dbg: a("s_memrealtime s[%d:%d]" % (64+2*i, 65+2*i))

def flag_store(a, val, soff, vz, vt):
    a("s_add_u32 s61, s%d, %d" % (SN0, val))
    a("v_mov_b32 v%d, s61" % vt)
    a("v_mov_b32 v%d, s%d" % (vt+1, SN1))
    a("s_mov_b64 exec, 1")
    a("buffer_store_dwordx2 v[%d:%d], v%d, s[28:31], s%d offen sc1" % (vt, vt+1, vz, soff))
    a("s_mov_b64 exec, -1")

def flag_load(a, vd, vaddr, soff, wide=False, off=0):
    if wide: a("buffer_load_dwordx4 v[%d:%d], v%d, s[28:31], s%d offen offset:%d sc1" % (vd, vd+3, vaddr, soff, off))
    else:    a("buffer_load_dwordx2 v[%d:%d], v%d, s[28:31], s%d offen offset:%d sc1" % (vd, vd+1, vaddr, soff, off))

def poll(a, waitn, loads, need, vt, lab):
    a("s_waitcnt vmcnt(%d)" % min(63, waitn))
    a("s_mov_b32 s58, 0")
    a("s_add_u32 s59, s%d, %d" % (SN0, need))
    a.label(lab + "_chk")
    a("s_mov_b64 s[60:61], -1")
    for (vd, vaddr, soff, wide, off, mask) in loads:
        for h in range(2 if wide else 1):
            a("v_subrev_u32 v%d, s59, v%d" % (vt, vd+2*h))
            a("v_cmp_gt_u32 vcc, %d, v%d" % (16-need, vt))
            a("v_cmp_eq_u32 s[62:63], s%d, v%d" % (SN1, vd+2*h+1))
            a("s_nop 1")
            a("s_and_b64 vcc, vcc, s[62:63]")
            if mask != (1 << 64) - 1:
                a("s_mov_b32 s62, 0x%x" % (~mask & 0xffffffff))
                a("s_mov_b32 s63, 0x%x" % ((~mask >> 32) & 0xffffffff))
                a("s_or_b64 vcc, vcc, s[62:63]")
            a("s_and_b64 s[60:61], s[60:61], vcc")
    a("s_cmp_eq_u64 s[60:61], -1")
    a("s_cbranch_scc1 %s_ok" % lab)
    a("s_add_u32 s58, s58, 1")
    a("s_cmp_gt_u32 s58, %d" % SPIN_MAX)
    a("s_cbranch_scc1 %s_ok" % lab)
    a("s_sleep 1")
    for (vd, vaddr, soff, wide, off, mask) in loads: flag_load(a, vd, vaddr, soff, wide, off)
    a("s_waitcnt vmcnt(0)")
    a("s_branch %s_chk" % lab)
    a.label(lab + "_ok")
FULL = (1 << 64) - 1

def kv_item(a, R, sfx):
    a("v_and_b32 v%d, 7, v%d" % (R+1, R))
    a("v_lshrrev_b32 v%d, 3, v%d" % (R+2, R))
    a("v_lshlrev_b32 v%d, 3, v%d" % (R+1, R+1))
    a("v_add_u32 v%d, s44, v%d" % (R+1, R+1))
    a("v_mul_u32_u24 v%d, 1152, v%d" % (R+3, R+1))
    a("v_lshlrev_b32 v%d, 2, v%d" % (R+4, R+2))
    a("v_add3_u32 v%d, v%d, v%d, s45" % (R+3, R+3, R+4))
    a("v_add_u32 v%d, 4608, v%d" % (R+4, R+3))
    a("v_subrev_u32 v%d, 4608, v%d" % (R+5, R+3))
    a("v_cmp_eq_u32 vcc, 0, v%d" % (R+1))
    a("v_mov_b32 v%d, 0x80000000" % (R+6))
    a("s_nop 1")
    a("v_cndmask_b32 v%d, v%d, v%d, vcc" % (R+5, R+5, R+6))
    a("v_lshlrev_b32 v%d, 4, v%d" % (R+6, R+2))
    L = R + 8
    for i in range(4): a("buffer_load_dword v%d, v%d, s[8:11], 0 offen offset:%d nt" % (L+i, R+5, i*1152))
    for i in range(4): a("buffer_load_dword v%d, v%d, s[8:11], 0 offen offset:%d nt" % (L+4+i, R+3, i*1152))
    for i in range(4): a("buffer_load_dword v%d, v%d, s[8:11], 0 offen offset:%d nt" % (L+8+i, R+4, i*1152))
    a("buffer_load_dword v%d, v%d, s[12:15], 0 offen offset:3456 nt" % (L+12, R+5))
    for i in range(4): a("buffer_load_dword v%d, v%d, s[12:15], 0 offen offset:%d nt" % (L+13+i, R+3, i*1152))
    for i in range(4): a("buffer_load_dword v%d, v%d, s[12:15], 0 offen offset:%d nt" % (L+17+i, R+4, i*1152))
    a("buffer_load_dwordx4 v[%d:%d], v%d, s[24:27], s46 offen" % (R+32, R+35, R+6))
    a("v_lshlrev_b32 v%d, 14, v%d" % (R+6, R+2))
    a("v_lshlrev_b32 v%d, 1, v%d" % (R+7, R+1))
    a("v_sub_u32 v%d, 4080, v%d" % (R+7, R+7))
    a("v_add3_u32 v%d, v%d, v%d, s47" % (R+6, R+6, R+7))
    a("v_add_u32 v%d, 8192, v%d" % (R+7, R+6))

def kv_compute(a, R, W):
    L = R + 8
    for j in range(4):
        for c in range(2):
            src = R + 32 + 2*c + (j >> 1)
            if j & 1: a("v_and_b32 v%d, s43, v%d" % (W+2*j+c, src))
            else:     a("v_lshlrev_b32 v%d, 16, v%d" % (W+2*j+c, src))
    K = W + 8; V = W + 32; U = W + 50; P0 = W + 68; T = W + 76
    for i in range(12):
        a("v_lshlrev_b32 v%d, 16, v%d" % (K+2*i, L+i)); a("v_and_b32 v%d, s43, v%d" % (K+2*i+1, L+i))
    for e in range(9):
        a("v_lshlrev_b32 v%d, 16, v%d" % (V+2*e, L+12+e)); a("v_and_b32 v%d, s43, v%d" % (V+2*e+1, L+12+e))
    for e in range(9):
        P = [P0, P0+2, P0+4, P0+6]
        for q in range(4):
            j = 3 - q
            a("v_pk_mul_f32 v[%d:%d], v[%d:%d], v[%d:%d]" % (P[q], P[q]+1, K+2*(e+q), K+1+2*(e+q), W+2*j, W+1+2*j))
        for q in range(4): rnd_pair(a, P[q], T+q)
        for q in range(1, 4):
            a("v_pk_add_f32 v[%d:%d], v[%d:%d], v[%d:%d]" % (P0, P0+1, P0, P0+1, P[q], P[q]+1)); rnd_pair(a, P0, T)
        a("v_pk_mul_f32 v[%d:%d], v[%d:%d], v[%d:%d]" % (U+2*e, U+1+2*e, P0, P0+1, V+2*e, V+1+2*e))
    for c in range(2):
        for cp in range(2):
            base = L + (c*2+cp)*4
            for q in range(4):
                hi_e = (8 if cp else 7) - 2*q
                a("v_cvt_pk_bf16_f32 v%d, v%d, v%d" % (base+q, U+2*hi_e+c, U+2*(hi_e-1)+c))
    for c in range(2):
        for cp in range(2):
            base = L + (c*2+cp)*4
            a("s_mov_b32 s48, %d" % (UG + cp*4096))
            a("buffer_store_dwordx4 v[%d:%d], v%d, s[28:31], s48 offen sc1" % (base, base+3, R+6 if c == 0 else R+7))

def ln_consts(a, rs):
    a("""
    v_and_b32 v9, 7, v2              ; r
    v_lshrrev_b32 v10, 3, v2         ; l>>3
    v_mul_u32_u24 v13, 1152, v9
    v_lshl_add_u32 v13, v10, 4, v13  ; x voffset
    v_lshlrev_b32 v12, 3, v9
    v_add_u32 v12, %d, v12
    s_lshl_b32 s47, s39, 6
    v_add_u32 v11, s47, v12
    s_mul_i32 s46, s37, 1152
    s_mul_i32 s47, s39, 384
    s_add_u32 s46, s46, s47          ; x soffset
    """ % rs)

def gen_one(dbg=False, sdbg=False, LMAX=12, LB=6, FLAGD=(36, 36), CHKD=25,
            POLLS=((222, 3, 0, 9), (300, 5, 9, 15), (360, 7, 15, 21), (420, 9, 21, 27)), DSP=4, VPS=2, SSP=10, PSP=5, verbose=False):
    a = Asm()
    check_magic(1821, 16, 36, 2304); check_magic(7282, 16, 9, 288)
    a("s_cmp_ge_u32 s2, 256")
    a("s_cbranch_scc1 L_end")
    a("""
    s_getpc_b64 s[60:61]
    L_pc:
    s_lshr_b32 s62, s2, 3
    s_lshl_b32 s62, s62, 5
    v_lshrrev_b32 v1, 3, v0
    v_add_u32 v1, s62, v1
    v_min_u32 v1, NCODELINES, v1
    v_lshlrev_b32 v1, 7, v1
    global_load_dword v229, v1, s[60:61]
    """)
    a("""
    s_load_dwordx16 s[64:79], s[0:1], 0
    s_load_dwordx8 s[80:87], s[0:1], 64
    s_memrealtime s[90:91]
    v_lshrrev_b32 v1, 6, v0
    v_and_b32 v2, 63, v0
    v_readfirstlane_b32 s39, v1
    v_lshlrev_b32 v3, 4, v2
    s_mov_b32 s43, 0xffff0000
    s_waitcnt lgkmcnt(0)
    """)
    srd(a, 8, 66, 2359296); srd(a, 12, 68, 2359296); srd(a, 16, 64, 2359296); srd(a, 20, 82, 2359296)
    srd(a, 24, 70, 4608); srd(a, 28, 86, WS_SIZE); srd(a, 4, 84, 256)
    a("s_mov_b32 s92, s78\n s_mov_b32 s93, s79\n s_mov_b32 s94, s80\n s_mov_b32 s95, s81\n s_mov_b32 s96, s72\n s_mov_b32 s97, s73\n s_mov_b32 s98, s74\n s_mov_b32 s99, s75")
    stamp(a, dbg, 0)
    a("""
    s_or_b32 s44, s2, s39
    s_cmp_lg_u32 s44, 0
    s_cbranch_scc1 L_nonce_skip
    s_and_b32 s44, s90, 0xfffffff0
    s_or_b32 s44, s44, 0x80000000
    v_mov_b32 v4, s44
    v_mov_b32 v5, 0
    s_mov_b64 exec, 1
    buffer_store_dword v4, v5, s[4:7], 0 offen sc1
    s_mov_b64 exec, -1
    L_nonce_skip:
    """)
    a("""
    s_lshr_b32 s33, s2, 3            ; rb / i
    s_and_b32 s38, s2, 7             ; cg
    s_lshl_b32 s44, s33, 6
    s_mul_i32 s45, s38, 144
    s_mul_i32 s46, s38, 576
    s_mul_i32 s47, s38, 589824       ; 72cg*8192
    v_mov_b32 v16, v0
    """)
    kv_item(a, 16, "a")
    a("v_mov_b32 v58, 0x80000000\n v_mov_b32 v59, 0x80000000")
    a("s_cmp_lg_u32 s39, 3")
    a("s_cbranch_scc1 L_kvb_skip")
    a("v_add_u32 v52, 256, v2")
    a("s_mov_b32 exec_hi, 0")
    kv_item(a, 52, "b")
    a("s_mov_b32 exec_hi, -1")
    a.label("L_kvb_skip")
    a("""
    s_and_b32 s32, s2, 3             ; s
    s_and_b32 s34, s33, 3            ; n
    s_lshr_b32 s35, s33, 2
    s_bfe_u32 s36, s2, 0x10002
    s_lshl_b32 s36, s36, 3
    s_add_u32 s35, s35, s36          ; m
    s_lshl_b32 s36, s32, 2
    s_add_u32 s36, s36, s34          ; j
    s_lshl_b32 s37, s35, 7
    s_lshl_b32 s40, s36, 3
    s_add_u32 s37, s37, s40          ; R0
    s_mul_i32 s40, s39, 9216
    s_mul_i32 s41, s36, %d
    s_add_u32 s41, s41, s40
    s_add_u32 s41, s41, %d
    s_add_u32 s42, s41, %d
    v_mov_b32 v5, 0
    buffer_load_dword v4, v5, s[4:7], 0 offen sc1
    """ % (SLICE, W1P, W2P - W1P))
    a("s_cmp_lg_u32 s39, 3")
    a("s_cbranch_scc1 L_kva")
    a("s_waitcnt vmcnt(23)")
    kv_compute(a, 16, 100)
    a("s_waitcnt vmcnt(5)")
    a("s_mov_b32 exec_hi, 0")
    kv_compute(a, 52, 100)
    a("s_mov_b32 exec_hi, -1")
    a("s_branch L_kvd")
    a.label("L_kva")
    a("s_waitcnt vmcnt(1)")
    kv_compute(a, 16, 100)
    a.label("L_kvd")
    stamp(a, dbg, 1)
    ln_consts(a, 112640)
    a("s_cmp_ge_u32 s33, 24")
    a("s_cbranch_scc1 L_sec_pack")
    def x_loads():
        a("s_min_u32 s47, s39, 2")
        a("s_mul_i32 s47, s47, 384")
        a("s_mul_i32 s46, s37, 1152")
        a("s_add_u32 s46, s46, s47")
        for it in range(3):
            a("buffer_load_dwordx4 v[%d:%d], v13, s[16:19], s46 offen offset:%d nt" % (XQ+4*it, XQ+3+4*it, it*128))
    x_loads()
    srd(a, 24, 96, 2359296)
    a("s_mul_i32 s48, s38, 72\n s_mul_i32 s49, s33, 3\n s_add_u32 s48, s48, s49          ; d0")
    a("s_mul_i32 s49, s39, %d" % KC_STRIDE)
    a("s_lshl_b32 s50, s39, 2")
    for ch in range(3):
        a("s_add_u32 s51, s48, %d" % ch)
        a("s_lshl_b32 s51, s51, 12")
        a("s_add_u32 s51, s51, s50")
        a("s_add_u32 s51, s51, 4")
        a("s_add_u32 m0, s49, %d" % (ch*CH_BYTES + 64))
        a("s_nop 0")
        for q in range(4): a("buffer_load_dwordx4 v3, s[24:27], s51 offen offset:%d nt lds" % (q*1024))
    a("""
    s_min_u32 s49, s39, 2
    v_lshrrev_b32 v4+100, 4, v2
    """.replace("v4+100", "v104").strip().split("\n")[0])
    a("""
    v_lshrrev_b32 v104, 4, v2        ; a
    v_and_b32 v105, 15, v2           ; dw
    v_add_u32 v106, v104, v105
    v_subrev_u32 v106, 15, v106
    v_lshlrev_b32 v107, 2, v106
    v_cmp_gt_i32 vcc, 0, v106
    v_mov_b32 v108, 0x80000000
    s_nop 1
    v_cndmask_b32 v107, v107, v108, vcc
    s_add_u32 s51, s48, s49
    s_lshl_b32 s51, s51, 12
    buffer_load_dword v109, v107, s[24:27], s51 offen
    s_mul_i32 s49, s49, %d
    v_mul_u32_u24 v104, %d, v104
    v_lshl_add_u32 v104, v105, 2, v104
    v_add_u32 v104, s49, v104
    v_mov_b32 v110, 0
    v_mov_b32 v111, 0
    v_lshlrev_b32 v112, 3, v2
    v_add_u32 v112, s49, v112
    v_cmp_gt_u32 vcc, 56, v2
    s_and_saveexec_b64 s[50:51], vcc
    ds_write_b64 v112, v[110:111] offset:%d
    ds_write_b64 v112, v[110:111] offset:%d
    s_mov_b64 exec, s[50:51]
    s_waitcnt vmcnt(16)
    s_branch L_sec_done
    """ % (CH_BYTES, KC_STRIDE, 4*KC_STRIDE + 4096, 4*KC_STRIDE + UC_STRIDE + 4096))
    a.label("L_sec_pack")
    x_loads()
    a("s_waitcnt vmcnt(3)")
    a.label("L_sec_done")
    a("s_mov_b32 s58, 0")
    a.label("L_nonce_chk")
    a("""
    v_readfirstlane_b32 s%d, v4
    s_nop 3
    s_cmp_lg_u32 s%d, 0
    s_cbranch_scc1 L_nonce_ok
    s_add_u32 s58, s58, 1
    s_cmp_gt_u32 s58, %d
    s_cbranch_scc1 L_nonce_ok
    s_sleep 1
    buffer_load_dword v4, v5, s[4:7], 0 offen sc1
    s_waitcnt vmcnt(0)
    s_branch L_nonce_chk
    L_nonce_ok:
    s_xor_b32 s%d, s%d, 0x5bd1e995
    s_lshl_b32 s48, s38, 5
    s_add_u32 s48, s48, s33
    s_lshl_b32 s48, s48, 2
    s_add_u32 s48, s48, s39
    s_lshl_b32 s48, s48, 3
    s_add_u32 s48, s48, %d
    """ % (SN0, SN0, SPIN_MAX, SN1, SN0, FA))
    flag_store(a, 1, 48, 5, 6)
    stamp(a, dbg, 2)
    a("""
    s_lshl_b32 s48, s35, 2
    s_add_u32 s48, s48, s32
    s_lshl_b32 s48, s48, 2
    s_add_u32 s48, s48, s39
    s_lshl_b32 s48, s48, 7
    s_add_u32 s48, s48, %d
    buffer_load_dword v230, v5, s[28:31], s48 offen sc1
    s_lshl_b32 s48, s35, 2
    s_add_u32 s48, s48, s34
    s_lshl_b32 s48, s48, 2
    s_add_u32 s48, s48, s39
    s_lshl_b32 s48, s48, 7
    s_add_u32 s48, s48, %d
    buffer_load_dword v230, v5, s[28:31], s48 offen sc1
    s_lshl_b32 s48, s35, 2
    s_add_u32 s48, s48, s39
    s_lshl_b32 s48, s48, 7
    s_add_u32 s48, s48, %d
    buffer_load_dword v230, v5, s[28:31], s48 offen sc1
    s_lshl_b32 s48, s2, 3
    s_add_u32 s48, s48, %d
    buffer_load_dword v230, v5, s[28:31], s48 offen sc1
    """ % (F2, F3, F1, FZ))
    a("s_cmp_ge_u32 s33, 24")
    a("s_cbranch_scc1 L_pack")

    def q_precompute(waitn, w3=True):
        l3 = a.newlabel("L_q3"); ld = a.newlabel("L_qd")
        if w3:
            a("s_cmp_eq_u32 s39, 3")
            a("s_cbranch_scc1 %s" % l3)
        a("s_waitcnt vmcnt(%d)" % waitn)
        X = 120; T = 150
        for i in range(12):
            a("v_lshlrev_b32 v%d, 16, v%d" % (X+2*i, XQ+i)); a("v_and_b32 v%d, s43, v%d" % (X+2*i+1, XQ+i))
        ln_stats(a, X, T, 0)
        for i in range(12):
            d = 170
            a("v_pk_add_f32 v[%d:%d], v[%d:%d], v[%d:%d]" % (d, d+1, X+2*i, X+2*i+1, T, T+1)); rnd_pair(a, d, d+4)
            a("v_pk_mul_f32 v[%d:%d], v[%d:%d], v[%d:%d]" % (d, d+1, d, d+1, T+2, T+3))
            a("v_cvt_pk_bf16_f32 v%d, v%d, v%d" % (XQ+12+i, d, d+1))
        if w3:
            a("s_branch %s" % ld)
            a.label(l3); a("s_barrier"); a.label(ld)

    def pack_setup(nper):
        a("""
        s_movk_i32 s44, 1821
        s_movk_i32 s45, 9216
        s_mul_i32 s49, s39, %d
        s_mul_i32 s57, s39, %d
        """ % (64*nper, 1024*nper))
        for i in range(nper):
            a("v_add_u32 v196, s49, v2")
            if i: a("v_add_u32 v196, %d, v196" % (64*i))
            a("v_mul_lo_u32 v197, v196, s44")
            a("v_lshrrev_b32 v197, 16, v197")
            a("v_mul_u32_u24 v198, 36, v197")
            a("v_sub_u32 v198, v196, v198")
            a("v_mul_lo_u32 v197, v197, s45")
            a("v_lshl_add_u32 v%d, v198, 4, v197" % (176+i))
        srd(a, 8, 92, 5308416); srd(a, 12, 94, 5308416)
    def pack_setup2():
        a("""
        v_lshrrev_b32 v192, 4, v2
        v_bfe_u32 v193, v2, 2, 2
        v_lshl_add_u32 v194, v192, 3, v193
        v_mul_u32_u24 v194, 576, v194
        v_and_b32 v195, 3, v2
        v_lshl_add_u32 v194, v195, 3, v194
        s_lshr_b32 s46, s39, 1
        s_and_b32 s47, s39, 1
        s_mul_i32 s50, s46, 18432
        s_mul_i32 s51, s47, 288
        s_add_u32 s50, s50, s51
        v_add_u32 v189, s50, v194
        v_lshl_add_u32 v194, v192, 2, v193
        v_mul_u32_u24 v194, 1152, v194
        v_lshl_add_u32 v194, v195, 3, v194
        v_mov_b32 v190, v194
        """)
    def conv_strip(f1, f2):
        l2 = a.newlabel("L_cs"); ld = a.newlabel("L_csd")
        a("s_cmp_ge_u32 s2, 144"); a("s_cbranch_scc1 %s" % l2)
        a("s_mov_b32 s52, s2"); f1(SBUF); a("s_branch %s" % ld)
        a.label(l2); a("s_sub_u32 s52, s2, 144"); f2(SBUF)
        a.label(ld)
    def issue_w1(slot, nper=12):
        a("s_mul_i32 s53, s52, 7282\n s_lshr_b32 s53, s53, 16\n s_mul_i32 s54, s53, 9\n s_sub_u32 s54, s52, s54")
        a("s_mul_i32 s54, s54, 589824\n s_mul_i32 s53, s53, 576\n s_add_u32 s54, s54, s53")
        for i in range(nper):
            a("s_add_u32 m0, s57, %d" % (slot + 1024*i))
            a("s_nop 0")
            a("buffer_load_dwordx4 v%d, s[8:11], s54 offen nt lds" % (176+i))
    def issue_w2(slot, nper=12):
        a("s_mul_i32 s54, s52, 36864\n s_add_u32 s54, s54, s57")
        for i in range(nper):
            if i % 4 == 0:
                a("s_add_u32 m0, s57, %d" % (slot + 1024*i))
                a("s_add_u32 s53, s54, %d" % (1024*i))
            a("buffer_load_dwordx4 v3, s[12:15], s53 offen offset:%d nt lds" % ((i % 4)*1024))
    def proc_w1(slot, D):
        a("v_add_u32 v191, %d, v189" % (slot))
        for i in range(9):
            a("ds_read_b64_tr_b16 v[%d:%d], v191 offset:%d" % (D+4*i, D+1+4*i, 32*i))
            a("ds_read_b64_tr_b16 v[%d:%d], v191 offset:%d" % (D+2+4*i, D+3+4*i, 32*i + 4*576))
        a("s_mul_i32 s53, s52, 7282\n s_lshr_b32 s53, s53, 16\n s_mul_i32 s54, s53, 9\n s_sub_u32 s54, s52, s54")
        a("s_mul_i32 s50, s53, %d\n s_add_u32 s50, s50, %d" % (SLICE, W1P))
        a("s_lshl_b32 s51, s54, 1\n s_add_u32 s51, s51, s46")
        a("s_lshl_b32 s53, s53, 9\n s_lshl_b32 s54, s54, 5\n s_add_u32 s49, s53, s54\n s_lshl_b32 s54, s39, 3\n s_add_u32 s49, s49, s54\n s_add_u32 s49, s49, %d" % FP1)
        for i in range(9):
            a("s_mul_i32 s53, s47, 9\n s_add_u32 s53, s53, %d" % i)
            a("s_mul_i32 s54, s51, 6\n s_add_u32 s54, s54, s53\n s_lshl_b32 s54, s54, 10")
            a("s_lshr_b32 s55, s53, 1\n s_mul_i32 s55, s55, 36\n s_lshl_b32 s56, s51, 1\n s_add_u32 s55, s55, s56")
            a("s_and_b32 s56, s53, 1\n s_add_u32 s55, s55, s56\n s_lshl_b32 s55, s55, 10")
            a("s_cmp_lt_u32 s53, 6\n s_cselect_b32 s55, s54, s55\n s_add_u32 s55, s55, s50")
            a("s_waitcnt lgkmcnt(%d)" % min(14, 16 - 2*i))
            a("buffer_store_dwordx4 v[%d:%d], v3, s[28:31], s55 offen sc1" % (D+4*i, D+3+4*i))
    def proc_w2(slot, vw, D):
        a("v_add_u32 v191, %d, v190" % (slot + 288*vw))
        for i in range(9):
            a("ds_read_b64_tr_b16 v[%d:%d], v191 offset:%d" % (D+4*i, D+1+4*i, 32*i))
            a("ds_read_b64_tr_b16 v[%d:%d], v191 offset:%d" % (D+2+4*i, D+3+4*i, 32*i + 16*1152))
        a("""
        s_mul_i32 s53, s52, 1821
        s_lshr_b32 s53, s53, 16          ; s
        s_mul_i32 s54, s53, 36
        s_sub_u32 s54, s52, s54          ; kk%%36
        s_lshl_b32 s60, s53, 2
        s_add_u32 s60, s60, VW
        s_lshl_b32 s49, s60, 9
        s_lshl_b32 s55, s54, 3
        s_add_u32 s49, s49, s55
        s_add_u32 s49, s49, %d           ; flag addr
        s_mul_i32 s55, s54, 7282
        s_lshr_b32 s55, s55, 16          ; nb
        s_mul_i32 s56, s55, 9
        s_sub_u32 s56, s54, s56          ; k9
        s_sub_u32 s50, s55, VW
        s_sub_u32 s50, s50, 1
        s_and_b32 s50, s50, 3            ; pr
        s_mul_i32 s51, s56, 3
        s_add_u32 s51, s51, s50
        s_add_u32 s53, s51, 27
        s_add_u32 s54, s51, 45
        s_add_u32 s57, s51, 45
        s_add_u32 s61, s51, 54
        s_cmp_ge_u32 s56, 6
        s_cselect_b32 s53, s57, s53
        s_cselect_b32 s54, s61, s54
        s_add_u32 s55, s51, 81
        s_add_u32 s57, s56, 9
        s_add_u32 s61, s56, 18
        s_cmp_eq_u32 s50, 3
        s_cselect_b32 s53, s56, s53
        s_cselect_b32 s54, s57, s54
        s_cselect_b32 s55, s61, s55
        s_mul_i32 s60, s60, %d
        s_add_u32 s60, s60, %d
        s_mul_i32 s53, s53, 3072
        s_mul_i32 s54, s54, 3072
        s_mul_i32 s55, s55, 3072
        s_add_u32 s53, s53, s60
        s_add_u32 s54, s54, s60
        s_add_u32 s55, s55, s60
        """.replace("VW", str(vw)) % (FP2, SLICE, W2P))
        for i in range(9):
            a("s_waitcnt lgkmcnt(%d)" % min(14, 16 - 2*i))
            a("buffer_store_dwordx4 v[%d:%d], v3, s[28:31], s%d offen offset:%d sc1" % (D+4*i, D+3+4*i, 53 + i//3, (i%3)*1024))
    srd(a, 4, 98, 1152)
    a("""
    s_mul_i32 s48, s38, 72
    s_mul_i32 s49, s33, 3
    s_add_u32 s48, s48, s49          ; d0
    s_lshl_b32 s49, s48, 1
    buffer_load_ushort v24, v5, s[4:7], s49 offen
    buffer_load_ushort v25, v5, s[4:7], s49 offen offset:2
    buffer_load_ushort v26, v5, s[4:7], s49 offen offset:4
    s_cmp_eq_u32 s39, 3
    s_cbranch_scc1 L_cw3
    """)
    q_precompute(21, False)
    a("s_waitcnt vmcnt(0)")
    a("ds_write_b32 v104, v109")
    a("s_branch L_cwd")
    a.label("L_cw3")
    a("s_barrier")
    a("""
    s_lshl_b32 s49, s38, 10
    s_add_u32 s49, s49, %d
    """ % FA)
    flag_load(a, 16, 3, 49, True)
    poll(a, 0, [(16, 3, 49, True, 0, FULL)], 1, 20, "L_pfa")
    stamp(a, dbg, 3)
    for ch in range(3):
        for cp in range(2):
            a("s_add_u32 s52, s48, %d" % ch)
            a("s_lshl_b32 s52, s52, 13")
            a("s_add_u32 s52, s52, %d" % (UG + cp*4096))
            a("s_mov_b32 m0, %d" % (4*KC_STRIDE + ch*CH_BYTES + cp*UC_STRIDE))
            a("s_nop 0")
            for q in range(4): a("buffer_load_dwordx4 v3, s[28:31], s52 offen offset:%d sc1 lds" % (q*1024))
    a("s_waitcnt vmcnt(0)")
    a.label("L_cwd")
    a("""
    v_and_b32 v4, 15, v2
    v_lshrrev_b32 v5, 4, v2
    v_and_b32 v6, 3, v4
    v_lshrrev_b32 v7, 2, v4
    v_sub_u32 v7, v7, v5
    v_lshlrev_b32 v7, 4, v7
    v_add_u32 v7, 48, v7
    v_mul_u32_u24 v6, %d, v6
    v_add_u32 v20, v6, v7
    v_and_b32 v6, 1, v4
    v_lshrrev_b32 v7, 1, v4
    v_lshlrev_b32 v7, 6, v7
    v_lshl_add_u32 v7, v5, 4, v7
    v_sub_u32 v7, %d, v7
    v_mul_u32_u24 v6, %d, v6
    v_add_u32 v21, v6, v7
    """ % (KC_STRIDE, 496 + 4*KC_STRIDE, UC_STRIDE))
    a("s_waitcnt lgkmcnt(0)")
    a("s_barrier")
    stamp(a, dbg, 4)
    a("s_mov_b32 s8, s92\n s_mov_b32 s9, s93\n s_mov_b32 s10, 5308416\n s_mov_b32 s11, 0x20000")
    a("s_mov_b32 s12, s94\n s_mov_b32 s13, s95\n s_mov_b32 s14, 5308416\n s_mov_b32 s15, 0x20000")
    a("s_cmp_eq_u32 s39, 3")
    a("s_cbranch_scc1 L_nostrip")
    a("s_cmp_ge_u32 s2, 144")
    a("s_cbranch_scc1 L_nostrip")
    a("s_mul_i32 s57, s39, 12288")
    a("s_mov_b32 s52, s2")
    issue_w2(SBUF, 12)
    a.label("L_nostrip")
    RED = 3*CH_BYTES
    units_of = {0: [(0,p) for p in range(6)], 1: [(0,6),(0,7)]+[(1,p) for p in range(4)],
                2: [(1,p) for p in range(4,8)]+[(2,0),(2,1)], 3: [(2,p) for p in range(2,8)]}
    setid = {0: {0:0}, 1: {0:1, 1:2}, 2: {1:3, 2:4}, 3: {2:5}}
    for w in range(4):
        if w: a.label("L_mm%d" % w)
        if w < 3:
            a("s_cmp_lg_u32 s39, %d" % w)
            a("s_cbranch_scc1 L_mm%d" % (w+1))
        units = units_of[w]
        chs = sorted(set(c for c,_ in units))
        accbase = {c: 160 + 32*i for i, c in enumerate(chs)}
        started = set()
        def reads(ui):
            ch, phi = units[ui]
            fb = 32 + 64*(ui & 1)
            out = []
            for n in range(8):
                out.append("ds_read_b128 v[%d:%d], v21 offset:%d" % (fb+32+4*n, fb+35+4*n, ch*CH_BYTES + 3584 - 512*n + 64*phi))
                out.append("ds_read_b128 v[%d:%d], v20 offset:%d" % (fb+4*n, fb+3+4*n, ch*CH_BYTES + 512*n + 64*phi))
            return out
        for l in reads(0): a(l)
        for ui, (ch, phi) in enumerate(units):
            fb = 32 + 64*(ui & 1)
            nxt = reads(ui+1) if ui+1 < len(units) else []
            k = 0
            for t in range(8):
                if ui == 0: a("s_waitcnt lgkmcnt(%d)" % min(15, 14 - 2*t + (16 - len(nxt) if nxt is not None else 0)))
                elif t == 0: a("s_waitcnt lgkmcnt(0)")
                for ap in range(t+1):
                    ac = accbase[ch] + 4*t
                    j = t - ap
                    c_ = "v[%d:%d]" % (ac, ac+3) if (ch, t) in started else "0"
                    started.add((ch, t))
                    a("v_mfma_f32_16x16x32_bf16 v[%d:%d], v[%d:%d], v[%d:%d], %s" % (ac, ac+3, fb+32+4*j, fb+35+4*j, fb+4*ap, fb+3+4*ap, c_))
                    k += 1
                    if k % 2 == 0 and nxt and (ui > 0 or t >= 4): a(nxt.pop(0))
            while nxt: a(nxt.pop(0))
        a("s_nop 7\n s_nop 7")
        a("v_lshlrev_b32 v6, 8, v5\n v_lshl_add_u32 v6, v4, 3, v6")
        for c in chs:
            a("v_add_u32 v7, %d, v6" % (RED + setid[w][c]*8192))
            for t in range(8):
                ac = accbase[c] + 4*t
                a("ds_write_b64 v7, v[%d:%d] offset:%d" % (ac, ac+1, 1024*t))
                a("ds_write_b64 v7, v[%d:%d] offset:%d" % (ac+2, ac+3, 1024*t + 128))
        if w < 3: a("s_branch L_mmd")
    a.label("L_mmd")
    stamp(a, dbg, 5)
    a("""
    v_lshlrev_b32 v9, 5, v0
    v_lshlrev_b32 v10, 4, v0
    v_sub_u32 v11, %d, v10
    s_waitcnt lgkmcnt(0)
    s_barrier
    """ % (4080 + 4*KC_STRIDE))
    for c in range(3):
        b = 32 + 24*c
        a("v_add_u32 v12, %d, v9" % (RED + 2*c*8192))
        a("ds_read_b128 v[%d:%d], v12" % (b, b+3))
        a("ds_read_b128 v[%d:%d], v12 offset:16" % (b+4, b+7))
        a("ds_read_b128 v[%d:%d], v12 offset:8192" % (b+8, b+11))
        a("ds_read_b128 v[%d:%d], v12 offset:8208" % (b+12, b+15))
        a("ds_read_b128 v[%d:%d], v11 offset:%d" % (b+16, b+19, c*CH_BYTES + UC_STRIDE))
    for c in range(3): a("v_lshlrev_b32 v%d, 16, v%d" % (24+c, 24+c))
    for c in range(3):
        b = 32 + 24*c
        a("s_waitcnt lgkmcnt(%d)" % (10 - 5*c))
        for e in range(0, 8, 2):
            a("v_pk_add_f32 v[%d:%d], v[%d:%d], v[%d:%d]" % (b+e, b+e+1, b+e, b+e+1, b+8+e, b+9+e))
        for e in range(0, 8, 2): rnd_pair(a, b+e, b+8)
        for q in range(4):
            e_hi = 7 - 2*q
            a("v_lshlrev_b32 v%d, 16, v%d" % (b+8+e_hi, b+16+q))
            a("v_and_b32 v%d, s43, v%d" % (b+8+e_hi-1, b+16+q))
        for e in range(8): a("v_mul_f32 v%d, v%d, v%d" % (b+8+e, b+8+e, 24+c))
        for e in range(0, 8, 2): rnd_pair(a, b+8+e, b+16)
        for e in range(0, 8, 2):
            a("v_pk_add_f32 v[%d:%d], v[%d:%d], v[%d:%d]" % (b+e, b+e+1, b+e, b+e+1, b+8+e, b+9+e))
        for e in range(0, 8, 2): a("v_cvt_pk_bf16_f32 v%d, v%d, v%d" % (b+16+e//2, b+e, b+e+1))
        a("ds_write_b128 v10, v[%d:%d] offset:%d" % (b+16, b+19, c*CH_BYTES))
    a("""
    s_waitcnt lgkmcnt(0)
    s_barrier
    s_cmp_lg_u32 s39, 3
    s_cbranch_scc1 L_fzs
    """)
    for c in range(3):
        for q in range(4): a("ds_read_b128 v[%d:%d], v3 offset:%d" % (32+16*c+4*q, 35+16*c+4*q, c*CH_BYTES + q*1024))
    for c in range(3):
        a("s_add_u32 s49, s48, %d" % c)
        a("s_mul_i32 s49, s49, %d" % ZTS)
        a("s_add_u32 s49, s49, %d" % ZT)
        for q in range(4):
            a("s_waitcnt lgkmcnt(%d)" % (11 - 4*c - q))
            a("buffer_store_dwordx4 v[%d:%d], v3, s[28:31], s49 offen offset:%d sc1" % (32+16*c+4*q, 35+16*c+4*q, q*1024))
    a("""
    s_mul_i32 s49, s38, 24
    s_add_u32 s49, s49, s33
    s_lshl_b32 s49, s49, 3
    s_add_u32 s49, s49, %d
    v_mov_b32 v5, 0
    s_waitcnt vmcnt(0)
    """ % FZ)
    flag_store(a, 1, 49, 5, 6)
    a.label("L_fzs")
    stamp(a, dbg, 6)
    a("s_waitcnt vmcnt(0)")
    a("s_barrier")
    a("s_branch L_join")

    a.label("L_pack")
    pack_setup(9); pack_setup2()
    a("s_sub_u32 s48, s2, 192")
    a("v_mov_b32 v5, 0")
    a("s_mov_b32 s52, s48"); issue_w1(0, 9)
    a("s_add_u32 s52, s48, 64"); issue_w1(36864, 9)
    a("s_cmp_ge_u32 s48, 16")
    a("s_cbranch_scc1 L_pack2")
    a("s_add_u32 s52, s48, 128"); issue_w1(73728, 9)
    q_precompute(32)
    a("s_waitcnt vmcnt(18)\n s_barrier")
    a("s_mov_b32 s52, s48"); proc_w1(0, 32); a("s_mov_b32 s100, s49")
    a("s_waitcnt vmcnt(18)\n s_barrier")
    a("s_add_u32 s52, s48, 64"); proc_w1(36864, 68); a("s_mov_b32 s101, s49")
    a("s_waitcnt vmcnt(18)\n s_barrier")
    a("s_add_u32 s52, s48, 128"); proc_w1(73728, 104)
    a("s_waitcnt vmcnt(0)")
    flag_store(a, 1, 49, 5, 6)
    a("s_branch L_pack_fin")
    a.label("L_pack2")
    q_precompute(23)
    a("s_waitcnt vmcnt(9)\n s_barrier")
    a("s_mov_b32 s52, s48"); proc_w1(0, 32); a("s_mov_b32 s100, s49")
    a("s_waitcnt vmcnt(9)\n s_barrier")
    a("s_add_u32 s52, s48, 64"); proc_w1(36864, 68); a("s_mov_b32 s101, s49")
    a.label("L_pack_fin")
    a("s_waitcnt vmcnt(0)")
    flag_store(a, 1, 100, 5, 6)
    flag_store(a, 1, 101, 5, 6)
    stamp(a, dbg, 6)
    a("s_barrier")

    a.label("L_join")
    vm = VM()
    for sl in range(4): a("v_add_u32 v%d, %d, v3" % (4+sl, sl*36864))
    a("s_mov_b32 s45, %d" % FZ)
    def dma(stage, i, S_=None):
        slot = stage % 4
        if i % 4 == 0:
            a_ = a if S_ is None else S_.a
            a_("s_add_u32 m0, s40, %d" % (slot*36864 + i*1024))
            if stage < 9: a_("s_add_u32 s44, s41, %d" % (stage*36864 + i*1024))
            else:         a_("s_add_u32 s44, s42, %d" % ((stage-9)*36864 + i*1024))
        (a if S_ is None else S_.a)("buffer_load_dwordx4 v3, s[28:31], s44 offen offset:%d sc1 lds" % ((i % 4)*1024))
    ln_consts(a, RS)
    a("""
    v_lshlrev_b32 v8, 13, v2
    s_min_u32 s50, s39, 2
    s_mul_i32 s48, s50, 1572864
    s_lshl_b32 s49, s37, 1
    s_add_u32 s48, s48, s49
    s_add_u32 s48, s48, %d
    s_mul_i32 s49, s50, 3072
    v_lshrrev_b32 v14, 4, v2
    v_lshlrev_b32 v14, 8, v14
    v_bfe_u32 v15, v2, 1, 1
    v_lshl_add_u32 v14, v15, 7, v14
    v_bfe_u32 v15, v2, 2, 2
    v_lshl_add_u32 v14, v15, 4, v14
    v_and_b32 v15, 1, v2
    v_lshl_add_u32 v14, v15, 3, v14
    v_add_u32 v14, s49, v14
    v_add_u32 v14, %d, v14
    s_cmp_eq_u32 s39, 3
    s_cbranch_scc1 L_w3
    """ % (ZT, ZL))
    a("v_mov_b32 v150, %d" % LW)
    a("s_cmp_lg_u32 s39, 0")
    a("s_cbranch_scc1 L_fz_lds")
    flag_load(a, 20, 3, 45, True); flag_load(a, 24, 3, 45, True, 1024)
    poll(a, 0, [(20, 3, 45, True, 0, FULL), (24, 3, 45, True, 1024, (1 << 32) - 1)], 1, 18, "L_pfz")
    a("v_mov_b32 v151, s%d" % SN0)
    a("ds_write_b32 v150, v151")
    a("s_branch L_fz_go")
    a.label("L_fz_lds")
    a("s_mov_b32 s58, 0")
    a.label("L_fz_spin")
    a("""
    ds_read_b32 v151, v150
    s_waitcnt lgkmcnt(0)
    v_readfirstlane_b32 s59, v151
    s_add_u32 s58, s58, 1
    s_cmp_eq_u32 s59, s%d
    s_cbranch_scc1 L_fz_go
    s_cmp_gt_u32 s58, 4000000
    s_cbranch_scc1 L_fz_go
    s_sleep 1
    s_branch L_fz_spin
    """ % SN0)
    a.label("L_fz_go")
    stamp(a, dbg, 7)
    for it in range(3):
        a("s_add_u32 m0, s49, %d" % (ZL + it*1024))
        a("s_add_u32 s47, s48, %d" % (it*524288))
        a("buffer_load_dwordx4 v8, s[28:31], s47 offen sc1 lds")
    X = 40; Q = 64; Hh = 88; T = 120
    for i in range(12):
        a("v_lshlrev_b32 v%d, 16, v%d" % (X+2*i, XQ+i)); a("v_and_b32 v%d, s43, v%d" % (X+2*i+1, XQ+i))
        a("v_lshlrev_b32 v%d, 16, v%d" % (Q+2*i, XQ+12+i)); a("v_and_b32 v%d, s43, v%d" % (Q+2*i+1, XQ+12+i))
    a("s_waitcnt vmcnt(0)")
    stamp(a, dbg, 8)
    for it in range(3):
        a("ds_read_b64_tr_b16 v[%d:%d], v14 offset:%d" % (28+4*it, 29+4*it, it*1024))
        a("ds_read_b64_tr_b16 v[%d:%d], v14 offset:%d" % (30+4*it, 31+4*it, it*1024 + 64))
    a("s_waitcnt lgkmcnt(0)")
    for i in range(12):
        d = 140
        a("v_lshlrev_b32 v%d, 16, v%d" % (d+2, 28+i))
        a("v_and_b32 v%d, s43, v%d" % (d+3, 28+i))
        a("v_pk_mul_f32 v[%d:%d], v[%d:%d], v[%d:%d]" % (d, d+1, Q+2*i, Q+2*i+1, d+2, d+3)); rnd_pair(a, d, d+4)
        a("v_pk_add_f32 v[%d:%d], v[%d:%d], v[%d:%d]" % (Hh+2*i, Hh+2*i+1, X+2*i, X+2*i+1, d, d+1)); rnd_pair(a, Hh+2*i, 16+i)
    a("s_add_u32 s47, s46, %d" % HB)
    for it in range(3):
        a("buffer_store_dwordx4 v[%d:%d], v13, s[28:31], s47 offen offset:%d sc1" % (16+4*it, 19+4*it, it*128))
    ln_stats(a, Hh, T, 1, spin=SN0)
    for i in range(12):
        d = 140
        a("v_pk_add_f32 v[%d:%d], v[%d:%d], v[%d:%d]" % (d, d+1, Hh+2*i, Hh+2*i+1, T, T+1)); rnd_pair(a, d, d+4)
        a("v_pk_mul_f32 v[%d:%d], v[%d:%d], v[%d:%d]" % (d, d+1, d, d+1, T+2, T+3))
        a("v_cvt_pk_bf16_f32 v%d, v%d, v%d" % (28+i, d, d+1))
    a("""
    v_lshrrev_b32 v8, 5, v2
    v_lshlrev_b32 v8, 10, v8
    v_bfe_u32 v15, v2, 3, 2
    v_lshl_add_u32 v8, v15, 8, v8
    v_lshl_add_u32 v8, v9, 4, v8
    s_lshr_b32 s47, s37, 4
    s_mul_i32 s47, s47, 18
    s_mul_i32 s48, s39, 6
    s_add_u32 s47, s47, s48
    s_lshl_b32 s47, s47, 10
    s_and_b32 s48, s36, 1
    s_lshl_b32 s48, s48, 7
    s_add_u32 s47, s47, s48
    s_add_u32 s47, s47, %d
    """ % XNF)
    for it in range(3):
        if it == 2: a("s_add_u32 s47, s47, 4096")
        a("buffer_store_dwordx4 v[%d:%d], v8, s[28:31], s47 offen offset:%d sc1" % (28+4*it, 31+4*it, (it*2048) % 4096))
    a("""
    s_lshl_b32 s47, s35, 2
    s_add_u32 s47, s47, s32
    s_lshl_b32 s47, s47, 7
    s_lshl_b32 s48, s34, 5
    s_add_u32 s47, s47, s48
    s_lshl_b32 s48, s39, 3
    s_add_u32 s47, s47, s48
    s_add_u32 s47, s47, %d
    v_mov_b32 v8, 0
    s_waitcnt vmcnt(0)
    """ % F1)
    flag_store(a, 1, 47, 8, 16)
    a("s_branch L_lnd")
    a.label("L_w3")
    a("""
    v_lshlrev_b32 v8, 3, v2
    s_lshl_b32 s101, s36, 9
    s_add_u32 s101, s101, %d
    v_mov_b32 v10, 0
    """ % FP1)
    flag_load(a, 16, 8, 101)
    a("s_cmp_ge_u32 s2, 144")
    a("s_cbranch_scc1 L_w3_nostrip")
    pack_setup2()
    a("s_mov_b32 s52, s2")
    for vw in range(4): proc_w2(SBUF, vw, 32 + 36*vw)
    a("s_mov_b32 s100, s49")
    a("s_branch L_w3_chk")
    a.label("L_w3_nostrip")
    a("s_waitcnt vmcnt(0)")
    a.label("L_w3_chk")
    poll(a, 36, [(16, 8, 101, False, 0, (1 << 36) - 1)], 1, 18, "L_pp1")
    a("s_sub_u32 s46, s41, s40")
    for st in range(3):
        for i in range(36):
            if i % 4 == 0:
                a("s_mov_b32 m0, %d" % (st*36864 + i*1024))
                a("s_add_u32 s44, s46, %d" % (st*36864 + i*1024))
            a("buffer_load_dwordx4 v3, s[28:31], s44 offen offset:%d sc1 lds" % ((i % 4)*1024))
    a("s_cmp_ge_u32 s2, 144")
    a("s_cbranch_scc1 L_lnd")
    a("s_waitcnt vmcnt(63)")
    for vw in range(4):
        a("s_sub_u32 s49, s100, %d" % (512*(3-vw)))
        flag_store(a, 1, 49, 10, 16)
    a.label("L_lnd")
    stamp(a, dbg, 9)
    a("""
    s_lshl_b32 s47, s35, 2
    s_add_u32 s47, s47, s39
    s_lshl_b32 s47, s47, 7
    s_add_u32 s47, s47, %d
    v_and_b32 v8, 15, v2
    v_lshlrev_b32 v8, 3, v8
    """ % F1)
    flag_load(a, 16, 8, 47)
    poll(a, 0, [(16, 8, 47, False, 0, 0x7777)], 1, 18, "L_pf1")
    stamp(a, dbg, 10)
    a("""
    s_lshl_b32 s47, s35, 3
    s_lshl_b32 s48, s39, 1
    s_add_u32 s47, s47, s48
    s_mul_i32 s47, s47, 18432
    s_add_u32 s47, s47, %d
    """ % XNF)
    xn_seq = {}
    for ks in range(18):
        for mt in range(2):
            off = (mt*18 + ks)*1024
            a("s_add_u32 s48, s47, %d" % (off - off % 4096))
            r = (ks*2+mt)*4
            a("buffer_load_dwordx4 a[%d:%d], v3, s[28:31], s48 offen offset:%d sc1" % (r, r+3, off % 4096))
            xn_seq[(ks, mt)] = vm.issue()
    a("""
    s_lshl_b32 s45, s35, 2
    s_add_u32 s45, s45, s39
    s_mul_i32 s46, s45, %d
    s_add_u32 s46, s46, %d
    s_mul_i32 s47, s36, 9216
    s_add_u32 s47, s47, s46
    s_lshl_b32 s48, s35, 2
    s_add_u32 s48, s48, s32
    s_lshl_b32 s48, s48, 2
    s_add_u32 s48, s48, s39
    s_lshl_b32 s48, s48, 7
    s_add_u32 s48, s48, %d
    s_lshl_b32 s49, s35, 2
    s_add_u32 s49, s49, s34
    s_lshl_b32 s49, s49, 2
    s_add_u32 s49, s49, s39
    s_mul_i32 s50, s49, 73728
    s_add_u32 s50, s50, %d
    s_lshl_b32 s49, s49, 7
    s_add_u32 s49, s49, %d
    v_and_b32 v8, 3, v2
    v_lshlrev_b32 v8, 3, v8
    v_mov_b32 v10, 0
    s_lshl_b32 s51, s34, 3
    s_add_u32 s51, s51, s48
    s_lshl_b32 s52, s32, 3
    s_add_u32 s52, s52, s49
    v_lshlrev_b32 v9, 3, v2
    s_lshl_b32 s100, s36, 9
    s_add_u32 s100, s100, %d
    """ % (2*HFS, HF, F2, PART, F3, FP2))
    for pr in range(3):
        a("s_add_u32 s%d, s34, %d" % (53+pr, 1+pr))
        a("s_and_b32 s%d, s%d, 3" % (53+pr, 53+pr))
        a("s_lshl_b32 s56, s32, 2")
        a("s_add_u32 s%d, s%d, s56" % (53+pr, 53+pr))
        a("s_mul_i32 s%d, s%d, 9216" % (53+pr, 53+pr))
        a("s_add_u32 s%d, s%d, s46" % (53+pr, 53+pr))
    a("""
    v_and_b32 v11, 15, v2
    v_mul_u32_u24 v11, 1152, v11
    v_lshrrev_b32 v12, 4, v2
    v_lshl_add_u32 v11, v12, 3, v11
    s_lshl_b32 s56, s35, 7
    s_lshl_b32 s57, s39, 5
    s_add_u32 s56, s56, s57
    s_mul_i32 s56, s56, 1152
    s_mul_i32 s57, s34, 288
    s_add_u32 s56, s56, s57
    s_add_u32 s57, s56, %d
    """ % HB)
    units = order_units()
    NF = 648
    SPLITQ = 536
    def frag_mfmas(gf):
        st, f = divmod(gf, 36)
        rb = VB + (gf % RING)*4
        out = []
        if st < 9:
            if st < 3: ks = 6*st + f // 6; T_ = f % 6
            else:      ks = f // 2; T_ = 2*st + (f & 1)
            for mt in range(2):
                ac = acc1_reg(T_, mt); xr = (ks*2+mt)*4
                src = "0" if ks == 0 else "v[%d:%d]" % (ac, ac+3)
                out.append("v_mfma_f32_16x16x32_bf16 v[%d:%d], v[%d:%d], a[%d:%d], %s" % (ac, ac+3, rb, rb+3, xr, xr+3, src))
        else:
            uu, tt = divmod(gf - 324, 3)
            c2, (kind, pr, k9) = units[uu]
            first = uu in (0, 9, 18)
            for mt in range(2):
                ac = acc2_reg(c2, tt, mt)
                if kind == "o": hr = "v[%d:%d]" % (HO + (k9*2+mt)*4, HO + (k9*2+mt)*4 + 3)
                else:
                    r = areg_partner(pr, k9, mt); hr = "a[%d:%d]" % (r, r+3)
                src = "0" if first else "v[%d:%d]" % (ac, ac+3)
                out.append("v_mfma_f32_16x16x32_bf16 v[%d:%d], v[%d:%d], %s, %s" % (ac, ac+3, rb, rb+3, hr, src))
        return out
    class S: pass
    def tau_info(tau):
        c2, r = divmod(tau, 6); tt, mt = divmod(r, 2)
        return c2, tt, mt
    def build_tasks(svar):
        tasks = {}
        def at(q, fn): tasks.setdefault(q, []).append(fn)
        busy = set()
        for nb in range(15):
            b0 = max(0, 36*nb - LB)
            for i in range(9): busy.add(b0 + 1 + (DSP if nb else 3)*i)
        def vslot(q):
            while q in busy or (q-1) in busy or (q+1) in busy: q += 1
            busy.add(q); return q
        qw = vslot(60)
        def wl(a, S_): flag_load(a, 12, 9, 100); S_.fseq = S_.vm.issue()
        at(qw, wl)
        def wc(a, S_): poll(a, S_.vm.wait_cnt(S_.fseq), [(12, 9, 100, False, 0, (1 << 36) - 1)], 1, 14, "L_pw2")
        at(qw + 30, wc)
        lastq = 0; kq = 0
        for k9 in range(9):
            q0 = max(108, 36*(k9+1)) + 1
            kq = max(kq, q0*VPS)
            for mt in range(2):
                hr = HO + (k9*2+mt)*4
                for half in range(2):
                    ac = acc1_reg(2*k9+half, mt)
                    for e in range(2):
                        def f(a, S_, d=hr+2*half+e, s0=ac+2*e): a("v_cvt_pk_bf16_f32 v%d, v%d, v%d" % (d, s0, s0+1))
                        f.valu = True; at(kq//VPS, f); kq += 1
                for e in range(4):
                    def g(a, S_, r=hr+e): a("v_pk_max_i16 v%d, v%d, v10" % (r, r))
                    g.valu = True; at(kq//VPS, g); kq += 1
                def h(a, S_, hr=hr, k9=k9, mt=mt):
                    a("s_add_u32 s45, s47, %d" % (mt*HFS + k9*1024))
                    a("buffer_store_dwordx4 v[%d:%d], v3, s[28:31], s45 offen sc1" % (hr, hr+3))
                    S_.hst[k9] = S_.vm.issue()
                lastq = vslot(max(lastq + (SSP if k9 > 2 else 6), kq//VPS + 1))
                at(lastq, h)
            if k9 in (2, 4, 6, 8):
                def fl(a, S_, k9=k9):
                    a("s_waitcnt vmcnt(%d)" % S_.vm.wait_cnt(S_.hst[k9]))
                    flag_store(a, k9+1, 51, 10, 14); S_.vm.issue()
                at(vslot(lastq + FLAGD[0]), fl)
        lastq = 0
        pq = [vslot(p[0]) for p in POLLS]
        for pi, (qp, need, lo, hi) in enumerate(POLLS):
            def pl(a, S_): flag_load(a, 12, 8, 48); S_.fseq = S_.vm.issue()
            qp = pq[pi]; at(qp, pl)
            qc = qp + CHKD
            assert qc < SPLITQ
            def pc(a, S_, pi=pi, need=need):
                poll(a, S_.vm.wait_cnt(S_.fseq), [(12, 8, 48, False, 0, FULL)], need, 14, "L_p2_%d" % pi)
            at(qc, pc)
            lastq = max(lastq, qc + 1)
            for i in range(lo, hi):
                k9, pr = divmod(i, 3)
                if i >= 14: lastq = max(lastq, 326)
                for mt in range(2):
                    def ld(a, S_, pr=pr, k9=k9, mt=mt):
                        r = areg_partner(pr, k9, mt)
                        a("s_add_u32 s45, s%d, %d" % (53+pr, mt*HFS + k9*1024))
                        a("buffer_load_dwordx4 a[%d:%d], v3, s[28:31], s45 offen sc1" % (r, r+3))
                        S_.hld[(pr, k9, mt)] = S_.vm.issue()
                    lastq = vslot(lastq); at(lastq, ld)
        lastq = 0
        for c2, qe in ((0, 324 + 72*3), (1, 324 + 81*3)):
            for tt in range(3):
                for mt in range(2):
                    tau = 6*c2 + 2*tt + mt
                    if tau % 4 == svar: continue
                    def ps(a, S_, tau=tau, ac=acc2_reg(c2, tt, mt)):
                        a("s_add_u32 s45, s50, %d" % ((tau*4 + svar)*1024))
                        a("buffer_store_dwordx4 v[%d:%d], v3, s[28:31], s45 offen sc1" % (ac, ac+3))
                        S_.pst = S_.vm.issue()
                    lastq = vslot(max(lastq + PSP, qe + 1)); at(lastq, ps)
        def fl3(a, S_):
            a("s_waitcnt vmcnt(%d)" % S_.vm.wait_cnt(S_.pst))
            flag_store(a, 1, 52, 10, 14); S_.vm.issue()
        at(min(NF-1, lastq + FLAGD[1]), fl3)
        assert max(tasks) < NF
        return tasks
    def fin_loads(a, S_, tau, B, svar):
        c2, tt, mt = tau_info(tau)
        for i, s_ in enumerate([x for x in range(4) if x != svar]):
            a("s_add_u32 s45, s50, %d" % ((tau*4 + s_)*1024))
            a("buffer_load_dwordx4 v[%d:%d], v3, s[28:31], s45 offen sc1" % (B+4*i, B+4*i+3)); S_.vm.issue()
        a("s_add_u32 s45, s57, %d" % (mt*18432 + c2*96 + tt*32))
        a("buffer_load_dwordx2 v[%d:%d], v11, s[28:31], s45 offen sc1" % (B+12, B+13))
        S_.fin[tau] = S_.vm.issue()
    def fin_math(a, S_, tau, B, svar):
        c2, tt, mt = tau_info(tau)
        ac = acc2_reg(c2, tt, mt)
        regs = {s_: B + 4*i for i, s_ in enumerate([x for x in range(4) if x != svar])}
        regs[svar] = ac
        a("s_waitcnt vmcnt(%d)" % S_.vm.wait_cnt(S_.fin[tau]))
        cur = ac if svar in (0, 1) else regs[0]
        for h_ in range(2):
            a("v_pk_add_f32 v[%d:%d], v[%d:%d], v[%d:%d]" % (cur+2*h_, cur+2*h_+1, regs[0]+2*h_, regs[0]+2*h_+1, regs[1]+2*h_, regs[1]+2*h_+1))
        for s_ in (2, 3):
            for h_ in range(2):
                a("v_pk_add_f32 v[%d:%d], v[%d:%d], v[%d:%d]" % (cur+2*h_, cur+2*h_+1, cur+2*h_, cur+2*h_+1, regs[s_]+2*h_, regs[s_]+2*h_+1))
        for h_ in range(2):
            r = cur + 2*h_
            rnd_pair(a, r, B+14)
            a("v_lshlrev_b32 v%d, 16, v%d" % (B+4+2*h_, B+12+h_))
            a("v_and_b32 v%d, s43, v%d" % (B+5+2*h_, B+12+h_))
            a("v_pk_add_f32 v[%d:%d], v[%d:%d], v[%d:%d]" % (r, r+1, r, r+1, B+4+2*h_, B+5+2*h_))
        for h_ in range(2): a("v_cvt_pk_bf16_f32 v%d, v%d, v%d" % (B+8+h_, cur+2*h_, cur+2*h_+1))
        a("s_add_u32 s45, s56, %d" % (mt*18432 + c2*96 + tt*32))
        a("buffer_store_dwordx2 v[%d:%d], v11, s[20:23], s45 offen" % (B+8, B+9)); S_.vm.issue()
    def run_main(a, S_, q_from, q_to, tasks):
        for q in range(q_from, q_to):
            st, f = divmod(q, 36)
            nb = S_.bar + 1
            if nb < 18 and q == max(0, 36*nb - LB):
                if nb > 0: a("s_waitcnt lgkmcnt(0)")
                S_.rd_done = S_.p
                a("s_waitcnt vmcnt(%d)" % min(63, S_.vm.wait_cnt(S_.dseq[nb])))
                a("s_barrier")
                if nb == 0: stamp(a, dbg, 11)
                if sdbg is not False and 0 <= nb - sdbg < 12: a("s_memtime s[%d:%d]" % (64+2*(nb-sdbg), 65+2*(nb-sdbg)))
                S_.bar = nb
                assert not S_.pend
                if nb + 3 < 18: S_.pend = [(nb+3, i) for i in range(9)]
            def rd():
                if S_.p < NF and S_.p <= q + LMAX and S_.p < 36*(S_.bar+1):
                    gp = S_.p; r = VB + (gp % RING)*4
                    a("ds_read_b128 v[%d:%d], v%d offset:%d" % (r, r+3, 4 + (gp//36) % 4, (gp % 36)*1024))
                    S_.p += 1
                    return True
                return False
            if q == 0:
                while rd(): pass
            if q >= S_.rd_done:
                tgt = min(q + 1, S_.p - 1)
                a("s_waitcnt lgkmcnt(%d)" % min(15, S_.p - tgt - 1))
                S_.rd_done = tgt + 1
            if st < 3 and f % 6 == 0:
                a("s_waitcnt vmcnt(%d)" % min(63, S_.vm.wait_cnt(xn_seq[(6*st + f//6, 1)])))
            if st >= 9:
                uu, tt = divmod(q - 324, 3)
                c2, (kind, pr, k9) = units[uu]
                if kind == "p" and tt == 0 and (pr, k9) not in S_.hwaited:
                    S_.hwaited.add((pr, k9))
                    a("s_waitcnt vmcnt(%d)" % min(63, S_.vm.wait_cnt(S_.hld[(pr, k9, 1)])))
            m1, m2 = frag_mfmas(q)
            tl = list(tasks.get(q, []))
            a(m1)
            rd()
            if tl and getattr(tl[0], "valu", False): tl.pop(0)(a, S_)
            a(m2)
            did = False
            if S_.pend and (q - max(0, 36*S_.bar - LB)) % (DSP if S_.bar else 3) == 1:
                stg, i = S_.pend.pop(0)
                dma(stg, i); S_.dseq[stg] = S_.vm.issue(); did = True
            for fn in tl: fn(a, S_); did = True
            if not did: rd()
    S0 = S(); S0.vm = vm; S0.bar = -1; S0.p = 0; S0.rd_done = 0; S0.pend = []
    S0.dseq = {0: 0, 1: 0, 2: 0}; S0.hst = {}; S0.hld = {}; S0.hwaited = set(); S0.fin = {}
    run_main(a, S0, 0, SPLITQ, build_tasks(0))
    for svar in range(4):
        if svar: a.label("L_v%d" % svar)
        if svar < 3:
            a("s_cmp_lg_u32 s32, %d" % svar)
            a("s_cbranch_scc1 L_v%d" % (svar+1))
        S_ = copy.deepcopy(S0)
        run_main(a, S_, SPLITQ, NF, build_tasks(svar))
        if dbg: a("s_memrealtime s[90:91]")
        if sdbg is not False: a("s_memtime s[90:91]")
        a("s_nop 7")
        for tau in range(12, 18):
            if tau % 4 == svar: continue
            c2, tt, mt = tau_info(tau); ac = acc2_reg(c2, tt, mt)
            a("s_add_u32 s45, s50, %d" % ((tau*4 + svar)*1024))
            a("buffer_store_dwordx4 v[%d:%d], v3, s[28:31], s45 offen sc1" % (ac, ac+3)); S_.vm.issue()
        flag_load(a, 12, 8, 49); seq = S_.vm.issue()
        a("s_waitcnt vmcnt(0)")
        flag_store(a, 2, 52, 10, 14); S_.vm.issue()
        poll(a, S_.vm.wait_cnt(seq), [(12, 8, 49, False, 0, FULL)], 1, 14, "L_p3a_%d" % svar)
        own01 = [t for t in range(12) if t % 4 == svar]
        own = [t for t in range(12, 18) if t % 4 == svar]
        for i, tau in enumerate(own01): fin_loads(a, S_, tau, HO + 16*i, svar)
        flag_load(a, 12, 8, 49); seq = S_.vm.issue()
        poll(a, S_.vm.wait_cnt(seq), [(12, 8, 49, False, 0, FULL)], 2, 14, "L_p3b_%d" % svar)
        for i, tau in enumerate(own): fin_loads(a, S_, tau, VB + 16*i, svar)
        for i, tau in enumerate(own01): fin_math(a, S_, tau, HO + 16*i, svar)
        for i, tau in enumerate(own): fin_math(a, S_, tau, VB + 16*i, svar)
        if dbg or sdbg is not False:
            a("s_waitcnt vmcnt(0)")
            a("s_memrealtime s[92:93]")
            a("s_waitcnt lgkmcnt(0)")
            for i in range(12): a("v_mov_b32 v%d, s%d" % (16+i, 64+2*i))
            a("v_mov_b32 v28, s90\n v_mov_b32 v29, s92\n v_mov_b32 v30, 0\n v_mov_b32 v31, 0")
            a("s_lshl_b32 s62, s2, 2\n s_add_u32 s62, s62, s39\n s_lshl_b32 s62, s62, 6\n s_add_u32 s62, s62, %d" % STAMP)
            a("s_mov_b64 exec, 1")
            for k_ in range(4): a("buffer_store_dwordx4 v[%d:%d], v10, s[28:31], s62 offen offset:%d" % (16+4*k_, 19+4*k_, 16*k_))
        a("s_endpgm")
    a.label("L_end")
    a("s_endpgm")
    return dict(name=KNAME, grid=256, block=256, lds=ONE_LDS, body=a.text(), vgpr=512, sgpr=102, accum=256)

def make_single(k, hdr):
    import subprocess, re
    t = make_file([k], hdr)
    open("_sz.s", "w").write(t.replace("NCODELINES", "1"))
    subprocess.check_call(["clang", "-x", "assembler", "-target", "amdgcn-amd-amdhsa", "-mcpu=gfx950", "-c", "_sz.s", "-o", "_sz.o"])
    o = subprocess.check_output(["llvm-readelf", "-S", "_sz.o"]).decode()
    size = int(re.search(r"\.text\s+PROGBITS\s+\S+\s+\S+\s+(\S+)", o).group(1), 16)
    nl = (size - 64) // 128 - 1
    assert nl < 1024
    t = t.replace("NCODELINES", str(nl))
    return t.replace("; @launch kernel=%s grid" % KNAME, "; @launch grid")

if __name__ == "__main__":
    hdr = open("sequential_preLN__ssm_conv_h3__dense_activation_relu__prompt.s.ref").read().split("; Override")[0]
    t1 = make_single(gen_one(), hdr); t2 = make_single(gen_one(dbg=True), hdr)
    open("three.s", "w").write(t1); open("three_dbg.s", "w").write(t2)
    open("three_s0.s", "w").write(make_single(gen_one(sdbg=0), hdr)); open("three_s6.s", "w").write(make_single(gen_one(sdbg=6), hdr))
```

```python
import copy
from asmlib import *
from layout import *
from gen_front import srd, check_magic
from gen_kb import VM, order_units, areg_partner, acc2_reg, acc1_reg, rnd_pair, rnd1, ln_stats, ZL, RS, KB_LDS, RING, VB, HO, ACC

KNAME = "sequential_preLN__ssm_conv_h3__dense_activation_relu__prompt_kernel"
FA  = FLAGS
FZ  = FLAGS + 0x2000
FP1 = FLAGS + 0x3000
FP2 = FLAGS + 0x5000
F1  = FLAGS + 0x7000
F2  = FLAGS + 0x10000
F3  = FLAGS + 0x18000
SPIN_MAX = 20000
STAMP = 0x6000000 + BASE
SN0, SN1 = 88, 89
ZT = UG; ZTS = 8192
ZL = 110592; RS = ZL + 9216; LW = RS + 640
SBUF = 3*CH_BYTES + 6*8192
ONE_LDS = SBUF + 36864
XQ = 232

def stamp(a, dbg, i):
    if dbg: a("s_memrealtime s[%d:%d]" % (64+2*i, 65+2*i))

def flag_store(a, val, soff, vz, vt):
    a("s_add_u32 s61, s%d, %d" % (SN0, val))
    a("v_mov_b32 v%d, s61" % vt)
    a("v_mov_b32 v%d, s%d" % (vt+1, SN1))
    a("s_mov_b64 exec, 1")
    a("buffer_store_dwordx2 v[%d:%d], v%d, s[28:31], s%d offen sc1" % (vt, vt+1, vz, soff))
    a("s_mov_b64 exec, -1")

def flag_load(a, vd, vaddr, soff, wide=False, off=0):
    if wide: a("buffer_load_dwordx4 v[%d:%d], v%d, s[28:31], s%d offen offset:%d sc1" % (vd, vd+3, vaddr, soff, off))
    else:    a("buffer_load_dwordx2 v[%d:%d], v%d, s[28:31], s%d offen offset:%d sc1" % (vd, vd+1, vaddr, soff, off))

def poll(a, waitn, loads, need, vt, lab):
    a("s_waitcnt vmcnt(%d)" % min(63, waitn))
    a("s_mov_b32 s58, 0")
    a("s_add_u32 s59, s%d, %d" % (SN0, need))
    a.label(lab + "_chk")
    a("s_mov_b64 s[60:61], -1")
    for (vd, vaddr, soff, wide, off, mask) in loads:
        for h in range(2 if wide else 1):
            a("v_subrev_u32 v%d, s59, v%d" % (vt, vd+2*h))
            a("v_cmp_gt_u32 vcc, %d, v%d" % (16-need, vt))
            a("v_cmp_eq_u32 s[62:63], s%d, v%d" % (SN1, vd+2*h+1))
            a("s_nop 1")
            a("s_and_b64 vcc, vcc, s[62:63]")
            if mask != (1 << 64) - 1:
                a("s_mov_b32 s62, 0x%x" % (~mask & 0xffffffff))
                a("s_mov_b32 s63, 0x%x" % ((~mask >> 32) & 0xffffffff))
                a("s_or_b64 vcc, vcc, s[62:63]")
            a("s_and_b64 s[60:61], s[60:61], vcc")
    a("s_cmp_eq_u64 s[60:61], -1")
    a("s_cbranch_scc1 %s_ok" % lab)
    a("s_add_u32 s58, s58, 1")
    a("s_cmp_gt_u32 s58, %d" % SPIN_MAX)
    a("s_cbranch_scc1 %s_ok" % lab)
    a("s_sleep 1")
    for (vd, vaddr, soff, wide, off, mask) in loads: flag_load(a, vd, vaddr, soff, wide, off)
    a("s_waitcnt vmcnt(0)")
    a("s_branch %s_chk" % lab)
    a.label(lab + "_ok")
FULL = (1 << 64) - 1

def kv_item(a, R, sfx):
    a("v_and_b32 v%d, 7, v%d" % (R+1, R))
    a("v_lshrrev_b32 v%d, 3, v%d" % (R+2, R))
    a("v_lshlrev_b32 v%d, 3, v%d" % (R+1, R+1))
    a("v_add_u32 v%d, s44, v%d" % (R+1, R+1))
    a("v_mul_u32_u24 v%d, 1152, v%d" % (R+3, R+1))
    a("v_lshlrev_b32 v%d, 2, v%d" % (R+4, R+2))
    a("v_add3_u32 v%d, v%d, v%d, s45" % (R+3, R+3, R+4))
    a("v_add_u32 v%d, 4608, v%d" % (R+4, R+3))
    a("v_subrev_u32 v%d, 4608, v%d" % (R+5, R+3))
    a("v_cmp_eq_u32 vcc, 0, v%d" % (R+1))
    a("v_mov_b32 v%d, 0x80000000" % (R+6))
    a("s_nop 1")
    a("v_cndmask_b32 v%d, v%d, v%d, vcc" % (R+5, R+5, R+6))
    a("v_lshlrev_b32 v%d, 4, v%d" % (R+6, R+2))
    L = R + 8
    for i in range(4): a("buffer_load_dword v%d, v%d, s[8:11], 0 offen offset:%d nt" % (L+i, R+5, i*1152))
    for i in range(4): a("buffer_load_dword v%d, v%d, s[8:11], 0 offen offset:%d nt" % (L+4+i, R+3, i*1152))
    for i in range(4): a("buffer_load_dword v%d, v%d, s[8:11], 0 offen offset:%d nt" % (L+8+i, R+4, i*1152))
    a("buffer_load_dword v%d, v%d, s[12:15], 0 offen offset:3456 nt" % (L+12, R+5))
    for i in range(4): a("buffer_load_dword v%d, v%d, s[12:15], 0 offen offset:%d nt" % (L+13+i, R+3, i*1152))
    for i in range(4): a("buffer_load_dword v%d, v%d, s[12:15], 0 offen offset:%d nt" % (L+17+i, R+4, i*1152))
    a("buffer_load_dwordx4 v[%d:%d], v%d, s[24:27], s46 offen" % (R+32, R+35, R+6))
    a("v_lshlrev_b32 v%d, 14, v%d" % (R+6, R+2))
    a("v_lshlrev_b32 v%d, 1, v%d" % (R+7, R+1))
    a("v_sub_u32 v%d, 4080, v%d" % (R+7, R+7))
    a("v_add3_u32 v%d, v%d, v%d, s47" % (R+6, R+6, R+7))
    a("v_add_u32 v%d, 8192, v%d" % (R+7, R+6))

def kv_compute(a, R, W):
    L = R + 8
    for j in range(4):
        for c in range(2):
            src = R + 32 + 2*c + (j >> 1)
            if j & 1: a("v_and_b32 v%d, s43, v%d" % (W+2*j+c, src))
            else:     a("v_lshlrev_b32 v%d, 16, v%d" % (W+2*j+c, src))
    K = W + 8; V = W + 32; U = W + 50; P0 = W + 68; T = W + 76
    for i in range(12):
        a("v_lshlrev_b32 v%d, 16, v%d" % (K+2*i, L+i)); a("v_and_b32 v%d, s43, v%d" % (K+2*i+1, L+i))
    for e in range(9):
        a("v_lshlrev_b32 v%d, 16, v%d" % (V+2*e, L+12+e)); a("v_and_b32 v%d, s43, v%d" % (V+2*e+1, L+12+e))
    for e in range(9):
        P = [P0, P0+2, P0+4, P0+6]
        for q in range(4):
            j = 3 - q
            a("v_pk_mul_f32 v[%d:%d], v[%d:%d], v[%d:%d]" % (P[q], P[q]+1, K+2*(e+q), K+1+2*(e+q), W+2*j, W+1+2*j))
        for q in range(4): rnd_pair(a, P[q], T+q)
        for q in range(1, 4):
            a("v_pk_add_f32 v[%d:%d], v[%d:%d], v[%d:%d]" % (P0, P0+1, P0, P0+1, P[q], P[q]+1)); rnd_pair(a, P0, T)
        a("v_pk_mul_f32 v[%d:%d], v[%d:%d], v[%d:%d]" % (U+2*e, U+1+2*e, P0, P0+1, V+2*e, V+1+2*e))
    for c in range(2):
        for cp in range(2):
            base = L + (c*2+cp)*4
            for q in range(4):
                hi_e = (8 if cp else 7) - 2*q
                a("v_cvt_pk_bf16_f32 v%d, v%d, v%d" % (base+q, U+2*hi_e+c, U+2*(hi_e-1)+c))
    for c in range(2):
        for cp in range(2):
            base = L + (c*2+cp)*4
            a("s_mov_b32 s48, %d" % (UG + cp*4096))
            a("buffer_store_dwordx4 v[%d:%d], v%d, s[28:31], s48 offen sc1" % (base, base+3, R+6 if c == 0 else R+7))

def ln_consts(a, rs):
    a("""
    v_and_b32 v9, 7, v2              ; r
    v_lshrrev_b32 v10, 3, v2         ; l>>3
    v_mul_u32_u24 v13, 1152, v9
    v_lshl_add_u32 v13, v10, 4, v13  ; x voffset
    v_lshlrev_b32 v12, 3, v9
    v_add_u32 v12, %d, v12
    s_lshl_b32 s47, s39, 6
    v_add_u32 v11, s47, v12
    s_mul_i32 s46, s37, 1152
    s_mul_i32 s47, s39, 384
    s_add_u32 s46, s46, s47          ; x soffset
    """ % rs)

def gen_one(dbg=False, sdbg=False, LMAX=12, LB=6, FLAGD=(36, 36), CHKD=25,
            POLLS=((222, 3, 0, 9), (300, 5, 9, 15), (360, 7, 15, 21), (420, 9, 21, 27)), DSP=4, VPS=2, SSP=10, PSP=5, verbose=False):
    a = Asm()
    check_magic(1821, 16, 36, 2304); check_magic(7282, 16, 9, 288)
    a("s_cmp_ge_u32 s2, 256")
    a("s_cbranch_scc1 L_end")
    a("""
    s_getpc_b64 s[60:61]
    L_pc:
    s_lshr_b32 s62, s2, 3
    s_lshl_b32 s62, s62, 5
    v_lshrrev_b32 v1, 3, v0
    v_add_u32 v1, s62, v1
    v_min_u32 v1, NCODELINES, v1
    v_lshlrev_b32 v1, 7, v1
    global_load_dword v229, v1, s[60:61]
    """)
    a("""
    s_load_dwordx16 s[64:79], s[0:1], 0
    s_load_dwordx8 s[80:87], s[0:1], 64
    s_memrealtime s[90:91]
    v_lshrrev_b32 v1, 6, v0
    v_and_b32 v2, 63, v0
    v_readfirstlane_b32 s39, v1
    v_lshlrev_b32 v3, 4, v2
    s_mov_b32 s43, 0xffff0000
    s_waitcnt lgkmcnt(0)
    """)
    srd(a, 8, 66, 2359296); srd(a, 12, 68, 2359296); srd(a, 16, 64, 2359296); srd(a, 20, 82, 2359296)
    srd(a, 24, 70, 4608); srd(a, 28, 86, WS_SIZE); srd(a, 4, 84, 256)
    a("s_mov_b32 s92, s78\n s_mov_b32 s93, s79\n s_mov_b32 s94, s80\n s_mov_b32 s95, s81\n s_mov_b32 s96, s72\n s_mov_b32 s97, s73\n s_mov_b32 s98, s74\n s_mov_b32 s99, s75")
    stamp(a, dbg, 0)
    a("""
    s_or_b32 s44, s2, s39
    s_cmp_lg_u32 s44, 0
    s_cbranch_scc1 L_nonce_skip
    s_and_b32 s44, s90, 0xfffffff0
    s_or_b32 s44, s44, 0x80000000
    v_mov_b32 v4, s44
    v_mov_b32 v5, 0
    s_mov_b64 exec, 1
    buffer_store_dword v4, v5, s[4:7], 0 offen sc1
    s_mov_b64 exec, -1
    L_nonce_skip:
    """)
    a("""
    s_lshr_b32 s33, s2, 3            ; rb / i
    s_and_b32 s38, s2, 7             ; cg
    s_lshl_b32 s44, s33, 6
    s_mul_i32 s45, s38, 144
    s_mul_i32 s46, s38, 576
    s_mul_i32 s47, s38, 589824       ; 72cg*8192
    v_mov_b32 v16, v0
    """)
    kv_item(a, 16, "a")
    a("v_mov_b32 v58, 0x80000000\n v_mov_b32 v59, 0x80000000")
    a("s_cmp_lg_u32 s39, 3")
    a("s_cbranch_scc1 L_kvb_skip")
    a("v_add_u32 v52, 256, v2")
    a("s_mov_b32 exec_hi, 0")
    kv_item(a, 52, "b")
    a("s_mov_b32 exec_hi, -1")
    a.label("L_kvb_skip")
    a("""
    s_and_b32 s32, s2, 3             ; s
    s_and_b32 s34, s33, 3            ; n
    s_lshr_b32 s35, s33, 2
    s_bfe_u32 s36, s2, 0x10002
    s_lshl_b32 s36, s36, 3
    s_add_u32 s35, s35, s36          ; m
    s_lshl_b32 s36, s32, 2
    s_add_u32 s36, s36, s34          ; j
    s_lshl_b32 s37, s35, 7
    s_lshl_b32 s40, s36, 3
    s_add_u32 s37, s37, s40          ; R0
    s_mul_i32 s40, s39, 9216
    s_mul_i32 s41, s36, %d
    s_add_u32 s41, s41, s40
    s_add_u32 s41, s41, %d
    s_add_u32 s42, s41, %d
    v_mov_b32 v5, 0
    buffer_load_dword v4, v5, s[4:7], 0 offen sc1
    """ % (SLICE, W1P, W2P - W1P))
    a("s_cmp_lg_u32 s39, 3")
    a("s_cbranch_scc1 L_kva")
    a("s_waitcnt vmcnt(23)")
    kv_compute(a, 16, 100)
    a("s_waitcnt vmcnt(5)")
    a("s_mov_b32 exec_hi, 0")
    kv_compute(a, 52, 100)
    a("s_mov_b32 exec_hi, -1")
    a("s_branch L_kvd")
    a.label("L_kva")
    a("s_waitcnt vmcnt(1)")
    kv_compute(a, 16, 100)
    a.label("L_kvd")
    stamp(a, dbg, 1)
    ln_consts(a, 112640)
    a("s_cmp_ge_u32 s33, 24")
    a("s_cbranch_scc1 L_sec_pack")
    def x_loads():
        a("s_min_u32 s47, s39, 2")
        a("s_mul_i32 s47, s47, 384")
        a("s_mul_i32 s46, s37, 1152")
        a("s_add_u32 s46, s46, s47")
        for it in range(3):
            a("buffer_load_dwordx4 v[%d:%d], v13, s[16:19], s46 offen offset:%d nt" % (XQ+4*it, XQ+3+4*it, it*128))
    x_loads()
    srd(a, 24, 96, 2359296)
    a("s_mul_i32 s48, s38, 72\n s_mul_i32 s49, s33, 3\n s_add_u32 s48, s48, s49          ; d0")
    a("s_mul_i32 s49, s39, %d" % KC_STRIDE)
    a("s_lshl_b32 s50, s39, 2")
    for ch in range(3):
        a("s_add_u32 s51, s48, %d" % ch)
        a("s_lshl_b32 s51, s51, 12")
        a("s_add_u32 s51, s51, s50")
        a("s_add_u32 s51, s51, 4")
        a("s_add_u32 m0, s49, %d" % (ch*CH_BYTES + 64))
        a("s_nop 0")
        for q in range(4): a("buffer_load_dwordx4 v3, s[24:27], s51 offen offset:%d nt lds" % (q*1024))
    a("""
    s_min_u32 s49, s39, 2
    v_lshrrev_b32 v4+100, 4, v2
    """.replace("v4+100", "v104").strip().split("\n")[0])
    a("""
    v_lshrrev_b32 v104, 4, v2        ; a
    v_and_b32 v105, 15, v2           ; dw
    v_add_u32 v106, v104, v105
    v_subrev_u32 v106, 15, v106
    v_lshlrev_b32 v107, 2, v106
    v_cmp_gt_i32 vcc, 0, v106
    v_mov_b32 v108, 0x80000000
    s_nop 1
    v_cndmask_b32 v107, v107, v108, vcc
    s_add_u32 s51, s48, s49
    s_lshl_b32 s51, s51, 12
    buffer_load_dword v109, v107, s[24:27], s51 offen
    s_mul_i32 s49, s49, %d
    v_mul_u32_u24 v104, %d, v104
    v_lshl_add_u32 v104, v105, 2, v104
    v_add_u32 v104, s49, v104
    v_mov_b32 v110, 0
    v_mov_b32 v111, 0
    v_lshlrev_b32 v112, 3, v2
    v_add_u32 v112, s49, v112
    v_cmp_gt_u32 vcc, 56, v2
    s_and_saveexec_b64 s[50:51], vcc
    ds_write_b64 v112, v[110:111] offset:%d
    ds_write_b64 v112, v[110:111] offset:%d
    s_mov_b64 exec, s[50:51]
    s_waitcnt vmcnt(16)
    s_branch L_sec_done
    """ % (CH_BYTES, KC_STRIDE, 4*KC_STRIDE + 4096, 4*KC_STRIDE + UC_STRIDE + 4096))
    a.label("L_sec_pack")
    x_loads()
    a("s_waitcnt vmcnt(3)")
    a.label("L_sec_done")
    a("s_mov_b32 s58, 0")
    a.label("L_nonce_chk")
    a("""
    v_readfirstlane_b32 s%d, v4
    s_nop 3
    s_cmp_lg_u32 s%d, 0
    s_cbranch_scc1 L_nonce_ok
    s_add_u32 s58, s58, 1
    s_cmp_gt_u32 s58, %d
    s_cbranch_scc1 L_nonce_ok
    s_sleep 1
    buffer_load_dword v4, v5, s[4:7], 0 offen sc1
    s_waitcnt vmcnt(0)
    s_branch L_nonce_chk
    L_nonce_ok:
    s_xor_b32 s%d, s%d, 0x5bd1e995
    s_lshl_b32 s48, s38, 5
    s_add_u32 s48, s48, s33
    s_lshl_b32 s48, s48, 2
    s_add_u32 s48, s48, s39
    s_lshl_b32 s48, s48, 3
    s_add_u32 s48, s48, %d
    """ % (SN0, SN0, SPIN_MAX, SN1, SN0, FA))
    flag_store(a, 1, 48, 5, 6)
    stamp(a, dbg, 2)
    a("""
    s_lshl_b32 s48, s35, 2
    s_add_u32 s48, s48, s32
    s_lshl_b32 s48, s48, 2
    s_add_u32 s48, s48, s39
    s_lshl_b32 s48, s48, 7
    s_add_u32 s48, s48, %d
    buffer_load_dword v230, v5, s[28:31], s48 offen sc1
    s_lshl_b32 s48, s35, 2
    s_add_u32 s48, s48, s34
    s_lshl_b32 s48, s48, 2
    s_add_u32 s48, s48, s39
    s_lshl_b32 s48, s48, 7
    s_add_u32 s48, s48, %d
    buffer_load_dword v230, v5, s[28:31], s48 offen sc1
    s_lshl_b32 s48, s35, 2
    s_add_u32 s48, s48, s39
    s_lshl_b32 s48, s48, 7
    s_add_u32 s48, s48, %d
    buffer_load_dword v230, v5, s[28:31], s48 offen sc1
    s_lshl_b32 s48, s2, 3
    s_add_u32 s48, s48, %d
    buffer_load_dword v230, v5, s[28:31], s48 offen sc1
    """ % (F2, F3, F1, FZ))
    a("s_cmp_ge_u32 s33, 24")
    a("s_cbranch_scc1 L_pack")

    def q_precompute(waitn, w3=True):
        l3 = a.newlabel("L_q3"); ld = a.newlabel("L_qd")
        if w3:
            a("s_cmp_eq_u32 s39, 3")
            a("s_cbranch_scc1 %s" % l3)
        a("s_waitcnt vmcnt(%d)" % waitn)
        X = 120; T = 150
        for i in range(12):
            a("v_lshlrev_b32 v%d, 16, v%d" % (X+2*i, XQ+i)); a("v_and_b32 v%d, s43, v%d" % (X+2*i+1, XQ+i))
        ln_stats(a, X, T, 0)
        for i in range(12):
            d = 170
            a("v_pk_add_f32 v[%d:%d], v[%d:%d], v[%d:%d]" % (d, d+1, X+2*i, X+2*i+1, T, T+1)); rnd_pair(a, d, d+4)
            a("v_pk_mul_f32 v[%d:%d], v[%d:%d], v[%d:%d]" % (d, d+1, d, d+1, T+2, T+3))
            a("v_cvt_pk_bf16_f32 v%d, v%d, v%d" % (XQ+12+i, d, d+1))
        if w3:
            a("s_branch %s" % ld)
            a.label(l3); a("s_barrier"); a.label(ld)

    def pack_setup(nper):
        a("""
        s_movk_i32 s44, 1821
        s_movk_i32 s45, 9216
        s_mul_i32 s49, s39, %d
        s_mul_i32 s57, s39, %d
        """ % (64*nper, 1024*nper))
        for i in range(nper):
            a("v_add_u32 v196, s49, v2")
            if i: a("v_add_u32 v196, %d, v196" % (64*i))
            a("v_mul_lo_u32 v197, v196, s44")
            a("v_lshrrev_b32 v197, 16, v197")
            a("v_mul_u32_u24 v198, 36, v197")
            a("v_sub_u32 v198, v196, v198")
            a("v_mul_lo_u32 v197, v197, s45")
            a("v_lshl_add_u32 v%d, v198, 4, v197" % (176+i))
        srd(a, 8, 92, 5308416); srd(a, 12, 94, 5308416)
    def pack_setup2():
        a("""
        v_lshrrev_b32 v192, 4, v2
        v_bfe_u32 v193, v2, 2, 2
        v_lshl_add_u32 v194, v192, 3, v193
        v_mul_u32_u24 v194, 576, v194
        v_and_b32 v195, 3, v2
        v_lshl_add_u32 v194, v195, 3, v194
        s_lshr_b32 s46, s39, 1
        s_and_b32 s47, s39, 1
        s_mul_i32 s50, s46, 18432
        s_mul_i32 s51, s47, 288
        s_add_u32 s50, s50, s51
        v_add_u32 v189, s50, v194
        v_lshl_add_u32 v194, v192, 2, v193
        v_mul_u32_u24 v194, 1152, v194
        v_lshl_add_u32 v194, v195, 3, v194
        v_mov_b32 v190, v194
        """)
    def conv_strip(f1, f2):
        l2 = a.newlabel("L_cs"); ld = a.newlabel("L_csd")
        a("s_cmp_ge_u32 s2, 144"); a("s_cbranch_scc1 %s" % l2)
        a("s_mov_b32 s52, s2"); f1(SBUF); a("s_branch %s" % ld)
        a.label(l2); a("s_sub_u32 s52, s2, 144"); f2(SBUF)
        a.label(ld)
    def issue_w1(slot, nper=12):
        a("s_mul_i32 s53, s52, 7282\n s_lshr_b32 s53, s53, 16\n s_mul_i32 s54, s53, 9\n s_sub_u32 s54, s52, s54")
        a("s_mul_i32 s54, s54, 589824\n s_mul_i32 s53, s53, 576\n s_add_u32 s54, s54, s53")
        for i in range(nper):
            a("s_add_u32 m0, s57, %d" % (slot + 1024*i))
            a("s_nop 0")
            a("buffer_load_dwordx4 v%d, s[8:11], s54 offen nt lds" % (176+i))
    def issue_w2(slot, nper=12):
        a("s_mul_i32 s54, s52, 36864\n s_add_u32 s54, s54, s57")
        for i in range(nper):
            if i % 4 == 0:
                a("s_add_u32 m0, s57, %d" % (slot + 1024*i))
                a("s_add_u32 s53, s54, %d" % (1024*i))
            a("buffer_load_dwordx4 v3, s[12:15], s53 offen offset:%d nt lds" % ((i % 4)*1024))
    def proc_w1(slot, D):
        a("v_add_u32 v191, %d, v189" % (slot))
        for i in range(9):
            a("ds_read_b64_tr_b16 v[%d:%d], v191 offset:%d" % (D+4*i, D+1+4*i, 32*i))
            a("ds_read_b64_tr_b16 v[%d:%d], v191 offset:%d" % (D+2+4*i, D+3+4*i, 32*i + 4*576))
        a("s_mul_i32 s53, s52, 7282\n s_lshr_b32 s53, s53, 16\n s_mul_i32 s54, s53, 9\n s_sub_u32 s54, s52, s54")
        a("s_mul_i32 s50, s53, %d\n s_add_u32 s50, s50, %d" % (SLICE, W1P))
        a("s_lshl_b32 s51, s54, 1\n s_add_u32 s51, s51, s46")
        a("s_lshl_b32 s53, s53, 9\n s_lshl_b32 s54, s54, 5\n s_add_u32 s49, s53, s54\n s_lshl_b32 s54, s39, 3\n s_add_u32 s49, s49, s54\n s_add_u32 s49, s49, %d" % FP1)
        for i in range(9):
            a("s_mul_i32 s53, s47, 9\n s_add_u32 s53, s53, %d" % i)
            a("s_mul_i32 s54, s51, 6\n s_add_u32 s54, s54, s53\n s_lshl_b32 s54, s54, 10")
            a("s_lshr_b32 s55, s53, 1\n s_mul_i32 s55, s55, 36\n s_lshl_b32 s56, s51, 1\n s_add_u32 s55, s55, s56")
            a("s_and_b32 s56, s53, 1\n s_add_u32 s55, s55, s56\n s_lshl_b32 s55, s55, 10")
            a("s_cmp_lt_u32 s53, 6\n s_cselect_b32 s55, s54, s55\n s_add_u32 s55, s55, s50")
            a("s_waitcnt lgkmcnt(%d)" % min(14, 16 - 2*i))
            a("buffer_store_dwordx4 v[%d:%d], v3, s[28:31], s55 offen sc1" % (D+4*i, D+3+4*i))
    def proc_w2(slot, vw, D):
        a("v_add_u32 v191, %d, v190" % (slot + 288*vw))
        for i in range(9):
            a("ds_read_b64_tr_b16 v[%d:%d], v191 offset:%d" % (D+4*i, D+1+4*i, 32*i))
            a("ds_read_b64_tr_b16 v[%d:%d], v191 offset:%d" % (D+2+4*i, D+3+4*i, 32*i + 16*1152))
        a("""
        s_mul_i32 s53, s52, 1821
        s_lshr_b32 s53, s53, 16          ; s
        s_mul_i32 s54, s53, 36
        s_sub_u32 s54, s52, s54          ; kk%%36
        s_lshl_b32 s60, s53, 2
        s_add_u32 s60, s60, VW
        s_lshl_b32 s49, s60, 9
        s_lshl_b32 s55, s54, 3
        s_add_u32 s49, s49, s55
        s_add_u32 s49, s49, %d           ; flag addr
        s_mul_i32 s55, s54, 7282
        s_lshr_b32 s55, s55, 16          ; nb
        s_mul_i32 s56, s55, 9
        s_sub_u32 s56, s54, s56          ; k9
        s_sub_u32 s50, s55, VW
        s_sub_u32 s50, s50, 1
        s_and_b32 s50, s50, 3            ; pr
        s_mul_i32 s51, s56, 3
        s_add_u32 s51, s51, s50
        s_add_u32 s53, s51, 27
        s_add_u32 s54, s51, 45
        s_add_u32 s57, s51, 45
        s_add_u32 s61, s51, 54
        s_cmp_ge_u32 s56, 6
        s_cselect_b32 s53, s57, s53
        s_cselect_b32 s54, s61, s54
        s_add_u32 s55, s51, 81
        s_add_u32 s57, s56, 9
        s_add_u32 s61, s56, 18
        s_cmp_eq_u32 s50, 3
        s_cselect_b32 s53, s56, s53
        s_cselect_b32 s54, s57, s54
        s_cselect_b32 s55, s61, s55
        s_mul_i32 s60, s60, %d
        s_add_u32 s60, s60, %d
        s_mul_i32 s53, s53, 3072
        s_mul_i32 s54, s54, 3072
        s_mul_i32 s55, s55, 3072
        s_add_u32 s53, s53, s60
        s_add_u32 s54, s54, s60
        s_add_u32 s55, s55, s60
        """.replace("VW", str(vw)) % (FP2, SLICE, W2P))
        for i in range(9):
            a("s_waitcnt lgkmcnt(%d)" % min(14, 16 - 2*i))
            a("buffer_store_dwordx4 v[%d:%d], v3, s[28:31], s%d offen offset:%d sc1" % (D+4*i, D+3+4*i, 53 + i//3, (i%3)*1024))
    srd(a, 4, 98, 1152)
    a("""
    s_mul_i32 s48, s38, 72
    s_mul_i32 s49, s33, 3
    s_add_u32 s48, s48, s49          ; d0
    s_lshl_b32 s49, s48, 1
    buffer_load_ushort v24, v5, s[4:7], s49 offen
    buffer_load_ushort v25, v5, s[4:7], s49 offen offset:2
    buffer_load_ushort v26, v5, s[4:7], s49 offen offset:4
    s_cmp_eq_u32 s39, 3
    s_cbranch_scc1 L_cw3
    """)
    q_precompute(21, False)
    a("s_waitcnt vmcnt(0)")
    a("ds_write_b32 v104, v109")
    a("s_branch L_cwd")
    a.label("L_cw3")
    a("s_barrier")
    a("""
    s_lshl_b32 s49, s38, 10
    s_add_u32 s49, s49, %d
    """ % FA)
    flag_load(a, 16, 3, 49, True)
    poll(a, 0, [(16, 3, 49, True, 0, FULL)], 1, 20, "L_pfa")
    stamp(a, dbg, 3)
    for ch in range(3):
        for cp in range(2):
            a("s_add_u32 s52, s48, %d" % ch)
            a("s_lshl_b32 s52, s52, 13")
            a("s_add_u32 s52, s52, %d" % (UG + cp*4096))
            a("s_mov_b32 m0, %d" % (4*KC_STRIDE + ch*CH_BYTES + cp*UC_STRIDE))
            a("s_nop 0")
            for q in range(4): a("buffer_load_dwordx4 v3, s[28:31], s52 offen offset:%d sc1 lds" % (q*1024))
    a("s_waitcnt vmcnt(0)")
    a.label("L_cwd")
    a("""
    v_and_b32 v4, 15, v2
    v_lshrrev_b32 v5, 4, v2
    v_and_b32 v6, 3, v4
    v_lshrrev_b32 v7, 2, v4
    v_sub_u32 v7, v7, v5
    v_lshlrev_b32 v7, 4, v7
    v_add_u32 v7, 48, v7
    v_mul_u32_u24 v6, %d, v6
    v_add_u32 v20, v6, v7
    v_and_b32 v6, 1, v4
    v_lshrrev_b32 v7, 1, v4
    v_lshlrev_b32 v7, 6, v7
    v_lshl_add_u32 v7, v5, 4, v7
    v_sub_u32 v7, %d, v7
    v_mul_u32_u24 v6, %d, v6
    v_add_u32 v21, v6, v7
    """ % (KC_STRIDE, 496 + 4*KC_STRIDE, UC_STRIDE))
    a("s_waitcnt lgkmcnt(0)")
    a("s_barrier")
    stamp(a, dbg, 4)
    a("s_mov_b32 s8, s92\n s_mov_b32 s9, s93\n s_mov_b32 s10, 5308416\n s_mov_b32 s11, 0x20000")
    a("s_mov_b32 s12, s94\n s_mov_b32 s13, s95\n s_mov_b32 s14, 5308416\n s_mov_b32 s15, 0x20000")
    a("s_cmp_eq_u32 s39, 3")
    a("s_cbranch_scc1 L_nostrip")
    a("s_cmp_ge_u32 s2, 144")
    a("s_cbranch_scc1 L_nostrip")
    a("s_mul_i32 s57, s39, 12288")
    a("s_mov_b32 s52, s2")
    issue_w2(SBUF, 12)
    a.label("L_nostrip")
    RED = 3*CH_BYTES
    units_of = {0: [(0,p) for p in range(6)], 1: [(0,6),(0,7)]+[(1,p) for p in range(4)],
                2: [(1,p) for p in range(4,8)]+[(2,0),(2,1)], 3: [(2,p) for p in range(2,8)]}
    setid = {0: {0:0}, 1: {0:1, 1:2}, 2: {1:3, 2:4}, 3: {2:5}}
    for w in range(4):
        if w: a.label("L_mm%d" % w)
        if w < 3:
            a("s_cmp_lg_u32 s39, %d" % w)
            a("s_cbranch_scc1 L_mm%d" % (w+1))
        units = units_of[w]
        chs = sorted(set(c for c,_ in units))
        accbase = {c: 160 + 32*i for i, c in enumerate(chs)}
        started = set()
        def reads(ui):
            ch, phi = units[ui]
            fb = 32 + 64*(ui & 1)
            out = []
            for n in range(8):
                out.append("ds_read_b128 v[%d:%d], v21 offset:%d" % (fb+32+4*n, fb+35+4*n, ch*CH_BYTES + 3584 - 512*n + 64*phi))
                out.append("ds_read_b128 v[%d:%d], v20 offset:%d" % (fb+4*n, fb+3+4*n, ch*CH_BYTES + 512*n + 64*phi))
            return out
        for l in reads(0): a(l)
        for ui, (ch, phi) in enumerate(units):
            fb = 32 + 64*(ui & 1)
            nxt = reads(ui+1) if ui+1 < len(units) else []
            k = 0
            for t in range(8):
                if ui == 0: a("s_waitcnt lgkmcnt(%d)" % min(15, 14 - 2*t + (16 - len(nxt) if nxt is not None else 0)))
                elif t == 0: a("s_waitcnt lgkmcnt(0)")
                for ap in range(t+1):
                    ac = accbase[ch] + 4*t
                    j = t - ap
                    c_ = "v[%d:%d]" % (ac, ac+3) if (ch, t) in started else "0"
                    started.add((ch, t))
                    a("v_mfma_f32_16x16x32_bf16 v[%d:%d], v[%d:%d], v[%d:%d], %s" % (ac, ac+3, fb+32+4*j, fb+35+4*j, fb+4*ap, fb+3+4*ap, c_))
                    k += 1
                    if k % 2 == 0 and nxt and (ui > 0 or t >= 4): a(nxt.pop(0))
            while nxt: a(nxt.pop(0))
        a("s_nop 7\n s_nop 7")
        a("v_lshlrev_b32 v6, 8, v5\n v_lshl_add_u32 v6, v4, 3, v6")
        for c in chs:
            a("v_add_u32 v7, %d, v6" % (RED + setid[w][c]*8192))
            for t in range(8):
                ac = accbase[c] + 4*t
                a("ds_write_b64 v7, v[%d:%d] offset:%d" % (ac, ac+1, 1024*t))
                a("ds_write_b64 v7, v[%d:%d] offset:%d" % (ac+2, ac+3, 1024*t + 128))
        if w < 3: a("s_branch L_mmd")
    a.label("L_mmd")
    stamp(a, dbg, 5)
    a("""
    v_lshlrev_b32 v9, 5, v0
    v_lshlrev_b32 v10, 4, v0
    v_sub_u32 v11, %d, v10
    s_waitcnt lgkmcnt(0)
    s_barrier
    """ % (4080 + 4*KC_STRIDE))
    for c in range(3):
        b = 32 + 24*c
        a("v_add_u32 v12, %d, v9" % (RED + 2*c*8192))
        a("ds_read_b128 v[%d:%d], v12" % (b, b+3))
        a("ds_read_b128 v[%d:%d], v12 offset:16" % (b+4, b+7))
        a("ds_read_b128 v[%d:%d], v12 offset:8192" % (b+8, b+11))
        a("ds_read_b128 v[%d:%d], v12 offset:8208" % (b+12, b+15))
        a("ds_read_b128 v[%d:%d], v11 offset:%d" % (b+16, b+19, c*CH_BYTES + UC_STRIDE))
    for c in range(3): a("v_lshlrev_b32 v%d, 16, v%d" % (24+c, 24+c))
    for c in range(3):
        b = 32 + 24*c
        a("s_waitcnt lgkmcnt(%d)" % (10 - 5*c))
        for e in range(0, 8, 2):
            a("v_pk_add_f32 v[%d:%d], v[%d:%d], v[%d:%d]" % (b+e, b+e+1, b+e, b+e+1, b+8+e, b+9+e))
        for e in range(0, 8, 2): rnd_pair(a, b+e, b+8)
        for q in range(4):
            e_hi = 7 - 2*q
            a("v_lshlrev_b32 v%d, 16, v%d" % (b+8+e_hi, b+16+q))
            a("v_and_b32 v%d, s43, v%d" % (b+8+e_hi-1, b+16+q))
        for e in range(8): a("v_mul_f32 v%d, v%d, v%d" % (b+8+e, b+8+e, 24+c))
        for e in range(0, 8, 2): rnd_pair(a, b+8+e, b+16)
        for e in range(0, 8, 2):
            a("v_pk_add_f32 v[%d:%d], v[%d:%d], v[%d:%d]" % (b+e, b+e+1, b+e, b+e+1, b+8+e, b+9+e))
        for e in range(0, 8, 2): a("v_cvt_pk_bf16_f32 v%d, v%d, v%d" % (b+16+e//2, b+e, b+e+1))
        a("ds_write_b128 v10, v[%d:%d] offset:%d" % (b+16, b+19, c*CH_BYTES))
    a("""
    s_waitcnt lgkmcnt(0)
    s_barrier
    s_cmp_lg_u32 s39, 3
    s_cbranch_scc1 L_fzs
    """)
    for c in range(3):
        for q in range(4): a("ds_read_b128 v[%d:%d], v3 offset:%d" % (32+16*c+4*q, 35+16*c+4*q, c*CH_BYTES + q*1024))
    for c in range(3):
        a("s_add_u32 s49, s48, %d" % c)
        a("s_mul_i32 s49, s49, %d" % ZTS)
        a("s_add_u32 s49, s49, %d" % ZT)
        for q in range(4):
            a("s_waitcnt lgkmcnt(%d)" % (11 - 4*c - q))
            a("buffer_store_dwordx4 v[%d:%d], v3, s[28:31], s49 offen offset:%d sc1" % (32+16*c+4*q, 35+16*c+4*q, q*1024))
    a("""
    s_mul_i32 s49, s38, 24
    s_add_u32 s49, s49, s33
    s_lshl_b32 s49, s49, 3
    s_add_u32 s49, s49, %d
    v_mov_b32 v5, 0
    s_waitcnt vmcnt(0)
    """ % FZ)
    flag_store(a, 1, 49, 5, 6)
    a.label("L_fzs")
    stamp(a, dbg, 6)
    a("s_waitcnt vmcnt(0)")
    a("s_barrier")
    a("s_branch L_join")

    a.label("L_pack")
    pack_setup(9); pack_setup2()
    a("s_sub_u32 s48, s2, 192")
    a("v_mov_b32 v5, 0")
    a("s_mov_b32 s52, s48"); issue_w1(0, 9)
    a("s_add_u32 s52, s48, 64"); issue_w1(36864, 9)
    a("s_cmp_ge_u32 s48, 16")
    a("s_cbranch_scc1 L_pack2")
    a("s_add_u32 s52, s48, 128"); issue_w1(73728, 9)
    q_precompute(32)
    a("s_waitcnt vmcnt(18)\n s_barrier")
    a("s_mov_b32 s52, s48"); proc_w1(0, 32); a("s_mov_b32 s100, s49")
    a("s_waitcnt vmcnt(18)\n s_barrier")
    a("s_add_u32 s52, s48, 64"); proc_w1(36864, 68); a("s_mov_b32 s101, s49")
    a("s_waitcnt vmcnt(18)\n s_barrier")
    a("s_add_u32 s52, s48, 128"); proc_w1(73728, 104)
    a("s_waitcnt vmcnt(0)")
    flag_store(a, 1, 49, 5, 6)
    a("s_branch L_pack_fin")
    a.label("L_pack2")
    q_precompute(23)
    a("s_waitcnt vmcnt(9)\n s_barrier")
    a("s_mov_b32 s52, s48"); proc_w1(0, 32); a("s_mov_b32 s100, s49")
    a("s_waitcnt vmcnt(9)\n s_barrier")
    a("s_add_u32 s52, s48, 64"); proc_w1(36864, 68); a("s_mov_b32 s101, s49")
    a.label("L_pack_fin")
    a("s_waitcnt vmcnt(0)")
    flag_store(a, 1, 100, 5, 6)
    flag_store(a, 1, 101, 5, 6)
    stamp(a, dbg, 6)
    a("s_barrier")

    a.label("L_join")
    vm = VM()
    for sl in range(4): a("v_add_u32 v%d, %d, v3" % (4+sl, sl*36864))
    a("s_mov_b32 s45, %d" % FZ)
    def dma(stage, i, S_=None):
        slot = stage % 4
        if i % 4 == 0:
            a_ = a if S_ is None else S_.a
            a_("s_add_u32 m0, s40, %d" % (slot*36864 + i*1024))
            if stage < 9: a_("s_add_u32 s44, s41, %d" % (stage*36864 + i*1024))
            else:         a_("s_add_u32 s44, s42, %d" % ((stage-9)*36864 + i*1024))
        (a if S_ is None else S_.a)("buffer_load_dwordx4 v3, s[28:31], s44 offen offset:%d sc1 lds" % ((i % 4)*1024))
    ln_consts(a, RS)
    a("""
    v_lshlrev_b32 v8, 13, v2
    s_min_u32 s50, s39, 2
    s_mul_i32 s48, s50, 1572864
    s_lshl_b32 s49, s37, 1
    s_add_u32 s48, s48, s49
    s_add_u32 s48, s48, %d
    s_mul_i32 s49, s50, 3072
    v_lshrrev_b32 v14, 4, v2
    v_lshlrev_b32 v14, 8, v14
    v_bfe_u32 v15, v2, 1, 1
    v_lshl_add_u32 v14, v15, 7, v14
    v_bfe_u32 v15, v2, 2, 2
    v_lshl_add_u32 v14, v15, 4, v14
    v_and_b32 v15, 1, v2
    v_lshl_add_u32 v14, v15, 3, v14
    v_add_u32 v14, s49, v14
    v_add_u32 v14, %d, v14
    s_cmp_eq_u32 s39, 3
    s_cbranch_scc1 L_w3
    """ % (ZT, ZL))
    a("v_mov_b32 v150, %d" % LW)
    a("s_cmp_lg_u32 s39, 0")
    a("s_cbranch_scc1 L_fz_lds")
    flag_load(a, 20, 3, 45, True); flag_load(a, 24, 3, 45, True, 1024)
    poll(a, 0, [(20, 3, 45, True, 0, FULL), (24, 3, 45, True, 1024, (1 << 32) - 1)], 1, 18, "L_pfz")
    a("v_mov_b32 v151, s%d" % SN0)
    a("ds_write_b32 v150, v151")
    a("s_branch L_fz_go")
    a.label("L_fz_lds")
    a("s_mov_b32 s58, 0")
    a.label("L_fz_spin")
    a("""
    ds_read_b32 v151, v150
    s_waitcnt lgkmcnt(0)
    v_readfirstlane_b32 s59, v151
    s_add_u32 s58, s58, 1
    s_cmp_eq_u32 s59, s%d
    s_cbranch_scc1 L_fz_go
    s_cmp_gt_u32 s58, 4000000
    s_cbranch_scc1 L_fz_go
    s_sleep 1
    s_branch L_fz_spin
    """ % SN0)
    a.label("L_fz_go")
    stamp(a, dbg, 7)
    for it in range(3):
        a("s_add_u32 m0, s49, %d" % (ZL + it*1024))
        a("s_add_u32 s47, s48, %d" % (it*524288))
        a("buffer_load_dwordx4 v8, s[28:31], s47 offen sc1 lds")
    X = 40; Q = 64; Hh = 88; T = 120
    for i in range(12):
        a("v_lshlrev_b32 v%d, 16, v%d" % (X+2*i, XQ+i)); a("v_and_b32 v%d, s43, v%d" % (X+2*i+1, XQ+i))
        a("v_lshlrev_b32 v%d, 16, v%d" % (Q+2*i, XQ+12+i)); a("v_and_b32 v%d, s43, v%d" % (Q+2*i+1, XQ+12+i))
    a("s_waitcnt vmcnt(0)")
    stamp(a, dbg, 8)
    for it in range(3):
        a("ds_read_b64_tr_b16 v[%d:%d], v14 offset:%d" % (28+4*it, 29+4*it, it*1024))
        a("ds_read_b64_tr_b16 v[%d:%d], v14 offset:%d" % (30+4*it, 31+4*it, it*1024 + 64))
    a("s_waitcnt lgkmcnt(0)")
    for i in range(12):
        d = 140
        a("v_lshlrev_b32 v%d, 16, v%d" % (d+2, 28+i))
        a("v_and_b32 v%d, s43, v%d" % (d+3, 28+i))
        a("v_pk_mul_f32 v[%d:%d], v[%d:%d], v[%d:%d]" % (d, d+1, Q+2*i, Q+2*i+1, d+2, d+3)); rnd_pair(a, d, d+4)
        a("v_pk_add_f32 v[%d:%d], v[%d:%d], v[%d:%d]" % (Hh+2*i, Hh+2*i+1, X+2*i, X+2*i+1, d, d+1)); rnd_pair(a, Hh+2*i, 16+i)
    a("s_add_u32 s47, s46, %d" % HB)
    for it in range(3):
        a("buffer_store_dwordx4 v[%d:%d], v13, s[28:31], s47 offen offset:%d sc1" % (16+4*it, 19+4*it, it*128))
    ln_stats(a, Hh, T, 1, spin=SN0)
    for i in range(12):
        d = 140
        a("v_pk_add_f32 v[%d:%d], v[%d:%d], v[%d:%d]" % (d, d+1, Hh+2*i, Hh+2*i+1, T, T+1)); rnd_pair(a, d, d+4)
        a("v_pk_mul_f32 v[%d:%d], v[%d:%d], v[%d:%d]" % (d, d+1, d, d+1, T+2, T+3))
        a("v_cvt_pk_bf16_f32 v%d, v%d, v%d" % (28+i, d, d+1))
    a("""
    v_lshrrev_b32 v8, 5, v2
    v_lshlrev_b32 v8, 10, v8
    v_bfe_u32 v15, v2, 3, 2
    v_lshl_add_u32 v8, v15, 8, v8
    v_lshl_add_u32 v8, v9, 4, v8
    s_lshr_b32 s47, s37, 4
    s_mul_i32 s47, s47, 18
    s_mul_i32 s48, s39, 6
    s_add_u32 s47, s47, s48
    s_lshl_b32 s47, s47, 10
    s_and_b32 s48, s36, 1
    s_lshl_b32 s48, s48, 7
    s_add_u32 s47, s47, s48
    s_add_u32 s47, s47, %d
    """ % XNF)
    for it in range(3):
        if it == 2: a("s_add_u32 s47, s47, 4096")
        a("buffer_store_dwordx4 v[%d:%d], v8, s[28:31], s47 offen offset:%d sc1" % (28+4*it, 31+4*it, (it*2048) % 4096))
    a("""
    s_lshl_b32 s47, s35, 2
    s_add_u32 s47, s47, s32
    s_lshl_b32 s47, s47, 7
    s_lshl_b32 s48, s34, 5
    s_add_u32 s47, s47, s48
    s_lshl_b32 s48, s39, 3
    s_add_u32 s47, s47, s48
    s_add_u32 s47, s47, %d
    v_mov_b32 v8, 0
    s_waitcnt vmcnt(0)
    """ % F1)
    flag_store(a, 1, 47, 8, 16)
    a("s_branch L_lnd")
    a.label("L_w3")
    a("""
    v_lshlrev_b32 v8, 3, v2
    s_lshl_b32 s101, s36, 9
    s_add_u32 s101, s101, %d
    v_mov_b32 v10, 0
    """ % FP1)
    flag_load(a, 16, 8, 101)
    a("s_cmp_ge_u32 s2, 144")
    a("s_cbranch_scc1 L_w3_nostrip")
    pack_setup2()
    a("s_mov_b32 s52, s2")
    for vw in range(4): proc_w2(SBUF, vw, 32 + 36*vw)
    a("s_mov_b32 s100, s49")
    a("s_branch L_w3_chk")
    a.label("L_w3_nostrip")
    a("s_waitcnt vmcnt(0)")
    a.label("L_w3_chk")
    poll(a, 36, [(16, 8, 101, False, 0, (1 << 36) - 1)], 1, 18, "L_pp1")
    a("s_sub_u32 s46, s41, s40")
    for st in range(3):
        for i in range(36):
            if i % 4 == 0:
                a("s_mov_b32 m0, %d" % (st*36864 + i*1024))
                a("s_add_u32 s44, s46, %d" % (st*36864 + i*1024))
            a("buffer_load_dwordx4 v3, s[28:31], s44 offen offset:%d sc1 lds" % ((i % 4)*1024))
    a("s_cmp_ge_u32 s2, 144")
    a("s_cbranch_scc1 L_lnd")
    a("s_waitcnt vmcnt(63)")
    for vw in range(4):
        a("s_sub_u32 s49, s100, %d" % (512*(3-vw)))
        flag_store(a, 1, 49, 10, 16)
    a.label("L_lnd")
    stamp(a, dbg, 9)
    a("""
    s_lshl_b32 s47, s35, 2
    s_add_u32 s47, s47, s39
    s_lshl_b32 s47, s47, 7
    s_add_u32 s47, s47, %d
    v_and_b32 v8, 15, v2
    v_lshlrev_b32 v8, 3, v8
    """ % F1)
    flag_load(a, 16, 8, 47)
    poll(a, 0, [(16, 8, 47, False, 0, 0x7777)], 1, 18, "L_pf1")
    stamp(a, dbg, 10)
    a("""
    s_lshl_b32 s47, s35, 3
    s_lshl_b32 s48, s39, 1
    s_add_u32 s47, s47, s48
    s_mul_i32 s47, s47, 18432
    s_add_u32 s47, s47, %d
    """ % XNF)
    xn_seq = {}
    for ks in range(18):
        for mt in range(2):
            off = (mt*18 + ks)*1024
            a("s_add_u32 s48, s47, %d" % (off - off % 4096))
            r = (ks*2+mt)*4
            a("buffer_load_dwordx4 a[%d:%d], v3, s[28:31], s48 offen offset:%d sc1" % (r, r+3, off % 4096))
            xn_seq[(ks, mt)] = vm.issue()
    a("""
    s_lshl_b32 s45, s35, 2
    s_add_u32 s45, s45, s39
    s_mul_i32 s46, s45, %d
    s_add_u32 s46, s46, %d
    s_mul_i32 s47, s36, 9216
    s_add_u32 s47, s47, s46
    s_lshl_b32 s48, s35, 2
    s_add_u32 s48, s48, s32
    s_lshl_b32 s48, s48, 2
    s_add_u32 s48, s48, s39
    s_lshl_b32 s48, s48, 7
    s_add_u32 s48, s48, %d
    s_lshl_b32 s49, s35, 2
    s_add_u32 s49, s49, s34
    s_lshl_b32 s49, s49, 2
    s_add_u32 s49, s49, s39
    s_mul_i32 s50, s49, 73728
    s_add_u32 s50, s50, %d
    s_lshl_b32 s49, s49, 7
    s_add_u32 s49, s49, %d
    v_and_b32 v8, 3, v2
    v_lshlrev_b32 v8, 3, v8
    v_mov_b32 v10, 0
    s_lshl_b32 s51, s34, 3
    s_add_u32 s51, s51, s48
    s_lshl_b32 s52, s32, 3
    s_add_u32 s52, s52, s49
    v_lshlrev_b32 v9, 3, v2
    s_lshl_b32 s100, s36, 9
    s_add_u32 s100, s100, %d
    """ % (2*HFS, HF, F2, PART, F3, FP2))
    for pr in range(3):
        a("s_add_u32 s%d, s34, %d" % (53+pr, 1+pr))
        a("s_and_b32 s%d, s%d, 3" % (53+pr, 53+pr))
        a("s_lshl_b32 s56, s32, 2")
        a("s_add_u32 s%d, s%d, s56" % (53+pr, 53+pr))
        a("s_mul_i32 s%d, s%d, 9216" % (53+pr, 53+pr))
        a("s_add_u32 s%d, s%d, s46" % (53+pr, 53+pr))
    a("""
    v_and_b32 v11, 15, v2
    v_mul_u32_u24 v11, 1152, v11
    v_lshrrev_b32 v12, 4, v2
    v_lshl_add_u32 v11, v12, 3, v11
    s_lshl_b32 s56, s35, 7
    s_lshl_b32 s57, s39, 5
    s_add_u32 s56, s56, s57
    s_mul_i32 s56, s56, 1152
    s_mul_i32 s57, s34, 288
    s_add_u32 s56, s56, s57
    s_add_u32 s57, s56, %d
    """ % HB)
    units = order_units()
    NF = 648
    SPLITQ = 536
    def frag_mfmas(gf):
        st, f = divmod(gf, 36)
        rb = VB + (gf % RING)*4
        out = []
        if st < 9:
            if st < 3: ks = 6*st + f // 6; T_ = f % 6
            else:      ks = f // 2; T_ = 2*st + (f & 1)
            for mt in range(2):
                ac = acc1_reg(T_, mt); xr = (ks*2+mt)*4
                src = "0" if ks == 0 else "v[%d:%d]" % (ac, ac+3)
                out.append("v_mfma_f32_16x16x32_bf16 v[%d:%d], v[%d:%d], a[%d:%d], %s" % (ac, ac+3, rb, rb+3, xr, xr+3, src))
        else:
            uu, tt = divmod(gf - 324, 3)
            c2, (kind, pr, k9) = units[uu]
            first = uu in (0, 9, 18)
            for mt in range(2):
                ac = acc2_reg(c2, tt, mt)
                if kind == "o": hr = "v[%d:%d]" % (HO + (k9*2+mt)*4, HO + (k9*2+mt)*4 + 3)
                else:
                    r = areg_partner(pr, k9, mt); hr = "a[%d:%d]" % (r, r+3)
                src = "0" if first else "v[%d:%d]" % (ac, ac+3)
                out.append("v_mfma_f32_16x16x32_bf16 v[%d:%d], v[%d:%d], %s, %s" % (ac, ac+3, rb, rb+3, hr, src))
        return out
    class S: pass
    def tau_info(tau):
        c2, r = divmod(tau, 6); tt, mt = divmod(r, 2)
        return c2, tt, mt
    def build_tasks(svar):
        tasks = {}
        def at(q, fn): tasks.setdefault(q, []).append(fn)
        busy = set()
        for nb in range(15):
            b0 = max(0, 36*nb - LB)
            for i in range(9): busy.add(b0 + 1 + (DSP if nb else 3)*i)
        def vslot(q):
            while q in busy or (q-1) in busy or (q+1) in busy: q += 1
            busy.add(q); return q
        qw = vslot(60)
        def wl(a, S_): flag_load(a, 12, 9, 100); S_.fseq = S_.vm.issue()
        at(qw, wl)
        def wc(a, S_): poll(a, S_.vm.wait_cnt(S_.fseq), [(12, 9, 100, False, 0, (1 << 36) - 1)], 1, 14, "L_pw2")
        at(qw + 30, wc)
        lastq = 0; kq = 0
        for k9 in range(9):
            q0 = max(108, 36*(k9+1)) + 1
            kq = max(kq, q0*VPS)
            for mt in range(2):
                hr = HO + (k9*2+mt)*4
                for half in range(2):
                    ac = acc1_reg(2*k9+half, mt)
                    for e in range(2):
                        def f(a, S_, d=hr+2*half+e, s0=ac+2*e): a("v_cvt_pk_bf16_f32 v%d, v%d, v%d" % (d, s0, s0+1))
                        f.valu = True; at(kq//VPS, f); kq += 1
                for e in range(4):
                    def g(a, S_, r=hr+e): a("v_pk_max_i16 v%d, v%d, v10" % (r, r))
                    g.valu = True; at(kq//VPS, g); kq += 1
                def h(a, S_, hr=hr, k9=k9, mt=mt):
                    a("s_add_u32 s45, s47, %d" % (mt*HFS + k9*1024))
                    a("buffer_store_dwordx4 v[%d:%d], v3, s[28:31], s45 offen sc1" % (hr, hr+3))
                    S_.hst[k9] = S_.vm.issue()
                lastq = vslot(max(lastq + (SSP if k9 > 2 else 6), kq//VPS + 1))
                at(lastq, h)
            if k9 in (2, 4, 6, 8):
                def fl(a, S_, k9=k9):
                    a("s_waitcnt vmcnt(%d)" % S_.vm.wait_cnt(S_.hst[k9]))
                    flag_store(a, k9+1, 51, 10, 14); S_.vm.issue()
                at(vslot(lastq + FLAGD[0]), fl)
        lastq = 0
        pq = [vslot(p[0]) for p in POLLS]
        for pi, (qp, need, lo, hi) in enumerate(POLLS):
            def pl(a, S_): flag_load(a, 12, 8, 48); S_.fseq = S_.vm.issue()
            qp = pq[pi]; at(qp, pl)
            qc = qp + CHKD
            assert qc < SPLITQ
            def pc(a, S_, pi=pi, need=need):
                poll(a, S_.vm.wait_cnt(S_.fseq), [(12, 8, 48, False, 0, FULL)], need, 14, "L_p2_%d" % pi)
            at(qc, pc)
            lastq = max(lastq, qc + 1)
            for i in range(lo, hi):
                k9, pr = divmod(i, 3)
                if i >= 14: lastq = max(lastq, 326)
                for mt in range(2):
                    def ld(a, S_, pr=pr, k9=k9, mt=mt):
                        r = areg_partner(pr, k9, mt)
                        a("s_add_u32 s45, s%d, %d" % (53+pr, mt*HFS + k9*1024))
                        a("buffer_load_dwordx4 a[%d:%d], v3, s[28:31], s45 offen sc1" % (r, r+3))
                        S_.hld[(pr, k9, mt)] = S_.vm.issue()
                    lastq = vslot(lastq); at(lastq, ld)
        lastq = 0
        for c2, qe in ((0, 324 + 72*3), (1, 324 + 81*3)):
            for tt in range(3):
                for mt in range(2):
                    tau = 6*c2 + 2*tt + mt
                    if tau % 4 == svar: continue
                    def ps(a, S_, tau=tau, ac=acc2_reg(c2, tt, mt)):
                        a("s_add_u32 s45, s50, %d" % ((tau*4 + svar)*1024))
                        a("buffer_store_dwordx4 v[%d:%d], v3, s[28:31], s45 offen sc1" % (ac, ac+3))
                        S_.pst = S_.vm.issue()
                    lastq = vslot(max(lastq + PSP, qe + 1)); at(lastq, ps)
        def fl3(a, S_):
            a("s_waitcnt vmcnt(%d)" % S_.vm.wait_cnt(S_.pst))
            flag_store(a, 1, 52, 10, 14); S_.vm.issue()
        at(min(NF-1, lastq + FLAGD[1]), fl3)
        assert max(tasks) < NF
        return tasks
    def fin_loads(a, S_, tau, B, svar):
        c2, tt, mt = tau_info(tau)
        for i, s_ in enumerate([x for x in range(4) if x != svar]):
            a("s_add_u32 s45, s50, %d" % ((tau*4 + s_)*1024))
            a("buffer_load_dwordx4 v[%d:%d], v3, s[28:31], s45 offen sc1" % (B+4*i, B+4*i+3)); S_.vm.issue()
        a("s_add_u32 s45, s57, %d" % (mt*18432 + c2*96 + tt*32))
        a("buffer_load_dwordx2 v[%d:%d], v11, s[28:31], s45 offen sc1" % (B+12, B+13))
        S_.fin[tau] = S_.vm.issue()
    def fin_math(a, S_, tau, B, svar):
        c2, tt, mt = tau_info(tau)
        ac = acc2_reg(c2, tt, mt)
        regs = {s_: B + 4*i for i, s_ in enumerate([x for x in range(4) if x != svar])}
        regs[svar] = ac
        a("s_waitcnt vmcnt(%d)" % S_.vm.wait_cnt(S_.fin[tau]))
        cur = ac if svar in (0, 1) else regs[0]
        for h_ in range(2):
            a("v_pk_add_f32 v[%d:%d], v[%d:%d], v[%d:%d]" % (cur+2*h_, cur+2*h_+1, regs[0]+2*h_, regs[0]+2*h_+1, regs[1]+2*h_, regs[1]+2*h_+1))
        for s_ in (2, 3):
            for h_ in range(2):
                a("v_pk_add_f32 v[%d:%d], v[%d:%d], v[%d:%d]" % (cur+2*h_, cur+2*h_+1, cur+2*h_, cur+2*h_+1, regs[s_]+2*h_, regs[s_]+2*h_+1))
        for h_ in range(2):
            r = cur + 2*h_
            rnd_pair(a, r, B+14)
            a("v_lshlrev_b32 v%d, 16, v%d" % (B+4+2*h_, B+12+h_))
            a("v_and_b32 v%d, s43, v%d" % (B+5+2*h_, B+12+h_))
            a("v_pk_add_f32 v[%d:%d], v[%d:%d], v[%d:%d]" % (r, r+1, r, r+1, B+4+2*h_, B+5+2*h_))
        for h_ in range(2): a("v_cvt_pk_bf16_f32 v%d, v%d, v%d" % (B+8+h_, cur+2*h_, cur+2*h_+1))
        a("s_add_u32 s45, s56, %d" % (mt*18432 + c2*96 + tt*32))
        a("buffer_store_dwordx2 v[%d:%d], v11, s[20:23], s45 offen" % (B+8, B+9)); S_.vm.issue()
    def run_main(a, S_, q_from, q_to, tasks):
        for q in range(q_from, q_to):
            st, f = divmod(q, 36)
            nb = S_.bar + 1
            if nb < 18 and q == max(0, 36*nb - LB):
                if nb > 0: a("s_waitcnt lgkmcnt(0)")
                S_.rd_done = S_.p
                a("s_waitcnt vmcnt(%d)" % min(63, S_.vm.wait_cnt(S_.dseq[nb])))
                a("s_barrier")
                if nb == 0: stamp(a, dbg, 11)
                if sdbg is not False and 0 <= nb - sdbg < 12: a("s_memtime s[%d:%d]" % (64+2*(nb-sdbg), 65+2*(nb-sdbg)))
                S_.bar = nb
                assert not S_.pend
                if nb + 3 < 18: S_.pend = [(nb+3, i) for i in range(9)]
            def rd():
                if S_.p < NF and S_.p <= q + LMAX and S_.p < 36*(S_.bar+1):
                    gp = S_.p; r = VB + (gp % RING)*4
                    a("ds_read_b128 v[%d:%d], v%d offset:%d" % (r, r+3, 4 + (gp//36) % 4, (gp % 36)*1024))
                    S_.p += 1
                    return True
                return False
            if q == 0:
                while rd(): pass
            if q >= S_.rd_done:
                tgt = min(q + 1, S_.p - 1)
                a("s_waitcnt lgkmcnt(%d)" % min(15, S_.p - tgt - 1))
                S_.rd_done = tgt + 1
            if st < 3 and f % 6 == 0:
                a("s_waitcnt vmcnt(%d)" % min(63, S_.vm.wait_cnt(xn_seq[(6*st + f//6, 1)])))
            if st >= 9:
                uu, tt = divmod(q - 324, 3)
                c2, (kind, pr, k9) = units[uu]
                if kind == "p" and tt == 0 and (pr, k9) not in S_.hwaited:
                    S_.hwaited.add((pr, k9))
                    a("s_waitcnt vmcnt(%d)" % min(63, S_.vm.wait_cnt(S_.hld[(pr, k9, 1)])))
            m1, m2 = frag_mfmas(q)
            tl = list(tasks.get(q, []))
            a(m1)
            rd()
            if tl and getattr(tl[0], "valu", False): tl.pop(0)(a, S_)
            a(m2)
            did = False
            if S_.pend and (q - max(0, 36*S_.bar - LB)) % (DSP if S_.bar else 3) == 1:
                stg, i = S_.pend.pop(0)
                dma(stg, i); S_.dseq[stg] = S_.vm.issue(); did = True
            for fn in tl: fn(a, S_); did = True
            if not did: rd()
    S0 = S(); S0.vm = vm; S0.bar = -1; S0.p = 0; S0.rd_done = 0; S0.pend = []
    S0.dseq = {0: 0, 1: 0, 2: 0}; S0.hst = {}; S0.hld = {}; S0.hwaited = set(); S0.fin = {}
    run_main(a, S0, 0, SPLITQ, build_tasks(0))
    for svar in range(4):
        if svar: a.label("L_v%d" % svar)
        if svar < 3:
            a("s_cmp_lg_u32 s32, %d" % svar)
            a("s_cbranch_scc1 L_v%d" % (svar+1))
        S_ = copy.deepcopy(S0)
        run_main(a, S_, SPLITQ, NF, build_tasks(svar))
        if dbg: a("s_memrealtime s[90:91]")
        if sdbg is not False: a("s_memtime s[90:91]")
        a("s_nop 7")
        for tau in range(12, 18):
            if tau % 4 == svar: continue
            c2, tt, mt = tau_info(tau); ac = acc2_reg(c2, tt, mt)
            a("s_add_u32 s45, s50, %d" % ((tau*4 + svar)*1024))
            a("buffer_store_dwordx4 v[%d:%d], v3, s[28:31], s45 offen sc1" % (ac, ac+3)); S_.vm.issue()
        flag_load(a, 12, 8, 49); seq = S_.vm.issue()
        a("s_waitcnt vmcnt(0)")
        flag_store(a, 2, 52, 10, 14); S_.vm.issue()
        poll(a, S_.vm.wait_cnt(seq), [(12, 8, 49, False, 0, FULL)], 1, 14, "L_p3a_%d" % svar)
        own01 = [t for t in range(12) if t % 4 == svar]
        own = [t for t in range(12, 18) if t % 4 == svar]
        for i, tau in enumerate(own01): fin_loads(a, S_, tau, HO + 16*i, svar)
        flag_load(a, 12, 8, 49); seq = S_.vm.issue()
        poll(a, S_.vm.wait_cnt(seq), [(12, 8, 49, False, 0, FULL)], 2, 14, "L_p3b_%d" % svar)
        for i, tau in enumerate(own): fin_loads(a, S_, tau, VB + 16*i, svar)
        for i, tau in enumerate(own01): fin_math(a, S_, tau, HO + 16*i, svar)
        for i, tau in enumerate(own): fin_math(a, S_, tau, VB + 16*i, svar)
        if dbg or sdbg is not False:
            a("s_waitcnt vmcnt(0)")
            a("s_memrealtime s[92:93]")
            a("s_waitcnt lgkmcnt(0)")
            for i in range(12): a("v_mov_b32 v%d, s%d" % (16+i, 64+2*i))
            a("v_mov_b32 v28, s90\n v_mov_b32 v29, s92\n v_mov_b32 v30, 0\n v_mov_b32 v31, 0")
            a("s_lshl_b32 s62, s2, 2\n s_add_u32 s62, s62, s39\n s_lshl_b32 s62, s62, 6\n s_add_u32 s62, s62, %d" % STAMP)
            a("s_mov_b64 exec, 1")
            for k_ in range(4): a("buffer_store_dwordx4 v[%d:%d], v10, s[28:31], s62 offen offset:%d" % (16+4*k_, 19+4*k_, 16*k_))
            if dbg == 2:
                lab = a.newlabel("L_dd")
                a("s_load_dwordx2 s[60:61], s[0:1], 80")
                a("s_waitcnt lgkmcnt(0)")
                srd(a, 4, 60, 256)
                a("s_or_b32 s62, s2, s39\n s_cmp_lg_u32 s62, 0\n s_cbranch_scc1 %s" % lab)
                for i in range(1, 14): a("v_subrev_u32 v%d, s64, v%d" % (16+i, 16+i))
                for i in range(1, 14): a("buffer_store_dword v%d, v10, s[4:7], 0 offen offset:%d" % (16+i, 4*i))
                a.label(lab)
        a("s_endpgm")
    a.label("L_end")
    a("s_endpgm")
    return dict(name=KNAME, grid=256, block=256, lds=ONE_LDS, body=a.text(), vgpr=512, sgpr=102, accum=256)

def make_single(k, hdr):
    import subprocess, re
    t = make_file([k], hdr)
    open("_sz.s", "w").write(t.replace("NCODELINES", "1"))
    subprocess.check_call(["clang", "-x", "assembler", "-target", "amdgcn-amd-amdhsa", "-mcpu=gfx950", "-c", "_sz.s", "-o", "_sz.o"])
    o = subprocess.check_output(["llvm-readelf", "-S", "_sz.o"]).decode()
    size = int(re.search(r"\.text\s+PROGBITS\s+\S+\s+\S+\s+(\S+)", o).group(1), 16)
    nl = (size - 64) // 128 - 1
    assert nl < 1024
    t = t.replace("NCODELINES", str(nl))
    return t.replace("; @launch kernel=%s grid" % KNAME, "; @launch grid")

if __name__ == "__main__":
    hdr = open("sequential_preLN__ssm_conv_h3__dense_activation_relu__prompt.s.ref").read().split("; Override")[0]
    t1 = make_single(gen_one(), hdr); t2 = make_single(gen_one(dbg=True), hdr)
    open("three.s", "w").write(t1); open("three_dbg.s", "w").write(t2)
    open("three_s0.s", "w").write(make_single(gen_one(sdbg=0), hdr)); open("three_s6.s", "w").write(make_single(gen_one(sdbg=6), hdr))
    open("../cdna_kernels/varDbg.s", "w").write(make_single(gen_one(dbg=2), hdr))
```

```python
import copy
from asmlib import *
from layout import *
from gen_front import srd, check_magic
from gen_kb import VM, order_units, areg_partner, acc2_reg, acc1_reg, rnd_pair, rnd1, ln_stats, ZL, RS, KB_LDS, RING, VB, HO, ACC

KNAME = "sequential_preLN__ssm_conv_h3__dense_activation_relu__prompt_kernel"
FA  = FLAGS
FZ  = FLAGS + 0x20000
FP1 = FLAGS + 0x3000
FP2 = FLAGS + 0x5000
F1  = FLAGS + 0x7000
F2  = FLAGS + 0x10000
F3  = FLAGS + 0x18000
SPIN_MAX = 20000
STAMP = 0x6000000 + BASE
SN0, SN1 = 88, 89
ZT = UG; ZTS = 8192
ZL = 110592; RS = ZL + 9216; LW = RS + 640
SBUF = 3*CH_BYTES + 6*8192
ONE_LDS = SBUF + 36864
XQ = 232

def stamp(a, dbg, i):
    if dbg: a("s_memrealtime s[%d:%d]" % (64+2*i, 65+2*i))

def flag_store(a, val, soff, vz, vt):
    a("s_add_u32 s61, s%d, %d" % (SN0, val))
    a("v_mov_b32 v%d, s61" % vt)
    a("v_mov_b32 v%d, s%d" % (vt+1, SN1))
    a("s_mov_b64 exec, 1")
    a("buffer_store_dwordx2 v[%d:%d], v%d, s[28:31], s%d offen sc1" % (vt, vt+1, vz, soff))
    a("s_mov_b64 exec, -1")

def flag_load(a, vd, vaddr, soff, wide=False, off=0):
    if wide: a("buffer_load_dwordx4 v[%d:%d], v%d, s[28:31], s%d offen offset:%d sc1" % (vd, vd+3, vaddr, soff, off))
    else:    a("buffer_load_dwordx2 v[%d:%d], v%d, s[28:31], s%d offen offset:%d sc1" % (vd, vd+1, vaddr, soff, off))

def poll(a, waitn, loads, need, vt, lab, alt=None):
    def check(shift):
        a("s_mov_b64 s[60:61], -1")
        for (vd, vaddr, soff, wide, off, mask) in loads:
            vd += shift
            for h in range(2 if wide else 1):
                a("v_subrev_u32 v%d, s59, v%d" % (vt, vd+2*h))
                a("v_cmp_gt_u32 vcc, %d, v%d" % (16-need, vt))
                a("v_cmp_eq_u32 s[62:63], s%d, v%d" % (SN1, vd+2*h+1))
                a("s_nop 1")
                a("s_and_b64 vcc, vcc, s[62:63]")
                if mask != (1 << 64) - 1:
                    a("s_mov_b32 s62, 0x%x" % (~mask & 0xffffffff))
                    a("s_mov_b32 s63, 0x%x" % ((~mask >> 32) & 0xffffffff))
                    a("s_or_b64 vcc, vcc, s[62:63]")
                a("s_and_b64 s[60:61], s[60:61], vcc")
        a("s_cmp_eq_u64 s[60:61], -1")
        a("s_cbranch_scc1 %s_ok" % lab)
    def issue(shift):
        for (vd, vaddr, soff, wide, off, mask) in loads: flag_load(a, vd+shift, vaddr, soff, wide, off)
    a("s_waitcnt vmcnt(%d)" % min(63, waitn))
    a("s_mov_b32 s58, 0")
    a("s_add_u32 s59, s%d, %d" % (SN0, need))
    if alt is None:
        a.label(lab + "_chk")
        check(0)
        a("s_add_u32 s58, s58, 1")
        a("s_cmp_gt_u32 s58, %d" % SPIN_MAX)
        a("s_cbranch_scc1 %s_ok" % lab)
        issue(0)
        a("s_waitcnt vmcnt(0)")
        a("s_branch %s_chk" % lab)
    else:
        sh = alt - loads[0][0]; n = len(loads)
        check(0)
        issue(0)
        a("s_sleep 4")
        issue(sh)
        a.label(lab + "_chk")
        a("s_waitcnt vmcnt(%d)" % n)
        check(0)
        issue(0)
        a("s_waitcnt vmcnt(%d)" % n)
        check(sh)
        issue(sh)
        a("s_add_u32 s58, s58, 1")
        a("s_cmp_gt_u32 s58, %d" % SPIN_MAX)
        a("s_cbranch_scc0 %s_chk" % lab)
    a.label(lab + "_ok")
FULL = (1 << 64) - 1

def kv_item(a, R, sfx):
    a("v_and_b32 v%d, 7, v%d" % (R+1, R))
    a("v_lshrrev_b32 v%d, 3, v%d" % (R+2, R))
    a("v_lshlrev_b32 v%d, 3, v%d" % (R+1, R+1))
    a("v_add_u32 v%d, s44, v%d" % (R+1, R+1))
    a("v_mul_u32_u24 v%d, 1152, v%d" % (R+3, R+1))
    a("v_lshlrev_b32 v%d, 2, v%d" % (R+4, R+2))
    a("v_add3_u32 v%d, v%d, v%d, s45" % (R+3, R+3, R+4))
    a("v_add_u32 v%d, 4608, v%d" % (R+4, R+3))
    a("v_subrev_u32 v%d, 4608, v%d" % (R+5, R+3))
    a("v_cmp_eq_u32 vcc, 0, v%d" % (R+1))
    a("v_mov_b32 v%d, 0x80000000" % (R+6))
    a("s_nop 1")
    a("v_cndmask_b32 v%d, v%d, v%d, vcc" % (R+5, R+5, R+6))
    a("v_lshlrev_b32 v%d, 4, v%d" % (R+6, R+2))
    L = R + 8
    for i in range(4): a("buffer_load_dword v%d, v%d, s[8:11], 0 offen offset:%d nt" % (L+i, R+5, i*1152))
    for i in range(4): a("buffer_load_dword v%d, v%d, s[8:11], 0 offen offset:%d nt" % (L+4+i, R+3, i*1152))
    for i in range(4): a("buffer_load_dword v%d, v%d, s[8:11], 0 offen offset:%d nt" % (L+8+i, R+4, i*1152))
    a("buffer_load_dword v%d, v%d, s[12:15], 0 offen offset:3456 nt" % (L+12, R+5))
    for i in range(4): a("buffer_load_dword v%d, v%d, s[12:15], 0 offen offset:%d nt" % (L+13+i, R+3, i*1152))
    for i in range(4): a("buffer_load_dword v%d, v%d, s[12:15], 0 offen offset:%d nt" % (L+17+i, R+4, i*1152))
    a("buffer_load_dwordx4 v[%d:%d], v%d, s[24:27], s46 offen" % (R+32, R+35, R+6))
    a("v_lshlrev_b32 v%d, 14, v%d" % (R+6, R+2))
    a("v_lshlrev_b32 v%d, 1, v%d" % (R+7, R+1))
    a("v_sub_u32 v%d, 4080, v%d" % (R+7, R+7))
    a("v_add3_u32 v%d, v%d, v%d, s47" % (R+6, R+6, R+7))
    a("v_add_u32 v%d, 8192, v%d" % (R+7, R+6))

def kv_item2(a, R):
    a("v_and_b32 v%d, 15, v2" % (R+1))
    a("v_lshlrev_b32 v%d, 2, v%d" % (R+1, R+1))
    a("v_add_u32 v%d, s44, v%d" % (R+1, R+1))
    a("v_lshrrev_b32 v%d, 4, v2" % (R+2))
    a("v_add_u32 v%d, 32, v%d" % (R+2, R+2))
    a("v_mul_u32_u24 v%d, 1152, v%d" % (R+3, R+1))
    a("v_lshlrev_b32 v%d, 2, v%d" % (R+4, R+2))
    a("v_add3_u32 v%d, v%d, v%d, s45" % (R+3, R+3, R+4))
    a("v_subrev_u32 v%d, 4608, v%d" % (R+5, R+3))
    a("v_cmp_eq_u32 vcc, 0, v%d" % (R+1))
    a("v_mov_b32 v%d, 0x80000000" % (R+6))
    a("s_nop 1")
    a("v_cndmask_b32 v%d, v%d, v%d, vcc" % (R+5, R+5, R+6))
    a("v_lshlrev_b32 v%d, 4, v%d" % (R+6, R+2))
    L = R + 8
    for i in range(4): a("buffer_load_dword v%d, v%d, s[8:11], 0 offen offset:%d nt" % (L+i, R+5, i*1152))
    for i in range(4): a("buffer_load_dword v%d, v%d, s[8:11], 0 offen offset:%d nt" % (L+4+i, R+3, i*1152))
    a("buffer_load_dword v%d, v%d, s[12:15], 0 offen offset:3456 nt" % (L+12, R+5))
    for i in range(4): a("buffer_load_dword v%d, v%d, s[12:15], 0 offen offset:%d nt" % (L+13+i, R+3, i*1152))
    a("buffer_load_dwordx4 v[%d:%d], v%d, s[24:27], s46 offen" % (R+32, R+35, R+6))
    a("v_lshlrev_b32 v%d, 14, v%d" % (R+6, R+2))
    a("v_lshlrev_b32 v%d, 1, v%d" % (R+7, R+1))
    a("v_sub_u32 v%d, 4088, v%d" % (R+7, R+7))
    a("v_add3_u32 v%d, v%d, v%d, s47" % (R+6, R+6, R+7))
    a("v_add_u32 v%d, 8192, v%d" % (R+7, R+6))

def kv_compute(a, R, W, NR=8):
    L = R + 8
    for j in range(4):
        for c in range(2):
            src = R + 32 + 2*c + (j >> 1)
            if j & 1: a("v_and_b32 v%d, s43, v%d" % (W+2*j+c, src))
            else:     a("v_lshlrev_b32 v%d, 16, v%d" % (W+2*j+c, src))
    K = W + 8; V = W + 32; U = W + 50; P0 = W + 68; T = W + 76
    for i in range(NR+4):
        a("v_lshlrev_b32 v%d, 16, v%d" % (K+2*i, L+i)); a("v_and_b32 v%d, s43, v%d" % (K+2*i+1, L+i))
    for e in range(NR+1):
        a("v_lshlrev_b32 v%d, 16, v%d" % (V+2*e, L+12+e)); a("v_and_b32 v%d, s43, v%d" % (V+2*e+1, L+12+e))
    for e in range(NR+1):
        P = [P0, P0+2, P0+4, P0+6]
        for q in range(4):
            j = 3 - q
            a("v_pk_mul_f32 v[%d:%d], v[%d:%d], v[%d:%d]" % (P[q], P[q]+1, K+2*(e+q), K+1+2*(e+q), W+2*j, W+1+2*j))
        for q in range(4): rnd_pair(a, P[q], T+q)
        for q in range(1, 4):
            a("v_pk_add_f32 v[%d:%d], v[%d:%d], v[%d:%d]" % (P0, P0+1, P0, P0+1, P[q], P[q]+1)); rnd_pair(a, P0, T)
        a("v_pk_mul_f32 v[%d:%d], v[%d:%d], v[%d:%d]" % (U+2*e, U+1+2*e, P0, P0+1, V+2*e, V+1+2*e))
    nd = NR // 2
    for c in range(2):
        for cp in range(2):
            base = L + (c*2+cp)*4
            for q in range(nd):
                hi_e = (NR if cp else NR-1) - 2*q
                a("v_cvt_pk_bf16_f32 v%d, v%d, v%d" % (base+q, U+2*hi_e+c, U+2*(hi_e-1)+c))
    for c in range(2):
        for cp in range(2):
            base = L + (c*2+cp)*4
            a("s_mov_b32 s48, %d" % (UG + cp*4096))
            if NR == 8: a("buffer_store_dwordx4 v[%d:%d], v%d, s[28:31], s48 offen sc1" % (base, base+3, R+6 if c == 0 else R+7))
            else:       a("buffer_store_dwordx2 v[%d:%d], v%d, s[28:31], s48 offen sc1" % (base, base+1, R+6 if c == 0 else R+7))

def ln_consts(a, rs):
    a("""
    v_and_b32 v9, 7, v2              ; r
    v_lshrrev_b32 v10, 3, v2         ; l>>3
    v_mul_u32_u24 v13, 1152, v9
    v_lshl_add_u32 v13, v10, 4, v13  ; x voffset
    v_lshlrev_b32 v12, 3, v9
    v_add_u32 v12, %d, v12
    s_lshl_b32 s47, s39, 6
    v_add_u32 v11, s47, v12
    s_mul_i32 s46, s37, 1152
    s_mul_i32 s47, s39, 384
    s_add_u32 s46, s46, s47          ; x soffset
    """ % rs)

def gen_one(dbg=False, sdbg=False, LMAX=12, LB=6, FLAGD=(36, 26), CHKD=25,
            POLLS=((215, 3, 0, 9), (280, 5, 9, 15), (345, 7, 15, 21), (415, 9, 21, 27)), DSP=4, VPS=2, SSP=10, PSP=5, P3D=16, P3C=(610, 636), verbose=False, XN0=5, XSP=2, TAIL='flag', EDF=(9, (0, 2, 4, 6)), MD=36, ML=36, NPRE=3, ZDIR=False, SIL=True, qst=None, bst=None):
    a = Asm()
    check_magic(1821, 16, 36, 2304); check_magic(7282, 16, 9, 288)
    a("s_cmp_ge_u32 s2, 256")
    a("s_cbranch_scc1 L_end")
    a("""
    s_getpc_b64 s[60:61]
    L_pc:
    s_lshr_b32 s62, s2, 3
    s_lshl_b32 s62, s62, 5
    v_lshrrev_b32 v1, 3, v0
    v_add_u32 v1, s62, v1
    v_min_u32 v1, NCODELINES, v1
    v_lshlrev_b32 v1, 7, v1
    global_load_dword v229, v1, s[60:61]
    """)
    a("""
    s_load_dwordx16 s[64:79], s[0:1], 0
    s_load_dwordx8 s[80:87], s[0:1], 64
    s_memrealtime s[90:91]
    v_lshrrev_b32 v1, 6, v0
    v_and_b32 v2, 63, v0
    v_readfirstlane_b32 s39, v1
    v_lshlrev_b32 v3, 4, v2
    s_mov_b32 s43, 0xffff0000
    s_waitcnt lgkmcnt(0)
    """)
    srd(a, 8, 66, 2359296); srd(a, 12, 68, 2359296); srd(a, 16, 64, 2359296); srd(a, 20, 82, 2359296)
    srd(a, 24, 70, 4608); srd(a, 28, 86, WS_SIZE); srd(a, 4, 84, 256)
    a("s_mov_b32 s92, s78\n s_mov_b32 s93, s79\n s_mov_b32 s94, s80\n s_mov_b32 s95, s81\n s_mov_b32 s96, s72\n s_mov_b32 s97, s73\n s_mov_b32 s98, s74\n s_mov_b32 s99, s75")
    stamp(a, dbg, 0)
    a("""
    s_or_b32 s44, s2, s39
    s_cmp_lg_u32 s44, 0
    s_cbranch_scc1 L_nonce_skip
    s_and_b32 s44, s90, 0xfffffff0
    s_or_b32 s44, s44, 0x80000000
    v_mov_b32 v4, s44
    v_mov_b32 v5, 0
    s_mov_b64 exec, 1
    buffer_store_dword v4, v5, s[4:7], 0 offen sc1
    s_mov_b64 exec, -1
    L_nonce_skip:
    """)
    a("""
    s_lshr_b32 s33, s2, 3            ; rb / i
    s_and_b32 s38, s2, 7             ; cg
    s_lshl_b32 s44, s33, 6
    s_mul_i32 s45, s38, 144
    s_mul_i32 s46, s38, 576
    s_mul_i32 s47, s38, 589824       ; 72cg*8192
    v_mov_b32 v16, v0
    """)
    kv_item(a, 16, "a")
    a("v_mov_b32 v58, 0x80000000\n v_mov_b32 v59, 0x80000000")
    a("s_cmp_lg_u32 s39, 3")
    a("s_cbranch_scc1 L_kvb_skip")
    kv_item2(a, 52)
    a.label("L_kvb_skip")
    a("""
    s_and_b32 s32, s2, 3             ; s
    s_and_b32 s34, s33, 3            ; n
    s_lshr_b32 s35, s33, 2
    s_bfe_u32 s36, s2, 0x10002
    s_lshl_b32 s36, s36, 3
    s_add_u32 s35, s35, s36          ; m
    s_lshl_b32 s36, s32, 2
    s_add_u32 s36, s36, s34          ; j
    s_lshl_b32 s37, s35, 7
    s_lshl_b32 s40, s36, 3
    s_add_u32 s37, s37, s40          ; R0
    s_mul_i32 s40, s39, 9216
    s_mul_i32 s41, s36, %d
    s_add_u32 s41, s41, s40
    s_add_u32 s41, s41, %d
    s_add_u32 s42, s41, %d
    v_mov_b32 v5, 0
    buffer_load_dword v4, v5, s[4:7], 0 offen sc1
    """ % (SLICE, W1P, W2P - W1P))
    a("s_cmp_eq_u32 s39, 3")
    a("s_cbranch_scc1 L_kvw3")
    a("s_waitcnt vmcnt(1)")
    a.label("L_kvw3")
    a("s_waitcnt vmcnt(15)")
    kv_compute(a, 16, 100)
    a("s_cmp_lg_u32 s39, 3")
    a("s_cbranch_scc1 L_kvd")
    a("s_waitcnt vmcnt(5)")
    kv_compute(a, 52, 100, 4)
    a.label("L_kvd")
    stamp(a, dbg, 1)
    ln_consts(a, 112640)
    a("s_cmp_ge_u32 s33, 24")
    a("s_cbranch_scc1 L_sec_pack")
    def x_loads():
        a("s_min_u32 s47, s39, 2")
        a("s_mul_i32 s47, s47, 384")
        a("s_mul_i32 s46, s37, 1152")
        a("s_add_u32 s46, s46, s47")
        for it in range(3):
            a("buffer_load_dwordx4 v[%d:%d], v13, s[16:19], s46 offen offset:%d nt" % (XQ+4*it, XQ+3+4*it, it*128))
    x_loads()
    srd(a, 24, 96, 2359296)
    a("s_mul_i32 s48, s38, 72\n s_mul_i32 s49, s33, 3\n s_add_u32 s48, s48, s49          ; d0")
    a("s_mul_i32 s49, s39, %d" % KC_STRIDE)
    a("s_lshl_b32 s50, s39, 2")
    for ch in range(3):
        a("s_add_u32 s51, s48, %d" % ch)
        a("s_lshl_b32 s51, s51, 12")
        a("s_add_u32 s51, s51, s50")
        a("s_add_u32 s51, s51, 4")
        a("s_add_u32 m0, s49, %d" % (ch*CH_BYTES + 64))
        a("s_nop 0")
        for q in range(4): a("buffer_load_dwordx4 v3, s[24:27], s51 offen offset:%d nt lds" % (q*1024))
    a("""
    s_min_u32 s49, s39, 2
    v_lshrrev_b32 v4+100, 4, v2
    """.replace("v4+100", "v104").strip().split("\n")[0])
    a("""
    v_lshrrev_b32 v104, 4, v2        ; a
    v_and_b32 v105, 15, v2           ; dw
    v_add_u32 v106, v104, v105
    v_subrev_u32 v106, 15, v106
    v_lshlrev_b32 v107, 2, v106
    v_cmp_gt_i32 vcc, 0, v106
    v_mov_b32 v108, 0x80000000
    s_nop 1
    v_cndmask_b32 v107, v107, v108, vcc
    s_add_u32 s51, s48, s49
    s_lshl_b32 s51, s51, 12
    buffer_load_dword v109, v107, s[24:27], s51 offen
    s_mul_i32 s49, s49, %d
    v_mul_u32_u24 v104, %d, v104
    v_lshl_add_u32 v104, v105, 2, v104
    v_add_u32 v104, s49, v104
    v_mov_b32 v110, 0
    v_mov_b32 v111, 0
    v_lshlrev_b32 v112, 3, v2
    v_add_u32 v112, s49, v112
    v_cmp_gt_u32 vcc, 56, v2
    s_and_saveexec_b64 s[50:51], vcc
    ds_write_b64 v112, v[110:111] offset:%d
    ds_write_b64 v112, v[110:111] offset:%d
    s_mov_b64 exec, s[50:51]
    s_waitcnt vmcnt(16)
    s_branch L_sec_done
    """ % (CH_BYTES, KC_STRIDE, 4*KC_STRIDE + 4096, 4*KC_STRIDE + UC_STRIDE + 4096))
    a.label("L_sec_pack")
    x_loads()
    a("s_waitcnt vmcnt(3)")
    a.label("L_sec_done")
    a("s_mov_b32 s58, 0")
    a.label("L_nonce_chk")
    a("""
    v_readfirstlane_b32 s%d, v4
    s_nop 3
    s_cmp_lg_u32 s%d, 0
    s_cbranch_scc1 L_nonce_ok
    s_add_u32 s58, s58, 1
    s_cmp_gt_u32 s58, %d
    s_cbranch_scc1 L_nonce_ok
    s_sleep 1
    buffer_load_dword v4, v5, s[4:7], 0 offen sc1
    s_waitcnt vmcnt(0)
    s_branch L_nonce_chk
    L_nonce_ok:
    s_xor_b32 s%d, s%d, 0x5bd1e995
    s_lshl_b32 s48, s38, 5
    s_add_u32 s48, s48, s33
    s_lshl_b32 s48, s48, 2
    s_add_u32 s48, s48, s39
    s_lshl_b32 s48, s48, 3
    s_add_u32 s48, s48, %d
    """ % (SN0, SN0, SPIN_MAX, SN1, SN0, FA))
    flag_store(a, 1, 48, 5, 6)
    stamp(a, dbg, 2)
    a("""
    s_lshl_b32 s48, s35, 2
    s_add_u32 s48, s48, s32
    s_lshl_b32 s48, s48, 2
    s_add_u32 s48, s48, s39
    s_lshl_b32 s48, s48, 7
    s_add_u32 s48, s48, %d
    buffer_load_dword v230, v5, s[28:31], s48 offen sc1
    s_lshl_b32 s48, s35, 2
    s_add_u32 s48, s48, s34
    s_lshl_b32 s48, s48, 2
    s_add_u32 s48, s48, s39
    s_lshl_b32 s48, s48, 7
    s_add_u32 s48, s48, %d
    buffer_load_dword v230, v5, s[28:31], s48 offen sc1
    s_lshl_b32 s48, s35, 2
    s_add_u32 s48, s48, s39
    s_lshl_b32 s48, s48, 7
    s_add_u32 s48, s48, %d
    buffer_load_dword v230, v5, s[28:31], s48 offen sc1
    s_lshl_b32 s48, s38, 11
    s_and_b32 s49, s33, 15
    s_lshl_b32 s49, s49, 7
    s_add_u32 s48, s48, s49
    s_add_u32 s48, s48, %d
    buffer_load_dword v230, v5, s[28:31], s48 offen sc1
    """ % (F2, F3, F1, FZ))
    a("s_cmp_ge_u32 s33, 24")
    a("s_cbranch_scc1 L_pack")

    def q_precompute(waitn, w3=True):
        l3 = a.newlabel("L_q3"); ld = a.newlabel("L_qd")
        if w3:
            a("s_cmp_eq_u32 s39, 3")
            a("s_cbranch_scc1 %s" % l3)
        a("s_waitcnt vmcnt(%d)" % waitn)
        X = 120; T = 150
        for i in range(12):
            a("v_lshlrev_b32 v%d, 16, v%d" % (X+2*i, XQ+i)); a("v_and_b32 v%d, s43, v%d" % (X+2*i+1, XQ+i))
        ln_stats(a, X, T, 0)
        for i in range(12):
            d = 170
            a("v_pk_add_f32 v[%d:%d], v[%d:%d], v[%d:%d]" % (d, d+1, X+2*i, X+2*i+1, T, T+1)); rnd_pair(a, d, d+4)
            a("v_pk_mul_f32 v[%d:%d], v[%d:%d], v[%d:%d]" % (d, d+1, d, d+1, T+2, T+3))
            a("v_cvt_pk_bf16_f32 v%d, v%d, v%d" % (XQ+12+i, d, d+1))
        if w3:
            a("s_branch %s" % ld)
            a.label(l3); a("s_barrier"); a.label(ld)

    def pack_setup(nper):
        a("""
        s_movk_i32 s44, 1821
        s_movk_i32 s45, 9216
        s_mul_i32 s49, s39, %d
        s_mul_i32 s57, s39, %d
        """ % (64*nper, 1024*nper))
        for i in range(nper):
            a("v_add_u32 v196, s49, v2")
            if i: a("v_add_u32 v196, %d, v196" % (64*i))
            a("v_mul_lo_u32 v197, v196, s44")
            a("v_lshrrev_b32 v197, 16, v197")
            a("v_mul_u32_u24 v198, 36, v197")
            a("v_sub_u32 v198, v196, v198")
            a("v_mul_lo_u32 v197, v197, s45")
            a("v_lshl_add_u32 v%d, v198, 4, v197" % (176+i))
        srd(a, 8, 92, 5308416); srd(a, 12, 94, 5308416)
    def pack_setup2():
        a("""
        v_lshrrev_b32 v192, 4, v2
        v_bfe_u32 v193, v2, 2, 2
        v_lshl_add_u32 v194, v192, 3, v193
        v_mul_u32_u24 v194, 576, v194
        v_and_b32 v195, 3, v2
        v_lshl_add_u32 v194, v195, 3, v194
        s_lshr_b32 s46, s39, 1
        s_and_b32 s47, s39, 1
        s_mul_i32 s50, s46, 18432
        s_mul_i32 s51, s47, 288
        s_add_u32 s50, s50, s51
        v_add_u32 v189, s50, v194
        v_lshl_add_u32 v194, v192, 2, v193
        v_mul_u32_u24 v194, 1152, v194
        v_lshl_add_u32 v194, v195, 3, v194
        v_mov_b32 v190, v194
        """)
    def conv_strip(f1, f2):
        l2 = a.newlabel("L_cs"); ld = a.newlabel("L_csd")
        a("s_cmp_ge_u32 s2, 144"); a("s_cbranch_scc1 %s" % l2)
        a("s_mov_b32 s52, s2"); f1(SBUF); a("s_branch %s" % ld)
        a.label(l2); a("s_sub_u32 s52, s2, 144"); f2(SBUF)
        a.label(ld)
    def issue_w1(slot, nper=12):
        a("s_mul_i32 s53, s52, 7282\n s_lshr_b32 s53, s53, 16\n s_mul_i32 s54, s53, 9\n s_sub_u32 s54, s52, s54")
        a("s_mul_i32 s54, s54, 589824\n s_mul_i32 s53, s53, 576\n s_add_u32 s54, s54, s53")
        for i in range(nper):
            a("s_add_u32 m0, s57, %d" % (slot + 1024*i))
            a("s_nop 0")
            a("buffer_load_dwordx4 v%d, s[8:11], s54 offen nt lds" % (176+i))
    def issue_w2(slot, nper=12):
        a("s_mul_i32 s54, s52, 36864\n s_add_u32 s54, s54, s57")
        for i in range(nper):
            if i % 4 == 0:
                a("s_add_u32 m0, s57, %d" % (slot + 1024*i))
                a("s_add_u32 s53, s54, %d" % (1024*i))
            a("buffer_load_dwordx4 v3, s[12:15], s53 offen offset:%d nt lds" % ((i % 4)*1024))
    def proc_w1(slot, D):
        a("v_add_u32 v191, %d, v189" % (slot))
        for i in range(9):
            a("ds_read_b64_tr_b16 v[%d:%d], v191 offset:%d" % (D+4*i, D+1+4*i, 32*i))
            a("ds_read_b64_tr_b16 v[%d:%d], v191 offset:%d" % (D+2+4*i, D+3+4*i, 32*i + 4*576))
        a("s_mul_i32 s53, s52, 7282\n s_lshr_b32 s53, s53, 16\n s_mul_i32 s54, s53, 9\n s_sub_u32 s54, s52, s54")
        a("s_mul_i32 s50, s53, %d\n s_add_u32 s50, s50, %d" % (SLICE, W1P))
        a("s_lshl_b32 s51, s54, 1\n s_add_u32 s51, s51, s46")
        a("s_lshl_b32 s53, s53, 9\n s_lshl_b32 s54, s54, 5\n s_add_u32 s49, s53, s54\n s_lshl_b32 s54, s39, 3\n s_add_u32 s49, s49, s54\n s_add_u32 s49, s49, %d" % FP1)
        for i in range(9):
            a("s_mul_i32 s53, s47, 9\n s_add_u32 s53, s53, %d" % i)
            a("s_mul_i32 s54, s51, 6\n s_add_u32 s54, s54, s53\n s_lshl_b32 s54, s54, 10")
            a("s_lshr_b32 s55, s53, 1\n s_mul_i32 s55, s55, 36\n s_lshl_b32 s56, s51, 1\n s_add_u32 s55, s55, s56")
            a("s_and_b32 s56, s53, 1\n s_add_u32 s55, s55, s56\n s_lshl_b32 s55, s55, 10")
            a("s_cmp_lt_u32 s53, 6\n s_cselect_b32 s55, s54, s55\n s_add_u32 s55, s55, s50")
            a("s_waitcnt lgkmcnt(%d)" % min(14, 16 - 2*i))
            a("buffer_store_dwordx4 v[%d:%d], v3, s[28:31], s55 offen sc1" % (D+4*i, D+3+4*i))
    def proc_w2(slot, vw, D):
        a("v_add_u32 v191, %d, v190" % (slot + 288*vw))
        for i in range(9):
            a("ds_read_b64_tr_b16 v[%d:%d], v191 offset:%d" % (D+4*i, D+1+4*i, 32*i))
            a("ds_read_b64_tr_b16 v[%d:%d], v191 offset:%d" % (D+2+4*i, D+3+4*i, 32*i + 16*1152))
        a("""
        s_mul_i32 s53, s52, 1821
        s_lshr_b32 s53, s53, 16          ; s
        s_mul_i32 s54, s53, 36
        s_sub_u32 s54, s52, s54          ; kk%%36
        s_lshl_b32 s60, s53, 2
        s_add_u32 s60, s60, VW
        s_lshl_b32 s49, s60, 9
        s_lshl_b32 s55, s54, 3
        s_add_u32 s49, s49, s55
        s_add_u32 s49, s49, %d           ; flag addr
        s_mul_i32 s55, s54, 7282
        s_lshr_b32 s55, s55, 16          ; nb
        s_mul_i32 s56, s55, 9
        s_sub_u32 s56, s54, s56          ; k9
        s_sub_u32 s50, s55, VW
        s_sub_u32 s50, s50, 1
        s_and_b32 s50, s50, 3            ; pr
        s_mul_i32 s51, s56, 3
        s_add_u32 s51, s51, s50
        s_add_u32 s53, s51, 27
        s_add_u32 s54, s51, 45
        s_add_u32 s57, s51, 45
        s_add_u32 s61, s51, 54
        s_cmp_ge_u32 s56, 6
        s_cselect_b32 s53, s57, s53
        s_cselect_b32 s54, s61, s54
        s_add_u32 s55, s51, 81
        s_add_u32 s57, s56, 9
        s_add_u32 s61, s56, 18
        s_cmp_eq_u32 s50, 3
        s_cselect_b32 s53, s56, s53
        s_cselect_b32 s54, s57, s54
        s_cselect_b32 s55, s61, s55
        s_mul_i32 s60, s60, %d
        s_add_u32 s60, s60, %d
        s_mul_i32 s53, s53, 3072
        s_mul_i32 s54, s54, 3072
        s_mul_i32 s55, s55, 3072
        s_add_u32 s53, s53, s60
        s_add_u32 s54, s54, s60
        s_add_u32 s55, s55, s60
        """.replace("VW", str(vw)) % (FP2, SLICE, W2P))
        for i in range(9):
            a("s_waitcnt lgkmcnt(%d)" % min(14, 16 - 2*i))
            a("buffer_store_dwordx4 v[%d:%d], v3, s[28:31], s%d offen offset:%d sc1" % (D+4*i, D+3+4*i, 53 + i//3, (i%3)*1024))
    srd(a, 4, 98, 1152)
    a("""
    s_mul_i32 s48, s38, 72
    s_mul_i32 s49, s33, 3
    s_add_u32 s48, s48, s49          ; d0
    s_lshl_b32 s49, s48, 1
    buffer_load_ushort v24, v5, s[4:7], s49 offen
    buffer_load_ushort v25, v5, s[4:7], s49 offen offset:2
    buffer_load_ushort v26, v5, s[4:7], s49 offen offset:4
    s_cmp_eq_u32 s39, 3
    s_cbranch_scc1 L_cw3
    """)
    q_precompute(21, False)
    a("s_waitcnt vmcnt(0)")
    a("ds_write_b32 v104, v109")
    a("s_branch L_cwd")
    a.label("L_cw3")
    a("s_barrier")
    a("""
    s_lshl_b32 s49, s38, 10
    s_add_u32 s49, s49, %d
    """ % FA)
    flag_load(a, 224, 3, 49, True)
    poll(a, 0, [(224, 3, 49, True, 0, FULL)], 1, 20, "L_pfa", alt=16)
    stamp(a, dbg, 3)
    for ch in range(3):
        for cp in range(2):
            a("s_add_u32 s52, s48, %d" % ch)
            a("s_lshl_b32 s52, s52, 13")
            a("s_add_u32 s52, s52, %d" % (UG + cp*4096))
            a("s_mov_b32 m0, %d" % (4*KC_STRIDE + ch*CH_BYTES + cp*UC_STRIDE))
            a("s_nop 0")
            for q in range(4): a("buffer_load_dwordx4 v3, s[28:31], s52 offen offset:%d sc1 lds" % (q*1024))
    a("s_waitcnt vmcnt(0)")
    a.label("L_cwd")
    a("""
    v_and_b32 v4, 15, v2
    v_lshrrev_b32 v5, 4, v2
    v_and_b32 v6, 3, v4
    v_lshrrev_b32 v7, 2, v4
    v_sub_u32 v7, v7, v5
    v_lshlrev_b32 v7, 4, v7
    v_add_u32 v7, 48, v7
    v_mul_u32_u24 v6, %d, v6
    v_add_u32 v20, v6, v7
    v_and_b32 v6, 1, v4
    v_lshrrev_b32 v7, 1, v4
    v_lshlrev_b32 v7, 6, v7
    v_lshl_add_u32 v7, v5, 4, v7
    v_sub_u32 v7, %d, v7
    v_mul_u32_u24 v6, %d, v6
    v_add_u32 v21, v6, v7
    """ % (KC_STRIDE, 496 + 4*KC_STRIDE, UC_STRIDE))
    a("s_waitcnt lgkmcnt(0)")
    a("s_barrier")
    stamp(a, dbg, 4)
    a("s_mov_b32 s8, s92\n s_mov_b32 s9, s93\n s_mov_b32 s10, 5308416\n s_mov_b32 s11, 0x20000")
    a("s_mov_b32 s12, s94\n s_mov_b32 s13, s95\n s_mov_b32 s14, 5308416\n s_mov_b32 s15, 0x20000")
    if SIL:
        a("s_mul_i32 s57, s39, 12288")
        a("s_mul_i32 s54, s2, 36864")
        a("s_add_u32 s54, s54, s57")
    else:
        a("s_cmp_eq_u32 s39, 3")
        a("s_cbranch_scc1 L_nostrip")
        a("s_cmp_ge_u32 s2, 144")
        a("s_cbranch_scc1 L_nostrip")
        a("s_mul_i32 s57, s39, 12288")
        a("s_mov_b32 s52, s2")
        issue_w2(SBUF, 12)
    a.label("L_nostrip")
    RED = 3*CH_BYTES
    units_of = {0: [(0,p) for p in range(6)], 1: [(0,6),(0,7)]+[(1,p) for p in range(4)],
                2: [(1,p) for p in range(4,8)]+[(2,0),(2,1)], 3: [(2,p) for p in range(2,8)]}
    setid = {0: {0:0}, 1: {0:1, 1:2}, 2: {1:3, 2:4}, 3: {2:5}}
    for w in range(4):
        if w: a.label("L_mm%d" % w)
        if w < 3:
            a("s_cmp_lg_u32 s39, %d" % w)
            a("s_cbranch_scc1 L_mm%d" % (w+1))
        units = units_of[w]
        chs = sorted(set(c for c,_ in units))
        accbase = {c: 160 + 32*i for i, c in enumerate(chs)}
        started = set()
        def reads(ui):
            ch, phi = units[ui]
            fb = 32 + 64*(ui & 1)
            out = []
            for n in range(8):
                out.append("ds_read_b128 v[%d:%d], v21 offset:%d" % (fb+32+4*n, fb+35+4*n, ch*CH_BYTES + 3584 - 512*n + 64*phi))
                out.append("ds_read_b128 v[%d:%d], v20 offset:%d" % (fb+4*n, fb+3+4*n, ch*CH_BYTES + 512*n + 64*phi))
            return out
        for l in reads(0): a(l)
        for ui, (ch, phi) in enumerate(units):
            fb = 32 + 64*(ui & 1)
            nxt = reads(ui+1) if ui+1 < len(units) else []
            k = 0
            for t in range(8):
                if ui == 0: a("s_waitcnt lgkmcnt(%d)" % min(15, 14 - 2*t + (16 - len(nxt) if nxt is not None else 0)))
                elif t == 0: a("s_waitcnt lgkmcnt(0)")
                for ap in range(t+1):
                    ac = accbase[ch] + 4*t
                    j = t - ap
                    c_ = "v[%d:%d]" % (ac, ac+3) if (ch, t) in started else "0"
                    started.add((ch, t))
                    a("v_mfma_f32_16x16x32_bf16 v[%d:%d], v[%d:%d], v[%d:%d], %s" % (ac, ac+3, fb+32+4*j, fb+35+4*j, fb+4*ap, fb+3+4*ap, c_))
                    k += 1
                    if k % 2 == 0 and nxt and (ui > 0 or t >= 4): a(nxt.pop(0))
                    if SIL and w < 3 and ui in (1, 2) and k % 6 == 3:
                        i_ = (ui-1)*6 + k//6
                        if i_ % 4 == 0:
                            a("s_add_u32 m0, s57, %d" % (SBUF + 1024*i_))
                            a("s_add_u32 s53, s54, %d" % (1024*i_))
                        a("buffer_load_dwordx4 v3, s[12:15], s53 offen offset:%d nt lds" % ((i_ % 4)*1024))
            while nxt: a(nxt.pop(0))
        a("s_nop 7\n s_nop 7")
        a("v_lshlrev_b32 v6, 8, v5\n v_lshl_add_u32 v6, v4, 3, v6")
        for c in chs:
            a("v_add_u32 v7, %d, v6" % (RED + setid[w][c]*8192))
            for t in range(8):
                ac = accbase[c] + 4*t
                a("ds_write_b64 v7, v[%d:%d] offset:%d" % (ac, ac+1, 1024*t))
                a("ds_write_b64 v7, v[%d:%d] offset:%d" % (ac+2, ac+3, 1024*t + 128))
        if w < 3: a("s_branch L_mmd")
    a.label("L_mmd")
    stamp(a, dbg, 5)
    a("""
    v_lshlrev_b32 v9, 5, v0
    v_lshlrev_b32 v10, 4, v0
    v_sub_u32 v11, %d, v10
    s_waitcnt lgkmcnt(0)
    s_barrier
    """ % (4080 + 4*KC_STRIDE))
    for c in range(3):
        b = 32 + 24*c
        a("v_add_u32 v12, %d, v9" % (RED + 2*c*8192))
        a("ds_read_b128 v[%d:%d], v12" % (b, b+3))
        a("ds_read_b128 v[%d:%d], v12 offset:16" % (b+4, b+7))
        a("ds_read_b128 v[%d:%d], v12 offset:8192" % (b+8, b+11))
        a("ds_read_b128 v[%d:%d], v12 offset:8208" % (b+12, b+15))
        a("ds_read_b128 v[%d:%d], v11 offset:%d" % (b+16, b+19, c*CH_BYTES + UC_STRIDE))
    for c in range(3): a("v_lshlrev_b32 v%d, 16, v%d" % (24+c, 24+c))
    for c in range(3):
        b = 32 + 24*c
        a("s_waitcnt lgkmcnt(%d)" % (10 - 5*c))
        for e in range(0, 8, 2):
            a("v_pk_add_f32 v[%d:%d], v[%d:%d], v[%d:%d]" % (b+e, b+e+1, b+e, b+e+1, b+8+e, b+9+e))
        for e in range(0, 8, 2): rnd_pair(a, b+e, b+8)
        for q in range(4):
            e_hi = 7 - 2*q
            a("v_lshlrev_b32 v%d, 16, v%d" % (b+8+e_hi, b+16+q))
            a("v_and_b32 v%d, s43, v%d" % (b+8+e_hi-1, b+16+q))
        for e in range(8): a("v_mul_f32 v%d, v%d, v%d" % (b+8+e, b+8+e, 24+c))
        for e in range(0, 8, 2): rnd_pair(a, b+8+e, b+16)
        for e in range(0, 8, 2):
            a("v_pk_add_f32 v[%d:%d], v[%d:%d], v[%d:%d]" % (b+e, b+e+1, b+e, b+e+1, b+8+e, b+9+e))
        for e in range(0, 8, 2): a("v_cvt_pk_bf16_f32 v%d, v%d, v%d" % (b+16+e//2, b+e, b+e+1))
        if ZDIR:
            a("s_add_u32 s49, s48, %d" % c)
            a("s_mul_i32 s49, s49, %d" % ZTS)
            a("s_add_u32 s49, s49, %d" % ZT)
            a("buffer_store_dwordx4 v[%d:%d], v10, s[28:31], s49 offen sc1" % (b+16, b+19))
        else:
            a("ds_write_b128 v10, v[%d:%d] offset:%d" % (b+16, b+19, c*CH_BYTES))
    if ZDIR:
        a("""
        s_waitcnt vmcnt(0)
        s_barrier
        s_cmp_lg_u32 s39, 3
        s_cbranch_scc1 L_fzs
        """)
    else:
        a("""
        s_waitcnt lgkmcnt(0)
        s_barrier
        s_cmp_lg_u32 s39, 3
        s_cbranch_scc1 L_fzs
        """)
        for c in range(3):
            for q in range(4): a("ds_read_b128 v[%d:%d], v3 offset:%d" % (32+16*c+4*q, 35+16*c+4*q, c*CH_BYTES + q*1024))
        for c in range(3):
            a("s_add_u32 s49, s48, %d" % c)
            a("s_mul_i32 s49, s49, %d" % ZTS)
            a("s_add_u32 s49, s49, %d" % ZT)
            for q in range(4):
                a("s_waitcnt lgkmcnt(%d)" % (11 - 4*c - q))
                a("buffer_store_dwordx4 v[%d:%d], v3, s[28:31], s49 offen offset:%d sc1" % (32+16*c+4*q, 35+16*c+4*q, q*1024))
    a("""
    s_mul_i32 s49, s38, 24
    s_add_u32 s49, s49, s33
    s_lshl_b32 s49, s49, 3
    s_add_u32 s49, s49, %d
    v_lshlrev_b32 v5, 11, v2
    s_add_u32 s61, s%d, 1
    v_mov_b32 v6, s61
    v_mov_b32 v7, s%d
    s_waitcnt vmcnt(0)
    s_mov_b64 exec, 0xff
    buffer_store_dwordx2 v[6:7], v5, s[28:31], s49 offen sc1
    s_mov_b64 exec, -1
    """ % (FZ, SN0, SN1))
    a.label("L_fzs")
    stamp(a, dbg, 6)
    a("s_waitcnt vmcnt(0)")
    a("s_barrier")
    a("s_branch L_join")

    a.label("L_pack")
    pack_setup(9); pack_setup2()
    a("s_sub_u32 s48, s2, 192")
    a("v_mov_b32 v5, 0")
    a("s_mov_b32 s52, s48"); issue_w1(0, 9)
    a("s_add_u32 s52, s48, 64"); issue_w1(36864, 9)
    a("s_cmp_ge_u32 s48, 16")
    a("s_cbranch_scc1 L_pack2")
    a("s_add_u32 s52, s48, 128"); issue_w1(73728, 9)
    q_precompute(32)
    a("s_waitcnt vmcnt(18)\n s_barrier")
    a("s_mov_b32 s52, s48"); proc_w1(0, 32); a("s_mov_b32 s100, s49")
    a("s_waitcnt vmcnt(18)\n s_barrier")
    a("s_add_u32 s52, s48, 64"); proc_w1(36864, 68); a("s_mov_b32 s101, s49")
    a("s_waitcnt vmcnt(18)\n s_barrier")
    a("s_add_u32 s52, s48, 128"); proc_w1(73728, 104)
    a("s_waitcnt vmcnt(0)")
    flag_store(a, 1, 49, 5, 6)
    a("s_branch L_pack_fin")
    a.label("L_pack2")
    q_precompute(23)
    a("s_waitcnt vmcnt(9)\n s_barrier")
    a("s_mov_b32 s52, s48"); proc_w1(0, 32); a("s_mov_b32 s100, s49")
    a("s_waitcnt vmcnt(9)\n s_barrier")
    a("s_add_u32 s52, s48, 64"); proc_w1(36864, 68); a("s_mov_b32 s101, s49")
    a.label("L_pack_fin")
    a("s_waitcnt vmcnt(0)")
    flag_store(a, 1, 100, 5, 6)
    flag_store(a, 1, 101, 5, 6)
    stamp(a, dbg, 6)
    a("s_barrier")

    a.label("L_join")
    vm = VM()
    for sl in range(4): a("v_add_u32 v%d, %d, v3" % (4+sl, sl*36864))
    a("s_lshl_b32 s45, s38, 11")
    a("s_add_u32 s45, s45, %d" % FZ)
    def dma(stage, i, S_=None):
        slot = stage % 4
        if i % 4 == 0:
            a_ = a if S_ is None else S_.a
            a_("s_add_u32 m0, s40, %d" % (slot*36864 + i*1024))
            if stage < 9: a_("s_add_u32 s44, s41, %d" % (stage*36864 + i*1024))
            else:         a_("s_add_u32 s44, s42, %d" % ((stage-9)*36864 + i*1024))
        (a if S_ is None else S_.a)("buffer_load_dwordx4 v3, s[28:31], s44 offen offset:%d sc1 lds" % ((i % 4)*1024))
    ln_consts(a, RS)
    a("""
    v_lshlrev_b32 v8, 13, v2
    s_min_u32 s50, s39, 2
    s_mul_i32 s48, s50, 1572864
    s_lshl_b32 s49, s37, 1
    s_add_u32 s48, s48, s49
    s_add_u32 s48, s48, %d
    s_mul_i32 s49, s50, 3072
    v_lshrrev_b32 v14, 4, v2
    v_lshlrev_b32 v14, 8, v14
    v_bfe_u32 v15, v2, 1, 1
    v_lshl_add_u32 v14, v15, 7, v14
    v_bfe_u32 v15, v2, 2, 2
    v_lshl_add_u32 v14, v15, 4, v14
    v_and_b32 v15, 1, v2
    v_lshl_add_u32 v14, v15, 3, v14
    v_add_u32 v14, s49, v14
    v_add_u32 v14, %d, v14
    s_cmp_eq_u32 s39, 3
    s_cbranch_scc1 L_w3
    """ % (ZT, ZL))
    a("v_mov_b32 v150, %d" % LW)
    a("s_cmp_lg_u32 s39, 0")
    a("s_cbranch_scc1 L_fz_lds")
    flag_load(a, 208, 3, 45, True); flag_load(a, 212, 3, 45, True, 1024)
    poll(a, 0, [(208, 3, 45, True, 0, FULL), (212, 3, 45, True, 1024, (1 << 32) - 1)], 1, 18, "L_pfz", alt=216)
    a("v_mov_b32 v151, s%d" % SN0)
    a("ds_write_b32 v150, v151")
    a("s_branch L_fz_go")
    a.label("L_fz_lds")
    a("s_mov_b32 s58, 0")
    a.label("L_fz_spin")
    a("""
    ds_read_b32 v151, v150
    s_waitcnt lgkmcnt(0)
    v_readfirstlane_b32 s59, v151
    s_add_u32 s58, s58, 1
    s_cmp_eq_u32 s59, s%d
    s_cbranch_scc1 L_fz_go
    s_cmp_gt_u32 s58, 4000000
    s_cbranch_scc1 L_fz_go
    s_sleep 1
    s_branch L_fz_spin
    """ % SN0)
    a.label("L_fz_go")
    stamp(a, dbg, 7)
    for it in range(3):
        a("s_add_u32 m0, s49, %d" % (ZL + it*1024))
        a("s_add_u32 s47, s48, %d" % (it*524288))
        a("buffer_load_dwordx4 v8, s[28:31], s47 offen sc1 lds")
    X = 40; Q = 64; Hh = 88; T = 120
    for i in range(12):
        a("v_lshlrev_b32 v%d, 16, v%d" % (X+2*i, XQ+i)); a("v_and_b32 v%d, s43, v%d" % (X+2*i+1, XQ+i))
        a("v_lshlrev_b32 v%d, 16, v%d" % (Q+2*i, XQ+12+i)); a("v_and_b32 v%d, s43, v%d" % (Q+2*i+1, XQ+12+i))
    a("s_waitcnt vmcnt(0)")
    stamp(a, dbg, 8)
    for it in range(3):
        a("ds_read_b64_tr_b16 v[%d:%d], v14 offset:%d" % (28+4*it, 29+4*it, it*1024))
        a("ds_read_b64_tr_b16 v[%d:%d], v14 offset:%d" % (30+4*it, 31+4*it, it*1024 + 64))
    a("s_waitcnt lgkmcnt(0)")
    for i in range(12):
        d = 140
        a("v_lshlrev_b32 v%d, 16, v%d" % (d+2, 28+i))
        a("v_and_b32 v%d, s43, v%d" % (d+3, 28+i))
        a("v_pk_mul_f32 v[%d:%d], v[%d:%d], v[%d:%d]" % (d, d+1, Q+2*i, Q+2*i+1, d+2, d+3)); rnd_pair(a, d, d+4)
        a("v_pk_add_f32 v[%d:%d], v[%d:%d], v[%d:%d]" % (Hh+2*i, Hh+2*i+1, X+2*i, X+2*i+1, d, d+1)); rnd_pair(a, Hh+2*i, 232+i)
    a("s_add_u32 s101, s46, %d" % HB)
    a("v_mov_b32 v249, v13")
    ln_stats(a, Hh, T, 1, spin=SN0)
    for i in range(12):
        d = 140
        a("v_pk_add_f32 v[%d:%d], v[%d:%d], v[%d:%d]" % (d, d+1, Hh+2*i, Hh+2*i+1, T, T+1)); rnd_pair(a, d, d+4)
        a("v_pk_mul_f32 v[%d:%d], v[%d:%d], v[%d:%d]" % (d, d+1, d, d+1, T+2, T+3))
        a("v_cvt_pk_bf16_f32 v%d, v%d, v%d" % (28+i, d, d+1))
    a("""
    v_lshrrev_b32 v8, 5, v2
    v_lshlrev_b32 v8, 10, v8
    v_bfe_u32 v15, v2, 3, 2
    v_lshl_add_u32 v8, v15, 8, v8
    v_lshl_add_u32 v8, v9, 4, v8
    s_lshr_b32 s47, s37, 4
    s_mul_i32 s47, s47, 18
    s_mul_i32 s48, s39, 6
    s_add_u32 s47, s47, s48
    s_and_b32 s48, s36, 1
    s_lshl_b32 s48, s48, 7
    s_add_u32 s48, s48, %d
    """ % (UG + 4096))
    for it in range(3):
        a("s_add_u32 s49, s47, %d" % (2*it))
        a("s_lshr_b32 s50, s49, 2")
        a("s_lshl_b32 s50, s50, 13")
        a("s_and_b32 s49, s49, 3")
        a("s_lshl_b32 s49, s49, 10")
        a("s_add_u32 s50, s50, s49")
        a("s_add_u32 s50, s50, s48")
        a("buffer_store_dwordx4 v[%d:%d], v8, s[28:31], s50 offen sc1" % (28+4*it, 31+4*it))
    a("""
    s_lshl_b32 s47, s35, 2
    s_add_u32 s47, s47, s32
    s_lshl_b32 s47, s47, 7
    s_lshl_b32 s48, s34, 5
    s_add_u32 s47, s47, s48
    s_lshl_b32 s48, s39, 3
    s_add_u32 s47, s47, s48
    s_add_u32 s47, s47, %d
    v_mov_b32 v8, 0
    s_waitcnt vmcnt(0)
    """ % F1)
    flag_store(a, 1, 47, 8, 16)
    a("s_branch L_lnd")
    a.label("L_w3")
    a("""
    v_mov_b32 v249, 0x80000000
    v_lshlrev_b32 v8, 3, v2
    s_lshl_b32 s101, s36, 9
    s_add_u32 s101, s101, %d
    v_mov_b32 v10, 0
    """ % FP1)
    flag_load(a, 16, 8, 101)
    a("s_cmp_ge_u32 s2, 144")
    a("s_cbranch_scc1 L_w3_nostrip")
    pack_setup2()
    a("s_mov_b32 s52, s2")
    for vw in range(4): proc_w2(SBUF, vw, 32 + 36*vw)
    a("s_mov_b32 s100, s49")
    a("s_branch L_w3_chk")
    a.label("L_w3_nostrip")
    a("s_waitcnt vmcnt(0)")
    a.label("L_w3_chk")
    poll(a, 36, [(16, 8, 101, False, 0, (1 << 36) - 1)], 1, 18, "L_pp1")
    a("s_sub_u32 s46, s41, s40")
    for st in range(NPRE):
        for i in range(36):
            if i % 4 == 0:
                a("s_mov_b32 m0, %d" % (st*36864 + i*1024))
                a("s_add_u32 s44, s46, %d" % (st*36864 + i*1024))
            a("buffer_load_dwordx4 v3, s[28:31], s44 offen offset:%d sc1 lds" % ((i % 4)*1024))
    a("s_cmp_ge_u32 s2, 144")
    a("s_cbranch_scc1 L_lnd")
    a("s_waitcnt vmcnt(%d)" % min(63, 36*NPRE))
    for vw in range(4):
        a("s_sub_u32 s49, s100, %d" % (512*(3-vw)))
        flag_store(a, 1, 49, 10, 16)
    a.label("L_lnd")
    stamp(a, dbg, 9)
    a("""
    s_lshl_b32 s45, s35, 2
    s_add_u32 s45, s45, s39
    s_mul_i32 s46, s45, %d
    s_add_u32 s46, s46, %d
    s_mul_i32 s47, s36, 9216
    s_add_u32 s47, s47, s46
    s_lshl_b32 s48, s35, 2
    s_add_u32 s48, s48, s32
    s_lshl_b32 s48, s48, 2
    s_add_u32 s48, s48, s39
    s_lshl_b32 s48, s48, 7
    s_add_u32 s48, s48, %d
    s_lshl_b32 s49, s35, 2
    s_add_u32 s49, s49, s34
    s_lshl_b32 s49, s49, 2
    s_add_u32 s49, s49, s39
    s_mul_i32 s50, s49, 73728
    s_add_u32 s50, s50, %d
    s_lshl_b32 s49, s49, 7
    s_add_u32 s49, s49, %d
    v_and_b32 v8, 3, v2
    v_lshlrev_b32 v8, 3, v8
    v_mov_b32 v10, 0
    s_lshl_b32 s51, s34, 3
    s_add_u32 s51, s51, s48
    s_lshl_b32 s52, s32, 3
    s_add_u32 s52, s52, s49
    v_lshlrev_b32 v9, 3, v2
    s_lshl_b32 s100, s36, 9
    s_add_u32 s100, s100, %d
    """ % (2*HFS, HF, F2, PART, F3, FP2))
    for pr in range(3):
        a("s_add_u32 s%d, s34, %d" % (53+pr, 1+pr))
        a("s_and_b32 s%d, s%d, 3" % (53+pr, 53+pr))
        a("s_lshl_b32 s56, s32, 2")
        a("s_add_u32 s%d, s%d, s56" % (53+pr, 53+pr))
        a("s_mul_i32 s%d, s%d, 9216" % (53+pr, 53+pr))
        a("s_add_u32 s%d, s%d, s46" % (53+pr, 53+pr))
    a("""
    v_and_b32 v11, 15, v2
    v_mul_u32_u24 v11, 1152, v11
    v_lshrrev_b32 v12, 4, v2
    v_lshl_add_u32 v11, v12, 3, v11
    s_lshl_b32 s56, s35, 7
    s_lshl_b32 s57, s39, 5
    s_add_u32 s56, s56, s57
    s_mul_i32 s56, s56, 1152
    s_mul_i32 s57, s34, 288
    s_add_u32 s56, s56, s57
    s_add_u32 s57, s56, %d
    s_lshl_b32 s93, s32, 12
    s_add_u32 s93, s93, s50
    s_add_u32 s94, s93, 65536
    s_add_u32 s93, s93, 49152
    s_cmp_lt_u32 s32, 2
    s_cselect_b32 s94, s94, s93
    s_mov_b32 s95, 0
    v_mov_b32 v252, -1
    v_mov_b32 v253, -1
    v_mov_b32 v254, -1
    v_mov_b32 v255, -1
    """ % HB)
    a("""
    s_lshl_b32 s92, s35, 2
    s_add_u32 s92, s92, s39
    s_lshl_b32 s92, s92, 7
    s_add_u32 s92, s92, %d
    v_and_b32 v12, 15, v2
    v_lshlrev_b32 v12, 3, v12
    """ % F1)
    flag_load(a, 224, 12, 92)
    poll(a, 0, [(224, 12, 92, False, 0, 0x7777)], 1, 18, "L_pf1", alt=226)
    stamp(a, dbg, 10)
    a("""
    s_lshl_b32 s92, s35, 3
    s_lshl_b32 s45, s39, 1
    s_add_u32 s92, s92, s45
    s_mul_i32 s92, s92, 36864
    s_add_u32 s92, s92, %d
    """ % (UG + 4096))
    xn_seq = {}
    def xn_load(a, vm_, ks, mt):
        f_ = mt*18 + ks
        off = (f_ >> 2)*8192 + (f_ & 3)*1024
        a("s_add_u32 s45, s92, %d" % (off - off % 4096))
        r = (ks*2+mt)*4
        a("buffer_load_dwordx4 a[%d:%d], v3, s[28:31], s45 offen offset:%d sc1" % (r, r+3, off % 4096))
        xn_seq[(ks, mt)] = vm_.issue()
    for ks in range(XN0):
        for mt in range(2): xn_load(a, vm, ks, mt)
    units = order_units()
    NF = 648
    SPLITQ = 536
    def frag_mfmas(gf):
        st, f = divmod(gf, 36)
        rb = VB + (gf % RING)*4
        out = []
        if st < 9:
            if st < 3: ks = 6*st + f // 6; T_ = f % 6
            else:      ks = f // 2; T_ = 2*st + (f & 1)
            for mt in range(2):
                ac = acc1_reg(T_, mt); xr = (ks*2+mt)*4
                src = "0" if ks == 0 else "v[%d:%d]" % (ac, ac+3)
                out.append("v_mfma_f32_16x16x32_bf16 v[%d:%d], v[%d:%d], a[%d:%d], %s" % (ac, ac+3, rb, rb+3, xr, xr+3, src))
        else:
            uu, tt = divmod(gf - 324, 3)
            c2, (kind, pr, k9) = units[uu]
            first = uu in (0, 9, 18)
            for mt in range(2):
                ac = acc2_reg(c2, tt, mt)
                if kind == "o": hr = "v[%d:%d]" % (HO + (k9*2+mt)*4, HO + (k9*2+mt)*4 + 3)
                else:
                    r = areg_partner(pr, k9, mt); hr = "a[%d:%d]" % (r, r+3)
                src = "0" if first else "v[%d:%d]" % (ac, ac+3)
                out.append("v_mfma_f32_16x16x32_bf16 v[%d:%d], v[%d:%d], %s, %s" % (ac, ac+3, rb, rb+3, hr, src))
        return out
    class S: pass
    def tau_info(tau):
        c2, r = divmod(tau, 6); tt, mt = divmod(r, 2)
        return c2, tt, mt
    def build_tasks(svar):
        tasks = {}
        def at(q, fn): tasks.setdefault(q, []).append(fn)
        busy = set()
        edf = []
        if EDF:
            allowed = lambda q: (q % EDF[0]) in EDF[1]
            def vslot(q):
                while q in busy or not allowed(q): q += 1
                busy.add(q); return q
            for st in range(NPRE, 18):
                for i in range(9):
                    def dm(a, S_, st=st, i=i): dma(st, i); S_.dseq[st] = S_.vm.issue()
                    edf.append((max(0, 36*(st-3) - LB) + 1, 36*st - LB - (MD if st > 2 else 20), len(edf), dm))
        else:
            for nb in range(15):
                b0 = max(0, 36*nb - LB)
                for i in range(9): busy.add(b0 + 1 + (DSP if nb else 3)*i)
            def vslot(q):
                while q in busy or (q-1) in busy or (q+1) in busy: q += 1
                busy.add(q); return q
        qw = vslot(100)
        def wl(a, S_): flag_load(a, 12, 9, 100); S_.fseq = S_.vm.issue()
        at(qw, wl)
        def wc(a, S_): poll(a, S_.vm.wait_cnt(S_.fseq), [(12, 9, 100, False, 0, (1 << 36) - 1)], 1, 14, "L_pw2")
        at(qw + 30, wc)
        lq = 0
        for ks in range(XN0, 18):
            for mt in range(2):
                def xl(a, S_, ks=ks, mt=mt): xn_load(a, S_.vm, ks, mt)
                if EDF: edf.append((0, 6*ks - 30, len(edf), xl)); continue
                while lq in busy: lq += 1
                busy.add(lq); at(lq, xl); lq += XSP
                assert lq < 6*ks + 2, (ks, lq)
        for it in range(3):
            def hs(a, S_, it=it):
                a("buffer_store_dwordx4 v[%d:%d], v249, s[28:31], s101 offen offset:%d sc1" % (232+4*it, 235+4*it, it*128)); S_.vm.issue()
            at(vslot(70 + 8*it), hs)
        if TAIL != 'flag':
            lq = 84
            for t2 in range(2):
                for k in range(4):
                    def po(a, S_, t2=t2, k=k):
                        a("buffer_store_dwordx4 v[252:255], v3, s[28:31], s%d offen offset:%d sc1" % (93+t2, k*1024)); S_.pois = S_.vm.issue()
                    lq = vslot(lq); at(lq, po)
            def pf(a, S_):
                a("s_waitcnt vmcnt(%d)" % S_.vm.wait_cnt(S_.pois))
                flag_store(a, 1, 52, 10, 14); S_.vm.issue()
            at(vslot(lq + 60), pf)
            q3 = vslot(470)
            def p3l(a, S_): flag_load(a, 12, 8, 49); S_.fseq = S_.vm.issue()
            at(q3, p3l)
            def p3c(a, S_): poll(a, S_.vm.wait_cnt(S_.fseq), [(12, 8, 49, False, 0, FULL)], 1, 14, "L_p3p")
            at(q3 + CHKD, p3c)
        lastq = 0; kq = 0
        for k9 in range(9):
            q0 = max(108, 36*(k9+1)) + 1
            kq = max(kq, q0*VPS)
            for mt in range(2):
                hr = HO + (k9*2+mt)*4
                for half in range(2):
                    ac = acc1_reg(2*k9+half, mt)
                    for e in range(2):
                        def f(a, S_, d=hr+2*half+e, s0=ac+2*e): a("v_cvt_pk_bf16_f32 v%d, v%d, v%d" % (d, s0, s0+1))
                        f.valu = True; at(kq//VPS, f); kq += 1
                for e in range(4):
                    def g(a, S_, r=hr+e): a("v_pk_max_i16 v%d, v%d, v10" % (r, r))
                    g.valu = True; at(kq//VPS, g); kq += 1
                def h(a, S_, hr=hr, k9=k9, mt=mt):
                    a("s_add_u32 s45, s47, %d" % (mt*HFS + k9*1024))
                    a("buffer_store_dwordx4 v[%d:%d], v3, s[28:31], s45 offen sc1" % (hr, hr+3))
                    S_.hst[k9] = S_.vm.issue()
                lastq = vslot(max(lastq + (SSP if k9 > 2 else 6), kq//VPS + 1))
                at(lastq, h)
            if k9 in (2, 4, 6, 8):
                def fl(a, S_, k9=k9):
                    a("s_waitcnt vmcnt(%d)" % S_.vm.wait_cnt(S_.hst[k9]))
                    flag_store(a, k9+1, 51, 10, 14); S_.vm.issue()
                at(vslot(lastq + FLAGD[0]), fl)
        lastq = 0
        pq = [vslot(p[0]) for p in POLLS]
        for pi, (qp, need, lo, hi) in enumerate(POLLS):
            def pl(a, S_): flag_load(a, 12, 8, 48); S_.fseq = S_.vm.issue()
            qp = pq[pi]; at(qp, pl)
            qc = qp + CHKD
            assert qc < SPLITQ
            def pc(a, S_, pi=pi, need=need):
                poll(a, S_.vm.wait_cnt(S_.fseq), [(12, 8, 48, False, 0, FULL)], need, 14, "L_p2_%d" % pi)
            at(qc, pc)
            lastq = max(lastq, qc + 1)
            for i in range(lo, hi):
                k9, pr = divmod(i, 3)
                if i >= 14: lastq = max(lastq, 326)
                for mt in range(2):
                    def ld(a, S_, pr=pr, k9=k9, mt=mt):
                        r = areg_partner(pr, k9, mt)
                        a("s_add_u32 s45, s%d, %d" % (53+pr, mt*HFS + k9*1024))
                        a("buffer_load_dwordx4 a[%d:%d], v3, s[28:31], s45 offen sc1" % (r, r+3))
                        S_.hld[(pr, k9, mt)] = S_.vm.issue()
                    if EDF:
                        edf.append((max(qc + 1, 326 if i >= 14 else 0), (405 + 3*i if i < 18 else 513 + 3*(i-18)) - ML, len(edf), ld)); continue
                    lastq = vslot(lastq); at(lastq, ld)
        lastq = 0
        own01 = [t for t in range(12) if t % 4 == svar]
        plan = []
        for c2, qe in ((0, 324 + 72*3), (1, 324 + 81*3)):
            for tt in range(3):
                for mt in range(2):
                    tau = 6*c2 + 2*tt + mt
                    if tau % 4 == svar: continue
                    def ps(a, S_, tau=tau, ac=acc2_reg(c2, tt, mt), c2=c2):
                        a("s_add_u32 s45, s50, %d" % ((tau*4 + svar)*1024))
                        a("buffer_store_dwordx4 v[%d:%d], v3, s[28:31], s45 offen sc1" % (ac, ac+3))
                        S_.pst[c2] = S_.vm.issue()
                    lastq = vslot(max(lastq + PSP, qe + 1)); at(lastq, ps)
            def fl3(a, S_, c2=c2):
                a("s_waitcnt vmcnt(%d)" % S_.vm.wait_cnt(S_.pst[c2]))
                flag_store(a, 2+c2, 52, 10, 14); S_.vm.issue()
            fq = vslot(lastq + FLAGD[1]); at(fq, fl3); plan.append(fq)
        if TAIL == 'nb':
            for c2 in range(2):
                qc = P3C[c2]
                def p3e(a, S_): flag_load(a, 12, 8, 49); S_.fseq3 = S_.vm.issue()
                at(vslot(qc - P3D), p3e)
                def p3k(a, S_, c2=c2):
                    lab = "L_nb_%d_%d" % (c2, svar)
                    a("s_waitcnt vmcnt(%d)" % S_.vm.wait_cnt(S_.fseq3))
                    a("s_add_u32 s59, s%d, %d" % (SN0, 2+c2))
                    a("v_subrev_u32 v14, s59, v12")
                    a("v_cmp_gt_u32 vcc, %d, v14" % (14-c2))
                    a("v_cmp_eq_u32 s[62:63], s%d, v13" % SN1)
                    a("s_nop 1")
                    a("s_and_b64 vcc, vcc, s[62:63]")
                    a("s_cmp_eq_u64 vcc, -1")
                    a("s_cbranch_scc0 %s" % lab)
                    a("s_or_b32 s95, s95, %d" % (1 << c2))
                    Sx = copy.deepcopy(S_)
                    for i, tau in enumerate(own01):
                        if tau // 6 == c2: fin_loads(a, Sx, tau, HO + 16*i, svar)
                    a.label(lab)
                assert qc > 36*17 - LB
                at(qc, p3k)
        if EDF:
            pend_ = sorted(edf, key=lambda t: (t[1], t[2]))
            q = 0; late = 0
            while pend_:
                if q not in busy and (allowed(q) or (q < 40 and (q-1) not in busy)):
                    for t in pend_:
                        if t[0] <= q:
                            busy.add(q); at(q, t[3]); pend_.remove(t); late = max(late, q - t[1]); break
                q += 1
            if verbose: print("edf max lateness", late, "last", max(busy))
        assert max(tasks) < NF
        return tasks
    def part_loads(a, S_, tau, B, svar):
        for i, s_ in enumerate([x for x in range(4) if x != svar]):
            a("s_add_u32 s45, s50, %d" % ((tau*4 + s_)*1024))
            a("buffer_load_dwordx4 v[%d:%d], v3, s[28:31], s45 offen sc1" % (B+4*i, B+4*i+3)); S_.fin[tau] = S_.vm.issue()
    def h_load(a, S_, tau, B):
        c2, tt, mt = tau_info(tau)
        a("s_add_u32 s45, s57, %d" % (mt*18432 + c2*96 + tt*32))
        a("buffer_load_dwordx2 v[%d:%d], v11, s[28:31], s45 offen sc1" % (B+12, B+13))
        S_.fin[tau] = S_.vm.issue()
    def fin_loads(a, S_, tau, B, svar):
        part_loads(a, S_, tau, B, svar); h_load(a, S_, tau, B)
    def fin_math(a, S_, tau, B, svar):
        c2, tt, mt = tau_info(tau)
        ac = acc2_reg(c2, tt, mt)
        regs = {s_: B + 4*i for i, s_ in enumerate([x for x in range(4) if x != svar])}
        regs[svar] = ac
        a("s_waitcnt vmcnt(%d)" % min(63, S_.vm.wait_cnt(S_.fin[tau])))
        cur = ac if svar in (0, 1) else regs[0]
        for h_ in range(2):
            a("v_pk_add_f32 v[%d:%d], v[%d:%d], v[%d:%d]" % (cur+2*h_, cur+2*h_+1, regs[0]+2*h_, regs[0]+2*h_+1, regs[1]+2*h_, regs[1]+2*h_+1))
        for s_ in (2, 3):
            for h_ in range(2):
                a("v_pk_add_f32 v[%d:%d], v[%d:%d], v[%d:%d]" % (cur+2*h_, cur+2*h_+1, cur+2*h_, cur+2*h_+1, regs[s_]+2*h_, regs[s_]+2*h_+1))
        for h_ in range(2):
            r = cur + 2*h_
            rnd_pair(a, r, B+14)
            a("v_lshlrev_b32 v%d, 16, v%d" % (B+4+2*h_, B+12+h_))
            a("v_and_b32 v%d, s43, v%d" % (B+5+2*h_, B+12+h_))
            a("v_pk_add_f32 v[%d:%d], v[%d:%d], v[%d:%d]" % (r, r+1, r, r+1, B+4+2*h_, B+5+2*h_))
        for h_ in range(2): a("v_cvt_pk_bf16_f32 v%d, v%d, v%d" % (B+8+h_, cur+2*h_, cur+2*h_+1))
        a("s_add_u32 s45, s56, %d" % (mt*18432 + c2*96 + tt*32))
        a("buffer_store_dwordx2 v[%d:%d], v11, s[20:23], s45 offen" % (B+8, B+9)); S_.vm.issue()
    def run_main(a, S_, q_from, q_to, tasks):
        for q in range(q_from, q_to):
            st, f = divmod(q, 36)
            nb = S_.bar + 1
            if nb < 18 and q == max(0, 36*nb - LB):
                if nb > 0: a("s_waitcnt lgkmcnt(0)")
                S_.rd_done = S_.p
                bi = bst.index(nb)*3 if bst and nb in bst else None
                if bi is not None: a("s_memtime s[%d:%d]" % (64+2*bi, 65+2*bi))
                a("s_waitcnt vmcnt(%d)" % min(63, S_.vm.wait_cnt(S_.dseq[nb])))
                if bi is not None: a("s_memtime s[%d:%d]" % (66+2*bi, 67+2*bi))
                a("s_barrier")
                if bi is not None: a("s_memtime s[%d:%d]" % (68+2*bi, 69+2*bi))
                if nb == 0: stamp(a, dbg, 11)
                if sdbg is not False and 0 <= nb - sdbg < 12: a("s_memtime s[%d:%d]" % (64+2*(nb-sdbg), 65+2*(nb-sdbg)))
                S_.bar = nb
                assert not S_.pend
                if nb + 3 < 18 and not EDF: S_.pend = [(nb+3, i) for i in range(9)]
            def rd():
                if S_.p < NF and S_.p <= q + LMAX and S_.p < 36*(S_.bar+1):
                    gp = S_.p; r = VB + (gp % RING)*4
                    a("ds_read_b128 v[%d:%d], v%d offset:%d" % (r, r+3, 4 + (gp//36) % 4, (gp % 36)*1024))
                    S_.p += 1
                    return True
                return False
            if q == 0:
                while rd(): pass
            if q >= S_.rd_done:
                tgt = min(q + 1, S_.p - 1)
                a("s_waitcnt lgkmcnt(%d)" % min(15, S_.p - tgt - 1))
                S_.rd_done = tgt + 1
            if st < 3 and f % 6 == 0:
                a("s_waitcnt vmcnt(%d)" % min(63, S_.vm.wait_cnt(xn_seq[(6*st + f//6, 1)])))
            if st >= 9:
                uu, tt = divmod(q - 324, 3)
                c2, (kind, pr, k9) = units[uu]
                if kind == "p" and tt == 0 and (pr, k9) not in S_.hwaited:
                    S_.hwaited.add((pr, k9))
                    a("s_waitcnt vmcnt(%d)" % min(63, S_.vm.wait_cnt(S_.hld[(pr, k9, 1)])))
            if qst and q in qst: a("s_memtime s[%d:%d]" % (64+2*qst.index(q), 65+2*qst.index(q)))
            m1, m2 = frag_mfmas(q)
            tl = list(tasks.get(q, []))
            a(m1)
            rd()
            if tl and getattr(tl[0], "valu", False): tl.pop(0)(a, S_)
            a(m2)
            did = False
            if S_.pend and (q - max(0, 36*S_.bar - LB)) % (DSP if S_.bar else 3) == 1:
                stg, i = S_.pend.pop(0)
                dma(stg, i); S_.dseq[stg] = S_.vm.issue(); did = True
            for fn in tl: fn(a, S_); did = True
            if not did: rd()
    S0 = S(); S0.vm = vm; S0.bar = -1; S0.p = 0; S0.rd_done = 0; S0.pend = []
    S0.dseq = {0: 0, 1: 0, 2: 0}; S0.hst = {}; S0.hld = {}; S0.hwaited = set(); S0.fin = {}; S0.pst = {}
    run_main(a, S0, 0, SPLITQ, build_tasks(0))
    for svar in range(4):
        if svar: a.label("L_v%d" % svar)
        if svar < 3:
            a("s_cmp_lg_u32 s32, %d" % svar)
            a("s_cbranch_scc1 L_v%d" % (svar+1))
        S_ = copy.deepcopy(S0)
        run_main(a, S_, SPLITQ, NF, build_tasks(svar))
        if dbg: a("s_memrealtime s[90:91]")
        if sdbg is not False: a("s_memtime s[90:91]")
        own01 = [t for t in range(12) if t % 4 == svar]
        own = [t for t in range(12, 18) if t % 4 == svar]
        a("s_nop 7")
        stamp(a, dbg == 3, 7)
        n_at_end = S_.vm.n
        for tau in range(12, 18):
            if tau % 4 == svar: continue
            c2, tt, mt = tau_info(tau); ac = acc2_reg(c2, tt, mt)
            a("s_add_u32 s45, s50, %d" % ((tau*4 + svar)*1024))
            a("buffer_store_dwordx4 v[%d:%d], v3, s[28:31], s45 offen sc1" % (ac, ac+3)); S_.vm.issue()
        if TAIL == 'flag':
            flag_load(a, 12, 8, 49); seq = S_.vm.issue()
            a("s_waitcnt vmcnt(0)")
            flag_store(a, 4, 52, 10, 14); S_.vm.issue()
            poll(a, S_.vm.wait_cnt(seq), [(12, 8, 49, False, 0, FULL)], 3, 14, "L_p3a_%d" % svar, alt=250)
            for i, tau in enumerate(own01): fin_loads(a, S_, tau, HO + 16*i, svar)
            flag_load(a, 12, 8, 49); seq = S_.vm.issue()
            poll(a, S_.vm.wait_cnt(seq), [(12, 8, 49, False, 0, FULL)], 4, 14, "L_p3b_%d" % svar, alt=250)
            for i, tau in enumerate(own): fin_loads(a, S_, tau, VB + 16*i, svar)
            for i, tau in enumerate(own01): fin_math(a, S_, tau, HO + 16*i, svar)
        else:
            for i, tau in enumerate(own): fin_loads(a, S_, tau, VB + 16*i, svar)
            ntail = S_.vm.n - n_at_end
            for c2 in range(2):
                lab = "L_tl_%d_%d" % (c2, svar)
                a("s_bitcmp1_b32 s95, %d" % c2)
                a("s_cbranch_scc1 %s" % lab)
                flag_load(a, 12, 8, 49)
                poll(a, 0, [(12, 8, 49, False, 0, FULL)], 2+c2, 14, lab + "p", alt=250)
                Sx = copy.deepcopy(S_)
                for i, tau in enumerate(own01):
                    if tau // 6 == c2: fin_loads(a, Sx, tau, HO + 16*i, svar)
                a("s_waitcnt vmcnt(0)")
                a.label(lab)
            a("s_waitcnt vmcnt(%d)" % ntail)
            for tau in own01: S_.fin[tau] = 0
            for i, tau in enumerate(own01): fin_math(a, S_, tau, HO + 16*i, svar)
            stamp(a, dbg == 3, 8)
            lab = "L_sen_%d" % svar
            a("s_mov_b32 s58, 0")
            a("s_waitcnt vmcnt(%d)" % S_.vm.wait_cnt(S_.fin[own[-1]]))
            a.label(lab)
            a("s_mov_b64 s[60:61], 0")
            for i, tau in enumerate(own):
                for r in range(12):
                    a("v_cmp_eq_u32 vcc, -1, v%d" % (VB + 16*i + r))
                    a("s_or_b64 s[60:61], s[60:61], vcc")
            a("s_cmp_eq_u64 s[60:61], 0")
            a("s_cbranch_scc1 %s_ok" % lab)
            a("s_add_u32 s58, s58, 1")
            a("s_cmp_gt_u32 s58, %d" % SPIN_MAX)
            a("s_cbranch_scc1 %s_ok" % lab)
            Sx = copy.deepcopy(S_)
            for i, tau in enumerate(own): part_loads(a, Sx, tau, VB + 16*i, svar)
            a("s_waitcnt vmcnt(0)")
            a("s_branch %s" % lab)
            a.label(lab + "_ok")
        stamp(a, dbg == 3, 9)
        for i, tau in enumerate(own): fin_math(a, S_, tau, VB + 16*i, svar)
        stamp(a, dbg == 3, 10)
        if dbg or sdbg is not False:
            a("s_waitcnt vmcnt(0)")
            a("s_memrealtime s[92:93]")
            a("s_waitcnt lgkmcnt(0)")
            for i in range(12): a("v_mov_b32 v%d, s%d" % (16+i, 64+2*i))
            a("v_mov_b32 v28, s90\n v_mov_b32 v29, s92\n v_mov_b32 v30, 0\n v_mov_b32 v31, 0")
            a("s_lshl_b32 s62, s2, 2\n s_add_u32 s62, s62, s39\n s_lshl_b32 s62, s62, 6\n s_add_u32 s62, s62, %d" % STAMP)
            a("s_mov_b64 exec, 1")
            for k_ in range(4): a("buffer_store_dwordx4 v[%d:%d], v10, s[28:31], s62 offen offset:%d" % (16+4*k_, 19+4*k_, 16*k_))
            if dbg == 2:
                lab = a.newlabel("L_dd")
                a("s_load_dwordx2 s[60:61], s[0:1], 80")
                a("s_waitcnt lgkmcnt(0)")
                srd(a, 4, 60, 256)
                a("s_or_b32 s62, s2, s39\n s_cmp_lg_u32 s62, 0\n s_cbranch_scc1 %s" % lab)
                for i in range(1, 14): a("v_subrev_u32 v%d, s64, v%d" % (16+i, 16+i))
                for i in range(1, 14): a("buffer_store_dword v%d, v10, s[4:7], 0 offen offset:%d" % (16+i, 4*i))
                a.label(lab)
        a("s_endpgm")
    a.label("L_end")
    a("s_endpgm")
    return dict(name=KNAME, grid=256, block=256, lds=ONE_LDS, body=a.text(), vgpr=512, sgpr=102, accum=256)

def make_single(k, hdr):
    import subprocess, re
    t = make_file([k], hdr)
    open("_sz.s", "w").write(t.replace("NCODELINES", "1"))
    subprocess.check_call(["clang", "-x", "assembler", "-target", "amdgcn-amd-amdhsa", "-mcpu=gfx950", "-c", "_sz.s", "-o", "_sz.o"])
    o = subprocess.check_output(["llvm-readelf", "-S", "_sz.o"]).decode()
    size = int(re.search(r"\.text\s+PROGBITS\s+\S+\s+\S+\s+(\S+)", o).group(1), 16)
    nl = (size - 64) // 128 - 1
    assert nl < 1024
    t = t.replace("NCODELINES", str(nl))
    return t.replace("; @launch kernel=%s grid" % KNAME, "; @launch grid")

if __name__ == "__main__":
    hdr = open("sequential_preLN__ssm_conv_h3__dense_activation_relu__prompt.s.ref").read().split("; Override")[0]
    t1 = make_single(gen_one(verbose=True), hdr); t2 = make_single(gen_one(dbg=True), hdr)
    open("three.s", "w").write(t1); open("three_dbg.s", "w").write(t2)
    open("three_s0.s", "w").write(make_single(gen_one(sdbg=0), hdr)); open("three_s6.s", "w").write(make_single(gen_one(sdbg=6), hdr))
    open("../cdna_kernels/varDbg.s", "w").write(make_single(gen_one(dbg=2), hdr))
    open("three_dbg3.s", "w").write(make_single(gen_one(dbg=3), hdr))
    import sys
    base = make_single(gen_one(), hdr)
    open("v_base.s", "w").write(base)
    for k_, kw in {"nosil": dict(SIL=False), "zdir": dict(ZDIR=True)}.items():
        open("v_%s.s" % k_, "w").write(make_single(gen_one(**kw), hdr))
```

```python
import copy
from asmlib import *
from layout import *
from gen_front import srd, check_magic, wave_id, stamp, stamp_out

ZL = 147456
RS = ZL + 9216
KB_LDS = RS + 512
F1 = FLAGS
F2 = FLAGS + 64*128
F3 = FLAGS + 320*128
RING = 16; VB = 16
HO = 80
ACC = [152, 200]
SPIN_MAX = 20000

class VM:
    def __init__(self): self.n = 0
    def issue(self): self.n += 1; return self.n
    def wait_cnt(self, seq): return self.n - seq

def order_units():
    O = [("o", 0, x) for x in range(9)]
    Pe = [("p", pr, k9) for k9 in range(6) for pr in range(3)]
    Pl = [("p", pr, k9) for k9 in range(6, 9) for pr in range(3)]
    seq = [(0,O),(1,O),(2,O),(0,Pe),(1,Pe),(0,Pl),(1,Pl),(2,Pe),(2,Pl)]
    return [(c2, u) for c2, L in seq for u in L]

def areg_partner(pr, k9, mt):
    i = 3*k9 + pr
    base = 144 + 8*i if i < 14 else 8*(i-14)
    return base + 4*mt

def acc2_reg(c2, tt, mt):
    base = {0: ACC[0], 1: ACC[0]+24, 2: ACC[1]+24}[c2]
    return base + (tt*2+mt)*4

def acc1_reg(T, mt):
    if T < 6: return ACC[0] + (T*2+mt)*4
    return ACC[1] + 16*((T >> 1) & 1) + ((T & 1)*2+mt)*4

def rnd_pair(a, r, t):
    a("v_cvt_pk_bf16_f32 v%d, v%d, v%d" % (t, r, r+1))
    a("v_lshlrev_b32 v%d, 16, v%d" % (r, t))
    a("v_and_b32 v%d, s43, v%d" % (r+1, t))

def rnd1(a, r):
    a("v_cvt_pk_bf16_f32 v%d, v%d, v%d" % (r, r, r))
    a("v_lshlrev_b32 v%d, 16, v%d" % (r, r))

def ln_stats(a, V, T, rnd_idx, spin=None):
    a("v_pk_add_f32 v[%d:%d], v[%d:%d], v[%d:%d]" % (T, T+1, V, V+1, V+2, V+3))
    a("v_pk_add_f32 v[%d:%d], v[%d:%d], v[%d:%d]" % (T+2, T+3, V+4, V+5, V+6, V+7))
    for i in range(8, 24, 4):
        a("v_pk_add_f32 v[%d:%d], v[%d:%d], v[%d:%d]" % (T, T+1, T, T+1, V+i, V+i+1))
        a("v_pk_add_f32 v[%d:%d], v[%d:%d], v[%d:%d]" % (T+2, T+3, T+2, T+3, V+i+2, V+i+3))
    a("v_pk_add_f32 v[%d:%d], v[%d:%d], v[%d:%d]" % (T, T+1, T, T+1, T+2, T+3))
    a("v_add_f32 v%d, v%d, v%d" % (T, T, T+1))
    a("v_mul_f32 v%d, 0x3d2aaaab, v%d" % (T+4, T))
    a("v_sub_f32 v%d, 0, v%d" % (T, T+4))
    a("v_sub_f32 v%d, 0, v%d" % (T+1, T+4))
    for i in range(0, 24, 4):
        for h in range(2):
            a("v_pk_add_f32 v[%d:%d], v[%d:%d], v[%d:%d]" % (T+10+2*h, T+11+2*h, V+i+2*h, V+i+1+2*h, T, T+1))
        for h in range(2):
            if i == 0: a("v_pk_mul_f32 v[%d:%d], v[%d:%d], v[%d:%d]" % (T+6+2*h, T+7+2*h, T+10+2*h, T+11+2*h, T+10+2*h, T+11+2*h))
            else:      a("v_pk_fma_f32 v[%d:%d], v[%d:%d], v[%d:%d], v[%d:%d]" % (T+6+2*h, T+7+2*h, T+10+2*h, T+11+2*h, T+10+2*h, T+11+2*h, T+6+2*h, T+7+2*h))
    a("v_add_f32 v%d, v%d, v%d" % (T+6, T+6, T+7))
    a("v_add_f32 v%d, v%d, v%d" % (T+8, T+8, T+9))
    a("v_add_f32 v%d, v%d, v%d" % (T+5, T+6, T+8))
    m, M2 = T+4, T+5
    def merge(am, bm, aM, bM, half_n):
        a("v_sub_f32 v%d, v%d, v%d" % (T+10, am, bm))
        a("v_add_f32 v%d, v%d, v%d" % (m, am, bm))
        a("v_add_f32 v%d, v%d, v%d" % (M2, aM, bM))
        a("v_mul_f32 v%d, v%d, v%d" % (T+10, T+10, T+10))
        a("v_mul_f32 v%d, 0.5, v%d" % (m, m))
        a("v_fmac_f32 v%d, %s, v%d" % (M2, half_n, T+10))
    a("s_nop 1")
    a("v_mov_b32_dpp v%d, v%d row_ror:8 row_mask:0xf bank_mask:0xf" % (T+6, m))
    a("v_mov_b32_dpp v%d, v%d row_ror:8 row_mask:0xf bank_mask:0xf" % (T+7, M2))
    merge(m, T+6, M2, T+7, "0x41400000")
    for op, hn in (("v_permlane16_swap_b32", "0x41c00000"), ("v_permlane32_swap_b32", "0x42400000")):
        a("v_mov_b32 v%d, v%d" % (T+6, m)); a("v_mov_b32 v%d, v%d" % (T+7, m))
        a("v_mov_b32 v%d, v%d" % (T+8, M2)); a("v_mov_b32 v%d, v%d" % (T+9, M2))
        a("s_nop 1")
        a("%s v%d, v%d" % (op, T+6, T+7))
        a("%s v%d, v%d" % (op, T+8, T+9))
        a("s_nop 1")
        merge(T+6, T+7, T+8, T+9, hn)
    if spin is None:
        a("ds_write_b64 v11, v[%d:%d] offset:%d" % (m, M2, rnd_idx*192))
        a("s_waitcnt lgkmcnt(0)")
        a("s_barrier")
        for w in range(3):
            a("ds_read_b64 v[%d:%d], v12 offset:%d" % (T+6+2*w, T+7+2*w, rnd_idx*192 + w*64))
        a("s_waitcnt lgkmcnt(0)")
    else:
        lab = a.newlabel("L_lns")
        a("v_mov_b32 v%d, s%d" % (T+12, spin))
        a("ds_write_b64 v11, v[%d:%d] offset:%d" % (m, M2, rnd_idx*192))
        a("ds_write_b32 v11, v%d offset:%d" % (T+12, 384))
        a("s_mov_b32 s58, 0")
        a.label(lab)
        for w in range(3): a("ds_read_b32 v%d, v12 offset:%d" % (T+13+w, 384 + w*64))
        a("s_waitcnt lgkmcnt(0)")
        a("v_cmp_eq_u32 vcc, v%d, v%d" % (T+12, T+13))
        a("v_cmp_eq_u32 s[60:61], v%d, v%d" % (T+12, T+14))
        a("v_cmp_eq_u32 s[62:63], v%d, v%d" % (T+12, T+15))
        a("s_add_u32 s58, s58, 1")
        a("s_and_b64 vcc, vcc, s[60:61]")
        a("s_and_b64 vcc, vcc, s[62:63]")
        a("s_cmp_gt_u32 s58, 4000000")
        a("s_cbranch_scc1 %s_ok" % lab)
        a("s_cmp_eq_u64 vcc, -1")
        a("s_cbranch_scc0 %s" % lab)
        a.label(lab + "_ok")
        for w in range(3):
            a("ds_read_b64 v[%d:%d], v12 offset:%d" % (T+6+2*w, T+7+2*w, rnd_idx*192 + w*64))
        a("s_waitcnt lgkmcnt(0)")
    a("v_add_f32 v%d, v%d, v%d" % (m, T+6, T+8))
    a("v_add_f32 v%d, v%d, v%d" % (M2, T+7, T+9))
    a("v_add_f32 v%d, v%d, v%d" % (m, m, T+10))
    a("v_add_f32 v%d, v%d, v%d" % (M2, M2, T+11))
    a("v_mul_f32 v%d, 0x3eaaaaab, v%d" % (m, m))
    a("v_sub_f32 v%d, v%d, v%d" % (T+6, T+6, m))
    a("v_sub_f32 v%d, v%d, v%d" % (T+8, T+8, m))
    a("v_sub_f32 v%d, v%d, v%d" % (T+10, T+10, m))
    a("v_mul_f32 v%d, v%d, v%d" % (T+6, T+6, T+6))
    a("v_fmac_f32 v%d, v%d, v%d" % (T+6, T+8, T+8))
    a("v_fmac_f32 v%d, v%d, v%d" % (T+6, T+10, T+10))
    a("v_fmac_f32 v%d, 0x43400000, v%d" % (M2, T+6))
    a("v_mul_f32 v%d, 0x3ae38e39, v%d" % (M2, M2))
    rnd1(a, m); rnd1(a, M2)
    a("v_add_f32 v%d, 0x3727c5ac, v%d" % (M2, M2))
    rnd1(a, M2)
    a("v_sqrt_f32 v%d, v%d" % (M2, M2))
    a("s_nop 0")
    rnd1(a, M2)
    a("v_rcp_f32 v%d, v%d" % (T+2, M2))
    a("v_sub_f32 v%d, 0, v%d" % (T, m))
    a("v_sub_f32 v%d, 0, v%d" % (T+1, m))
    a("s_nop 0")
    a("v_mov_b32 v%d, v%d" % (T+3, T+2))

def poll_check(a, vm, seq, vflag, needed, mask, soff, vaddr, lab):
    a("s_waitcnt vmcnt(%d)" % vm.wait_cnt(seq))
    a("s_mov_b32 s58, 0")
    a.label(lab + "_chk")
    a("v_cmp_le_u32 vcc, %d, v%d" % (needed, vflag))
    a("s_nop 1")
    a("s_and_b32 s59, vcc_lo, 0x%x" % mask)
    a("s_cmp_eq_u32 s59, 0x%x" % mask)
    a("s_cbranch_scc1 %s_ok" % lab)
    a("s_add_u32 s58, s58, 1")
    a("s_cmp_gt_u32 s58, %d" % SPIN_MAX)
    a("s_cbranch_scc1 %s_ok" % lab)
    a("s_sleep 1")
    a("buffer_load_dword v%d, v%d, s[28:31], s%d offen sc1" % (vflag, vaddr, soff))
    a("s_waitcnt vmcnt(0)")
    a("s_branch %s_chk" % lab)
    a.label(lab + "_ok")

def gen_kb(dbg=False, LMAX=12, LB=6, sdbg=False, qst=None, hsc='sc1', hlc='sc1', exp=0, FLAGD=(36, 36), CHKD=25, POLLS=((208, 3, 0, 9), (272, 5, 9, 15), (340, 7, 15, 21), (410, 9, 21, 27)), DSP=4, VPS=2, SSP=10, PSP=5, verbose=False, touch=False):
    a = Asm()
    vm = VM()
    a("s_cmp_ge_u32 s2, 256")
    a("s_cbranch_scc1 KB_end")
    a("""
    s_load_dwordx2 s[4:5], s[0:1], 0
    s_load_dwordx2 s[6:7], s[0:1], 72
    s_load_dwordx2 s[12:13], s[0:1], 88
    s_waitcnt lgkmcnt(0)
    """)
    srd(a, 16, 4, 2359296); srd(a, 20, 6, 2359296); srd(a, 28, 12, WS_SIZE)
    stamp(a, dbg, 0)
    wave_id(a, 39, 1)
    a("""
    s_and_b32 s32, s2, 3             ; s
    s_lshr_b32 s33, s2, 3            ; q
    s_and_b32 s34, s33, 3            ; n
    s_lshr_b32 s35, s33, 2
    s_bfe_u32 s36, s2, 0x10002       ; (b>>2)&1
    s_lshl_b32 s36, s36, 3
    s_add_u32 s35, s35, s36          ; m
    s_lshl_b32 s36, s32, 2
    s_add_u32 s36, s36, s34          ; j
    s_lshl_b32 s37, s35, 7
    s_lshl_b32 s38, s36, 3
    s_add_u32 s37, s37, s38          ; R0
    s_mov_b32 s43, 0xffff0000
    v_and_b32 v2, 63, v0             ; lane
    v_lshlrev_b32 v3, 4, v2          ; lane*16
    s_mul_i32 s40, s39, 9216         ; wave offset within stage (lds + global)
    s_mul_i32 s41, s36, %d
    s_add_u32 s41, s41, s40
    s_add_u32 s41, s41, %d           ; W1P global base for this wave
    s_add_u32 s42, s41, %d           ; W2P global base for this wave
    """ % (SLICE, W1P, W2P - W1P))
    for sl in range(4): a("v_add_u32 v%d, %d, v3" % (4+sl, sl*36864))
    def dma(stage, i):
        slot = stage % 4
        a("s_add_u32 m0, s40, %d" % (slot*36864 + i*1024))
        if stage < 9: a("s_add_u32 s44, s41, %d" % (stage*36864 + i*1024))
        else:         a("s_add_u32 s44, s42, %d" % ((stage-9)*36864 + i*1024))
        a("buffer_load_dwordx4 v3, s[28:31], s44 offen lds")
        return vm.issue()
    if touch:
        a("""
        s_lshl_b32 s45, s35, 2
        s_add_u32 s45, s45, s39
        s_mul_i32 s46, s45, %d
        s_add_u32 s46, s46, %d
        v_mov_b32 v8, 0
        buffer_load_dword v240, v8, s[28:31], s46 offen
        s_add_u32 s46, s46, %d
        buffer_load_dword v241, v8, s[28:31], s46 offen
        s_add_u32 s46, s46, %d
        buffer_load_dword v242, v8, s[28:31], s46 offen
        """ % (2*HFS, HF - 1280 + 128, HFS, HFS))
        for _ in range(3): vm.issue()
    a("s_cmp_eq_u32 s39, 3")
    a("s_cbranch_scc1 KB_w3")
    vm3 = VM()
    a("""
    v_lshlrev_b32 v8, 12, v2         ; lane*4096
    s_mul_i32 s44, s39, 786432       ; 3w * 262144
    s_lshl_b32 s45, s37, 1
    s_add_u32 s44, s44, s45
    s_add_u32 s44, s44, %d
    s_mul_i32 s45, s39, 3072
    v_and_b32 v9, 7, v2              ; r
    v_lshrrev_b32 v10, 3, v2         ; l>>3
    v_mul_u32_u24 v13, 1152, v9
    v_lshl_add_u32 v13, v10, 4, v13  ; x voffset
    s_mul_i32 s46, s37, 1152
    s_mul_i32 s47, s39, 384
    s_add_u32 s46, s46, s47          ; x soffset (it=0)
    """ % ZT)
    for it in range(3):
        a("s_add_u32 m0, s45, %d" % (ZL + it*1024))
        a("s_add_u32 s47, s44, %d" % (it*262144))
        a("buffer_load_dwordx4 v8, s[28:31], s47 offen lds")
        zseq = vm.issue()
    for it in range(3):
        a("buffer_load_dwordx4 v[%d:%d], v13, s[16:19], s46 offen offset:%d" % (16+4*it, 19+4*it, it*128))
        xseq = vm.issue()
    for st in range(3):
        for i in range(9): dma(st, i)
    a("""
    v_lshlrev_b32 v12, 3, v9         ; r*8
    v_add_u32 v12, %d, v12
    s_lshl_b32 s47, s39, 6
    v_add_u32 v11, s47, v12          ; r*8 + w*64
    v_lshrrev_b32 v14, 4, v2         ; G
    v_lshlrev_b32 v14, 8, v14
    v_bfe_u32 v15, v2, 1, 1          ; c>>1
    v_lshl_add_u32 v14, v15, 7, v14
    v_bfe_u32 v15, v2, 2, 2          ; r4
    v_lshl_add_u32 v14, v15, 4, v14
    v_and_b32 v15, 1, v2
    v_lshl_add_u32 v14, v15, 3, v14
    v_add_u32 v14, s45, v14
    v_add_u32 v14, %d, v14           ; tr read addr (it=0)
    """ % (RS, ZL))
    a("s_waitcnt vmcnt(%d)" % vm.wait_cnt(xseq))
    stamp(a, dbg, 1)
    for it in range(3):
        a("ds_read_b64_tr_b16 v[%d:%d], v14 offset:%d" % (28+4*it, 29+4*it, it*1024))
        a("ds_read_b64_tr_b16 v[%d:%d], v14 offset:%d" % (30+4*it, 31+4*it, it*1024 + 64))
    X = 40
    for i in range(12):
        a("v_lshlrev_b32 v%d, 16, v%d" % (X+2*i, 16+i))
        a("v_and_b32 v%d, s43, v%d" % (X+2*i+1, 16+i))
    T = 100
    ln_stats(a, X, T, 0)
    Hh = 64
    for i in range(12):
        d = 120
        a("v_pk_add_f32 v[%d:%d], v[%d:%d], v[%d:%d]" % (d, d+1, X+2*i, X+2*i+1, T, T+1)); rnd_pair(a, d, d+4)
        a("v_pk_mul_f32 v[%d:%d], v[%d:%d], v[%d:%d]" % (d, d+1, d, d+1, T+2, T+3)); rnd_pair(a, d, d+4)
        a("v_lshlrev_b32 v%d, 16, v%d" % (d+2, 28+i))
        a("v_and_b32 v%d, s43, v%d" % (d+3, 28+i))
        a("v_pk_mul_f32 v[%d:%d], v[%d:%d], v[%d:%d]" % (d, d+1, d, d+1, d+2, d+3)); rnd_pair(a, d, d+4)
        a("v_pk_add_f32 v[%d:%d], v[%d:%d], v[%d:%d]" % (Hh+2*i, Hh+2*i+1, X+2*i, X+2*i+1, d, d+1)); rnd_pair(a, Hh+2*i, 16+i)
    a("s_add_u32 s47, s46, %d" % HB)
    for it in range(3):
        a("buffer_store_dwordx4 v[%d:%d], v13, s[28:31], s47 offen offset:%d sc1" % (16+4*it, 19+4*it, it*128)); vm.issue()
    ln_stats(a, Hh, T, 1)
    for i in range(12):
        d = 120
        a("v_pk_add_f32 v[%d:%d], v[%d:%d], v[%d:%d]" % (d, d+1, Hh+2*i, Hh+2*i+1, T, T+1)); rnd_pair(a, d, d+4)
        a("v_pk_mul_f32 v[%d:%d], v[%d:%d], v[%d:%d]" % (d, d+1, d, d+1, T+2, T+3))
        a("v_cvt_pk_bf16_f32 v%d, v%d, v%d" % (28+i, d, d+1))
    a("""
    v_lshrrev_b32 v8, 5, v2
    v_lshlrev_b32 v8, 10, v8
    v_bfe_u32 v15, v2, 3, 2
    v_lshl_add_u32 v8, v15, 8, v8
    v_lshl_add_u32 v8, v9, 4, v8     ; xn voffset
    s_lshr_b32 s47, s37, 4           ; mt_g
    s_mul_i32 s47, s47, 18
    s_mul_i32 s48, s39, 6
    s_add_u32 s47, s47, s48
    s_lshl_b32 s47, s47, 10
    s_and_b32 s48, s36, 1
    s_lshl_b32 s48, s48, 7
    s_add_u32 s47, s47, s48
    s_add_u32 s47, s47, %d
    """ % XNF)
    for it in range(3):
        if it == 2: a("s_add_u32 s47, s47, 4096")
        a("buffer_store_dwordx4 v[%d:%d], v8, s[28:31], s47 offen offset:%d sc1" % (28+4*it, 31+4*it, (it*2048) % 4096)); vm.issue()
    a("""
    s_lshl_b32 s47, s35, 2
    s_add_u32 s47, s47, s32
    s_lshl_b32 s47, s47, 7
    s_lshl_b32 s48, s34, 4
    s_add_u32 s47, s47, s48
    s_lshl_b32 s48, s39, 2
    s_add_u32 s47, s47, s48
    s_add_u32 s47, s47, %d
    v_mov_b32 v8, 0
    v_mov_b32 v9, 1
    s_waitcnt vmcnt(0)
    s_mov_b64 exec, 1
    buffer_store_dword v9, v8, s[28:31], s47 offen sc1
    s_mov_b64 exec, -1
    s_branch KB_lnd
    """ % F1)
    a.label("KB_w3")
    save = vm.n
    for st in range(3):
        for i in range(9): dma(st, i)
    vm.n = save
    a("s_barrier")
    a("s_barrier")
    a.label("KB_lnd")
    stamp(a, dbg, 2)
    a("""
    s_lshl_b32 s47, s35, 2
    s_add_u32 s47, s47, s39
    s_lshl_b32 s47, s47, 7
    s_add_u32 s47, s47, %d
    v_and_b32 v8, 15, v2
    v_lshlrev_b32 v8, 2, v8
    buffer_load_dword v9, v8, s[28:31], s47 offen sc1
    """ % F1)
    vm.n = 0
    seq = vm.issue()
    poll_check(a, vm, seq, 9, 1, 0x7777, 47, 8, "KB_p1")
    stamp(a, dbg, 3)
    a("""
    s_lshl_b32 s47, s35, 3
    s_lshl_b32 s48, s39, 1
    s_add_u32 s47, s47, s48
    s_mul_i32 s47, s47, 18432
    s_add_u32 s47, s47, %d
    """ % XNF)
    xn_seq = {}
    for ks in range(18):
        for mt in range(2):
            off = (mt*18 + ks)*1024
            a("s_add_u32 s48, s47, %d" % (off - off % 4096))
            r = (ks*2+mt)*4
            a("buffer_load_dwordx4 a[%d:%d], v3, s[28:31], s48 offen offset:%d sc1" % (r, r+3, off % 4096))
            xn_seq[(ks, mt)] = vm.issue()
    a("""
    s_lshl_b32 s45, s35, 2
    s_add_u32 s45, s45, s39          ; m*4+w
    s_mul_i32 s46, s45, %d
    s_add_u32 s46, s46, %d           ; HF base for (m,w)
    s_mul_i32 s47, s36, 9216
    s_add_u32 s47, s47, s46          ; own HF base (kk = 9j)
    s_lshl_b32 s48, s35, 2
    s_add_u32 s48, s48, s32
    s_lshl_b32 s48, s48, 2
    s_add_u32 s48, s48, s39
    s_lshl_b32 s48, s48, 7
    s_add_u32 s48, s48, %d           ; F2 line (m,s,w)
    s_lshl_b32 s49, s35, 2
    s_add_u32 s49, s49, s34
    s_lshl_b32 s49, s49, 2
    s_add_u32 s49, s49, s39          ; (m*4+n)*4+w
    s_mul_i32 s50, s49, 73728
    s_add_u32 s50, s50, %d           ; PART base (m,n,w)
    s_lshl_b32 s49, s49, 7
    s_add_u32 s49, s49, %d           ; F3 line (m,n,w)
    v_and_b32 v8, 3, v2
    v_lshlrev_b32 v8, 2, v8          ; flag lane addr
    v_mov_b32 v10, 0
    s_lshl_b32 s51, s34, 2
    s_add_u32 s51, s51, s48          ; own F2 word
    s_lshl_b32 s52, s32, 2
    s_add_u32 s52, s52, s49          ; own F3 word
    """ % (2*HFS, HF, F2, PART, F3))
    for pr in range(3):
        a("s_add_u32 s%d, s34, %d" % (53+pr, 1+pr))
        a("s_and_b32 s%d, s%d, 3" % (53+pr, 53+pr))
        a("s_lshl_b32 s56, s32, 2")
        a("s_add_u32 s%d, s%d, s56" % (53+pr, 53+pr))
        a("s_mul_i32 s%d, s%d, 9216" % (53+pr, 53+pr))
        a("s_add_u32 s%d, s%d, s46" % (53+pr, 53+pr))
    a("""
    v_and_b32 v11, 15, v2
    v_mul_u32_u24 v11, 1152, v11
    v_lshrrev_b32 v12, 4, v2
    v_lshl_add_u32 v11, v12, 3, v11  ; (l&15)*1152 + g*8
    s_lshl_b32 s56, s35, 7
    s_lshl_b32 s57, s39, 5
    s_add_u32 s56, s56, s57
    s_mul_i32 s56, s56, 1152
    s_mul_i32 s57, s34, 288
    s_add_u32 s56, s56, s57          ; out soffset base
    s_add_u32 s57, s56, %d           ; h soffset base
    """ % HB)

    units = order_units()
    NF = 648
    def frag_mfmas(gf):
        st, f = divmod(gf, 36)
        rb = VB + (gf % RING)*4
        out = []
        if st < 9:
            if st < 3: ks = 6*st + f // 6; T = f % 6
            else:      ks = f // 2; T = 2*st + (f & 1)
            for mt in range(2):
                ac = acc1_reg(T, mt)
                xr = (ks*2+mt)*4
                src = "0" if ks == 0 else "v[%d:%d]" % (ac, ac+3)
                out.append("v_mfma_f32_16x16x32_bf16 v[%d:%d], v[%d:%d], a[%d:%d], %s" % (ac, ac+3, rb, rb+3, xr, xr+3, src))
        else:
            uu, tt = divmod(gf - 324, 3)
            c2, (kind, pr, k9) = units[uu]
            first = uu in (0, 9, 18)
            for mt in range(2):
                ac = acc2_reg(c2, tt, mt)
                if kind == "o": hr = "v[%d:%d]" % (HO + (k9*2+mt)*4, HO + (k9*2+mt)*4 + 3)
                else:
                    r = areg_partner(pr, k9, mt); hr = "a[%d:%d]" % (r, r+3)
                src = "0" if first else "v[%d:%d]" % (ac, ac+3)
                out.append("v_mfma_f32_16x16x32_bf16 v[%d:%d], v[%d:%d], %s, %s" % (ac, ac+3, rb, rb+3, hr, src))
        return out

    class S: pass
    def build_tasks(svar):
        tasks = {}
        def at(q, fn): tasks.setdefault(q, []).append(fn)
        busy = set()
        for nb in range(15):
            b0 = max(0, 36*nb - LB)
            for i in range(9): busy.add(b0 + 1 + (DSP if nb else 3)*i)
        def vslot(q):
            while q in busy or (q-1) in busy or (q+1) in busy: q += 1
            busy.add(q); return q
        lastq = 0; kq = 0
        for k9 in range(9):
            q0 = max(108, 36*(k9+1)) + 1
            kq = max(kq, q0*VPS)
            for mt in range(2):
                hr = HO + (k9*2+mt)*4
                for half in range(2):
                    ac = acc1_reg(2*k9+half, mt)
                    for e in range(2):
                        def f(a, S_, d=hr+2*half+e, s0=ac+2*e):
                            a("v_cvt_pk_bf16_f32 v%d, v%d, v%d" % (d, s0, s0+1))
                        f.valu = True; at(kq//VPS, f); kq += 1
                for e in range(4):
                    def g(a, S_, r=hr+e): a("v_pk_max_i16 v%d, v%d, v10" % (r, r))
                    g.valu = True; at(kq//VPS, g); kq += 1
                def h(a, S_, hr=hr, k9=k9, mt=mt):
                    a("s_add_u32 s60, s47, %d" % (mt*HFS + k9*1024))
                    a("buffer_store_dwordx4 v[%d:%d], v3, s[28:31], s60 offen %s" % (hr, hr+3, hsc))
                    S_.hst[k9] = S_.vm.issue()
                lastq = vslot(max(lastq + (SSP if k9 > 2 else 6), kq//VPS + 1))
                at(lastq, h)
            if k9 in (2, 4, 6, 8):
                def fl(a, S_, k9=k9):
                    a("s_waitcnt vmcnt(%d)" % S_.vm.wait_cnt(S_.hst[k9]))
                    a("v_mov_b32 v9, %d" % (k9+1))
                    a("s_mov_b64 exec, 1")
                    a("buffer_store_dword v9, v10, s[28:31], s51 offen sc1"); S_.vm.issue()
                    a("s_mov_b64 exec, -1")
                fq = vslot(lastq + FLAGD[0]); at(fq, fl)
                if svar == 0 and verbose: print("flag", k9+1, "at", fq)
        lastq = 0
        pq = [vslot(p[0]) for p in POLLS]
        for pi, (qp, need, lo, hi) in enumerate(POLLS):
            def pl(a, S_):
                a("buffer_load_dword v13, v8, s[28:31], s48 offen sc1"); S_.fseq = S_.vm.issue()
            qp = pq[pi]; at(qp, pl)
            qc = qp + CHKD
            def pc(a, S_, pi=pi, need=need, qc=qc):
                poll_check(a, S_.vm, S_.fseq, 13, need, 0xf, 48, 8, "KB_p2_%d_%d" % (pi, svar if qc >= SPLITQ else 9))
            at(qc, pc)
            lastq = max(lastq, qc + 1)
            for i in range(lo, hi):
                k9, pr = divmod(i, 3)
                assert k9 < need
                if i >= 14: lastq = max(lastq, 326)
                for mt in range(2):
                    def ld(a, S_, pr=pr, k9=k9, mt=mt):
                        r = areg_partner(pr, k9, mt)
                        a("s_add_u32 s60, s%d, %d" % (53+pr, mt*HFS + k9*1024))
                        a("buffer_load_dwordx4 a[%d:%d], v3, s[28:31], s60 offen %s" % (r, r+3, hlc))
                        S_.hld[(pr, k9, mt)] = S_.vm.issue()
                    lastq = vslot(lastq); at(lastq, ld)
            if svar == 0 and verbose: print("poll", pi, "check", qc, "loads until slot", lastq)
        lastq = 0
        for c2, qe in ((0, 324 + 72*3), (1, 324 + 81*3)):
            for tt in range(3):
                for mt in range(2):
                    tau = 6*c2 + 2*tt + mt
                    if tau % 4 == svar: continue
                    def ps(a, S_, tau=tau, ac=acc2_reg(c2, tt, mt)):
                        a("s_add_u32 s60, s50, %d" % ((tau*4 + svar)*1024))
                        a("buffer_store_dwordx4 v[%d:%d], v3, s[28:31], s60 offen sc1" % (ac, ac+3))
                        S_.pst = S_.vm.issue()
                    lastq = vslot(max(lastq + PSP, qe + 1)); at(lastq, ps)
        def fl3(a, S_):
            a("s_waitcnt vmcnt(%d)" % S_.vm.wait_cnt(S_.pst))
            a("v_mov_b32 v9, 1")
            a("s_mov_b64 exec, 1")
            a("buffer_store_dword v9, v10, s[28:31], s52 offen sc1"); S_.vm.issue()
            a("s_mov_b64 exec, -1")
        at(min(NF-1, lastq + FLAGD[1]), fl3)
        if svar == 0 and verbose: print('last partial store', lastq)
        assert max(tasks) < NF
        return tasks

    def tau_info(tau):
        c2, r = divmod(tau, 6); tt, mt = divmod(r, 2)
        return c2, tt, mt
    def fin_loads(tau, B, svar):
        c2, tt, mt = tau_info(tau)
        fns = []
        srcs = [s_ for s_ in range(4) if s_ != svar]
        for i, s_ in enumerate(srcs):
            def ld(a, S_, i=i, s_=s_):
                a("s_add_u32 s60, s50, %d" % ((tau*4 + s_)*1024))
                a("buffer_load_dwordx4 v[%d:%d], v3, s[28:31], s60 offen sc1" % (B+4*i, B+4*i+3))
                S_.fin[tau] = S_.vm.issue()
            fns.append(ld)
        def ldh(a, S_):
            a("s_add_u32 s60, s57, %d" % (mt*18432 + c2*96 + tt*32))
            a("buffer_load_dwordx2 v[%d:%d], v11, s[28:31], s60 offen sc1" % (B+12, B+13))
            S_.fin[tau] = S_.vm.issue()
        fns.append(ldh)
        return fns
    def fin_math(tau, B, svar):
        c2, tt, mt = tau_info(tau)
        ac = acc2_reg(c2, tt, mt)
        srcs = [s_ for s_ in range(4) if s_ != svar]
        regs = {}
        for i, s_ in enumerate(srcs): regs[s_] = B + 4*i
        regs[svar] = ac
        L = []
        def ins(s): L.append(lambda a, S_, s=s: a(s))
        L.append(lambda a, S_: a("s_waitcnt vmcnt(%d)" % S_.vm.wait_cnt(S_.fin[tau])))
        d = B + 0 if svar != 0 else B + 0
        for h_ in range(2):
            ins("v_pk_add_f32 v[%d:%d], v[%d:%d], v[%d:%d]" % (B+14 if False else ac+2*h_, ac+2*h_+1, regs[0]+2*h_, regs[0]+2*h_+1, regs[1]+2*h_, regs[1]+2*h_+1)) if svar in (0, 1) else \
            ins("v_pk_add_f32 v[%d:%d], v[%d:%d], v[%d:%d]" % (regs[0]+2*h_, regs[0]+2*h_+1, regs[0]+2*h_, regs[0]+2*h_+1, regs[1]+2*h_, regs[1]+2*h_+1))
        cur = ac if svar in (0, 1) else regs[0]
        for s_ in (2, 3):
            for h_ in range(2):
                ins("v_pk_add_f32 v[%d:%d], v[%d:%d], v[%d:%d]" % (cur+2*h_, cur+2*h_+1, cur+2*h_, cur+2*h_+1, regs[s_]+2*h_, regs[s_]+2*h_+1))
        t = B + 14
        for h_ in range(2):
            r = cur + 2*h_
            ins("v_cvt_pk_bf16_f32 v%d, v%d, v%d" % (t, r, r+1))
            ins("v_lshlrev_b32 v%d, 16, v%d" % (r, t))
            ins("v_and_b32 v%d, s43, v%d" % (r+1, t))
            ins("v_lshlrev_b32 v%d, 16, v%d" % (B+4+2*h_, B+12+h_))
            ins("v_and_b32 v%d, s43, v%d" % (B+5+2*h_, B+12+h_))
            ins("v_pk_add_f32 v[%d:%d], v[%d:%d], v[%d:%d]" % (r, r+1, r, r+1, B+4+2*h_, B+5+2*h_))
        for h_ in range(2):
            ins("v_cvt_pk_bf16_f32 v%d, v%d, v%d" % (B+8+h_, cur+2*h_, cur+2*h_+1))
        def st(a, S_):
            a("s_add_u32 s60, s56, %d" % (mt*18432 + c2*96 + tt*32))
            a("buffer_store_dwordx2 v[%d:%d], v11, s[20:23], s60 offen" % (B+8, B+9)); S_.vm.issue()
        L.append(st)
        return L

    SPLITQ = 536
    def run_main(a, S_, q_from, q_to, tasks):
        for q in range(q_from, q_to):
            st, f = divmod(q, 36)
            nb = S_.bar + 1
            if nb < 18 and q == max(0, 36*nb - LB):
                a("s_waitcnt lgkmcnt(0)") if nb > 0 else None
                S_.rd_done = S_.p
                a("s_waitcnt vmcnt(%d)" % min(63, S_.vm.wait_cnt(S_.dseq[nb])))
                a("s_barrier")
                if sdbg and not qst: stamp(a, True, nb)
                if dbg and nb in (0,): stamp(a, dbg, 4)
                if dbg and nb in (9,): stamp(a, dbg, 5)
                S_.bar = nb
                assert not S_.pend
                if nb + 3 < 18: S_.pend = [(nb+3, i) for i in range(9)]
            def rd():
                if S_.p < NF and S_.p <= q + LMAX and S_.p < 36*(S_.bar+1):
                    gp = S_.p; r = VB + (gp % RING)*4
                    a("ds_read_b128 v[%d:%d], v%d offset:%d" % (r, r+3, 4 + (gp//36) % 4, (gp % 36)*1024))
                    S_.p += 1
                    return True
                return False
            if q == 0:
                while rd(): pass
            if q >= S_.rd_done:
                tgt = min(q + 1, S_.p - 1)
                a("s_waitcnt lgkmcnt(%d)" % min(15, S_.p - tgt - 1))
                S_.rd_done = tgt + 1
            if st < 9:
                ks = 6*(st % 3) + f // 6
                if st < 3 and f % 6 == 0:
                    a("s_waitcnt vmcnt(%d)" % min(63, S_.vm.wait_cnt(xn_seq[(ks, 1)])))
            else:
                uu, tt = divmod(q - 324, 3)
                c2, (kind, pr, k9) = units[uu]
                if kind == "p" and tt == 0 and (pr, k9) not in S_.hwaited:
                    S_.hwaited.add((pr, k9))
                    a("s_waitcnt vmcnt(%d)" % min(63, S_.vm.wait_cnt(S_.hld[(pr, k9, 1)])))
            if qst and q in qst: stamp(a, True, qst.index(q))
            m1, m2 = frag_mfmas(q)
            tl = list(tasks.get(q, []))
            a(m1)
            rd()
            if tl and getattr(tl[0], "valu", False): tl.pop(0)(a, S_)
            a(m2)
            did = False
            if S_.pend and (q - max(0, 36*S_.bar - LB)) % (DSP if S_.bar else 3) == 1:
                stg, i = S_.pend.pop(0)
                S_.dseq[stg] = dma_(a, S_, stg, i); did = True
            for fn in tl: fn(a, S_); did = True
            if not did: rd()
    def dma_(a, S_, stage, i):
        slot = stage % 4
        if i % 4 == 0:
            a("s_add_u32 m0, s40, %d" % (slot*36864 + i*1024))
            if stage < 9: a("s_add_u32 s44, s41, %d" % (stage*36864 + i*1024))
            else:         a("s_add_u32 s44, s42, %d" % ((stage-9)*36864 + i*1024))
        a("buffer_load_dwordx4 v3, s[28:31], s44 offen offset:%d lds" % ((i % 4)*1024))
        return S_.vm.issue()

    S0 = S(); S0.vm = vm; S0.bar = -1; S0.p = 0; S0.rd_done = 0; S0.pend = []
    S0.dseq = {0: 0, 1: 0, 2: 0}; S0.hst = {}; S0.hld = {}; S0.hwaited = set(); S0.fin = {}
    run_main(a, S0, 0, SPLITQ, build_tasks(0))
    for svar in range(4):
        if svar: a.label("KB_v%d" % svar)
        if svar < 3:
            a("s_cmp_lg_u32 s32, %d" % svar)
            a("s_cbranch_scc1 KB_v%d" % (svar+1))
        S_ = copy.deepcopy(S0)
        run_main(a, S_, SPLITQ, NF, build_tasks(svar))
        assert not S_.pend
        stamp(a, dbg, 6)
        a("s_nop 7")
        for tau in sorted(range(12, 18), key=lambda t: t):
            if tau % 4 == svar: continue
            c2, tt, mt = tau_info(tau); ac = acc2_reg(c2, tt, mt)
            a("s_add_u32 s60, s50, %d" % ((tau*4 + svar)*1024))
            a("buffer_store_dwordx4 v[%d:%d], v3, s[28:31], s60 offen sc1" % (ac, ac+3)); S_.vm.issue()
        a("buffer_load_dword v13, v8, s[28:31], s49 offen sc1"); seq = S_.vm.issue()
        a("v_mov_b32 v9, 2")
        a("s_waitcnt vmcnt(0)")
        a("""
        s_mov_b64 exec, 1
        buffer_store_dword v9, v10, s[28:31], s52 offen sc1
        s_mov_b64 exec, -1
        """); S_.vm.issue()
        poll_check(a, S_.vm, seq, 13, 1, 0xf, 49, 8, "KB_p3a_%d" % svar)
        own01 = [t for t in range(12) if t % 4 == svar]
        for i, tau in enumerate(own01):
            for fn in fin_loads(tau, HO + 16*i, svar): fn(a, S_)
        a("buffer_load_dword v13, v8, s[28:31], s49 offen sc1"); seq = S_.vm.issue()
        own = [t for t in range(12, 18) if t % 4 == svar]
        poll_check(a, S_.vm, seq, 13, 2, 0xf, 49, 8, "KB_p3b_%d" % svar)
        for i, tau in enumerate(own):
            for fn in fin_loads(tau, VB + 16*i, svar): fn(a, S_)
        for i, tau in enumerate(own01):
            for fn in fin_math(tau, HO + 16*i, svar): fn(a, S_)
        for i, tau in enumerate(own):
            for fn in fin_math(tau, VB + 16*i, svar): fn(a, S_)
        if sdbg: stamp_out(a, True, 18, 2, "s[28:31]")
        if dbg:
            a("s_waitcnt vmcnt(0)")
            stamp(a, dbg, 7)
            stamp_out(a, dbg, 8, 2, "s[28:31]")
        a("s_endpgm")
    a.label("KB_end")
    a("s_endpgm")
    return dict(name="kb_kernel", grid=256, block=256, lds=KB_LDS, body=a.text(), vgpr=512, sgpr=102, accum=256)

if __name__ == "__main__":
    from gen_front import gen_k1, gen_k2
    hdr = open("sequential_preLN__ssm_conv_h3__dense_activation_relu__prompt.s.ref").read().split("; Override")[0]
    t_ = make_file([gen_k1(), gen_k2(), gen_kb(verbose=True)], hdr); open("full.s", "w").write(t_)
    open("full_dbg.s", "w").write(make_file([gen_k1(True), gen_k2(True), gen_kb(True)], hdr))
    open("full_sdbg.s", "w").write(make_file([gen_k1(), gen_k2(), gen_kb(sdbg=True)], hdr))
    open("full_qdbg.s", "w").write(make_file([gen_k1(), gen_k2(), gen_kb(sdbg=True, qst=list(range(246, 282, 2)))], hdr).replace("s_memrealtime", "s_memtime"))
    open("full_sdbg_touch.s", "w").write(make_file([gen_k1(), gen_k2(), gen_kb(sdbg=True, touch=True)], hdr).replace("s_memrealtime", "s_memtime"))
```

```python
import copy
from asmlib import *
from layout import *
from gen_front import srd, check_magic
from gen_kb import VM, order_units, areg_partner, acc2_reg, acc1_reg, rnd_pair, rnd1, ln_stats, ZL, RS, KB_LDS, RING, VB, HO, ACC

KNAME = "sequential_preLN__ssm_conv_h3__dense_activation_relu__prompt_kernel"
FA  = FLAGS
FZ  = FLAGS + 0x20000
FP1 = FLAGS + 0x3000
FP2 = FLAGS + 0x5000
F1  = FLAGS + 0x7000
F2  = FLAGS + 0x10000
F3  = FLAGS + 0x18000
SPIN_MAX = 20000
STAMP = 0x6000000 + BASE
SN0, SN1 = 88, 89
ZT = UG; ZTS = 8192
ZL = 110592; RS = ZL + 9216; LW = RS + 640
SBUF = 3*CH_BYTES + 6*8192
ONE_LDS = SBUF + 36864
XQ = 232

class Chain:
    def __init__(self): self.l = []
    def __call__(self, t): self.l.append(t)
def interleave(a, chains):
    ls = [list(c.l) for c in chains]
    while any(ls):
        for l in ls:
            if l: a(l.pop(0))

FINE = [False]
def stamp(a, dbg, i):
    if dbg and not (FINE[0] and i > 0): a("s_memrealtime s[%d:%d]" % (64+2*i, 65+2*i))
def fstamp(a, i):
    if FINE[0]: a("s_memrealtime s[%d:%d]" % (64+2*i, 65+2*i))

def flag_store(a, val, soff, vz, vt):
    a("s_add_u32 s61, s%d, %d" % (SN0, val))
    a("v_mov_b32 v%d, s61" % vt)
    a("v_mov_b32 v%d, s%d" % (vt+1, SN1))
    a("s_mov_b64 exec, 1")
    a("buffer_store_dwordx2 v[%d:%d], v%d, s[28:31], s%d offen sc1" % (vt, vt+1, vz, soff))
    a("s_mov_b64 exec, -1")

def flag_load(a, vd, vaddr, soff, wide=False, off=0):
    if wide: a("buffer_load_dwordx4 v[%d:%d], v%d, s[28:31], s%d offen offset:%d sc1" % (vd, vd+3, vaddr, soff, off))
    else:    a("buffer_load_dwordx2 v[%d:%d], v%d, s[28:31], s%d offen offset:%d sc1" % (vd, vd+1, vaddr, soff, off))

def poll(a, waitn, loads, need, vt, lab, alt=None):
    def check(shift):
        a("s_mov_b64 s[60:61], -1")
        for (vd, vaddr, soff, wide, off, mask) in loads:
            vd += shift
            for h in range(2 if wide else 1):
                a("v_subrev_u32 v%d, s59, v%d" % (vt, vd+2*h))
                a("v_cmp_gt_u32 vcc, %d, v%d" % (16-need, vt))
                a("v_cmp_eq_u32 s[62:63], s%d, v%d" % (SN1, vd+2*h+1))
                a("s_nop 1")
                a("s_and_b64 vcc, vcc, s[62:63]")
                if mask != (1 << 64) - 1:
                    a("s_mov_b32 s62, 0x%x" % (~mask & 0xffffffff))
                    a("s_mov_b32 s63, 0x%x" % ((~mask >> 32) & 0xffffffff))
                    a("s_or_b64 vcc, vcc, s[62:63]")
                a("s_and_b64 s[60:61], s[60:61], vcc")
        a("s_cmp_eq_u64 s[60:61], -1")
        a("s_cbranch_scc1 %s_ok" % lab)
    def issue(shift):
        for (vd, vaddr, soff, wide, off, mask) in loads: flag_load(a, vd+shift, vaddr, soff, wide, off)
    a("s_waitcnt vmcnt(%d)" % min(63, waitn))
    a("s_mov_b32 s58, 0")
    a("s_add_u32 s59, s%d, %d" % (SN0, need))
    if alt is None:
        a.label(lab + "_chk")
        check(0)
        a("s_add_u32 s58, s58, 1")
        a("s_cmp_gt_u32 s58, %d" % SPIN_MAX)
        a("s_cbranch_scc1 %s_ok" % lab)
        issue(0)
        a("s_waitcnt vmcnt(0)")
        a("s_branch %s_chk" % lab)
    else:
        sh = alt - loads[0][0]; n = len(loads)
        check(0)
        issue(0)
        a("s_sleep 4")
        issue(sh)
        a.label(lab + "_chk")
        a("s_waitcnt vmcnt(%d)" % n)
        check(0)
        issue(0)
        a("s_waitcnt vmcnt(%d)" % n)
        check(sh)
        issue(sh)
        a("s_add_u32 s58, s58, 1")
        a("s_cmp_gt_u32 s58, %d" % SPIN_MAX)
        a("s_cbranch_scc0 %s_chk" % lab)
    a.label(lab + "_ok")
FULL = (1 << 64) - 1

def kv_item(a, R, sfx):
    a("v_and_b32 v%d, 7, v0" % (R+1))
    a("v_lshlrev_b32 v%d, 3, v%d" % (R+1, R+1))
    a("v_add_u32 v%d, s44, v%d" % (R+1, R+1))
    a("v_mul_u32_u24 v%d, 1152, v%d" % (R+3, R+1))
    a("v_lshlrev_b32 v%d, 2, v%d" % (R+4, R+2))
    a("v_add3_u32 v%d, v%d, v%d, s45" % (R+3, R+3, R+4))
    a("v_add_u32 v%d, 4608, v%d" % (R+4, R+3))
    a("v_subrev_u32 v%d, 4608, v%d" % (R+5, R+3))
    a("v_cmp_eq_u32 vcc, 0, v%d" % (R+1))
    a("v_mov_b32 v%d, 0x80000000" % (R+6))
    a("s_nop 1")
    a("v_cndmask_b32 v%d, v%d, v%d, vcc" % (R+5, R+5, R+6))
    L = R + 8
    a("s_waitcnt lgkmcnt(0)")
    for i in range(4): a("buffer_load_dword v%d, v%d, s[8:11], 0 offen offset:%d nt" % (L+i, R+5, i*1152))
    for i in range(4): a("buffer_load_dword v%d, v%d, s[8:11], 0 offen offset:%d nt" % (L+4+i, R+3, i*1152))
    for i in range(4): a("buffer_load_dword v%d, v%d, s[8:11], 0 offen offset:%d nt" % (L+8+i, R+4, i*1152))
    a("buffer_load_dword v%d, v%d, s[12:15], 0 offen offset:3456 nt" % (L+12, R+5))
    for i in range(4): a("buffer_load_dword v%d, v%d, s[12:15], 0 offen offset:%d nt" % (L+13+i, R+3, i*1152))
    for i in range(4): a("buffer_load_dword v%d, v%d, s[12:15], 0 offen offset:%d nt" % (L+17+i, R+4, i*1152))
    a("s_mov_b32 s26, 4608\n s_mov_b32 s27, 0x20000\n s_mul_i32 s46, s38, 576\n s_mul_i32 s47, s38, 589824")
    a("v_lshlrev_b32 v%d, 4, v%d" % (R+6, R+2))
    a("buffer_load_dwordx4 v[%d:%d], v%d, s[24:27], s46 offen" % (R+32, R+35, R+6))
    a("v_lshlrev_b32 v%d, 14, v%d" % (R+6, R+2))
    a("v_lshlrev_b32 v%d, 1, v%d" % (R+7, R+1))
    a("v_sub_u32 v%d, 4080, v%d" % (R+7, R+7))
    a("v_add3_u32 v%d, v%d, v%d, s47" % (R+6, R+6, R+7))
    a("v_add_u32 v%d, 8192, v%d" % (R+7, R+6))

def kv_item2(a, R):
    a("v_and_b32 v%d, 15, v2" % (R+1))
    a("v_lshlrev_b32 v%d, 2, v%d" % (R+1, R+1))
    a("v_add_u32 v%d, s44, v%d" % (R+1, R+1))
    a("v_lshrrev_b32 v%d, 4, v2" % (R+2))
    a("v_add_u32 v%d, 32, v%d" % (R+2, R+2))
    a("v_mul_u32_u24 v%d, 1152, v%d" % (R+3, R+1))
    a("v_lshlrev_b32 v%d, 2, v%d" % (R+4, R+2))
    a("v_add3_u32 v%d, v%d, v%d, s45" % (R+3, R+3, R+4))
    a("v_subrev_u32 v%d, 4608, v%d" % (R+5, R+3))
    a("v_cmp_eq_u32 vcc, 0, v%d" % (R+1))
    a("v_mov_b32 v%d, 0x80000000" % (R+6))
    a("s_nop 1")
    a("v_cndmask_b32 v%d, v%d, v%d, vcc" % (R+5, R+5, R+6))
    a("v_lshlrev_b32 v%d, 4, v%d" % (R+6, R+2))
    L = R + 8
    for i in range(4): a("buffer_load_dword v%d, v%d, s[8:11], 0 offen offset:%d nt" % (L+i, R+5, i*1152))
    for i in range(4): a("buffer_load_dword v%d, v%d, s[8:11], 0 offen offset:%d nt" % (L+4+i, R+3, i*1152))
    a("buffer_load_dword v%d, v%d, s[12:15], 0 offen offset:3456 nt" % (L+12, R+5))
    for i in range(4): a("buffer_load_dword v%d, v%d, s[12:15], 0 offen offset:%d nt" % (L+13+i, R+3, i*1152))
    a("buffer_load_dwordx4 v[%d:%d], v%d, s[24:27], s46 offen" % (R+32, R+35, R+6))
    a("v_lshlrev_b32 v%d, 14, v%d" % (R+6, R+2))
    a("v_lshlrev_b32 v%d, 1, v%d" % (R+7, R+1))
    a("v_sub_u32 v%d, 4088, v%d" % (R+7, R+7))
    a("v_add3_u32 v%d, v%d, v%d, s47" % (R+6, R+6, R+7))
    a("v_add_u32 v%d, 8192, v%d" % (R+7, R+6))

def kv_compute(a, R, W, NR=8, skip=None):
    L = R + 8
    for j in range(4):
        for c in range(2):
            src = R + 32 + 2*c + (j >> 1)
            if j & 1: a("v_and_b32 v%d, s43, v%d" % (W+2*j+c, src))
            else:     a("v_lshlrev_b32 v%d, 16, v%d" % (W+2*j+c, src))
    K = W + 8; V = W + 32; U = W + 50; P0 = W + 68; T = W + 76
    for i in range(NR+4):
        a("v_lshlrev_b32 v%d, 16, v%d" % (K+2*i, L+i)); a("v_and_b32 v%d, s43, v%d" % (K+2*i+1, L+i))
    for e in range(NR+1):
        a("v_lshlrev_b32 v%d, 16, v%d" % (V+2*e, L+12+e)); a("v_and_b32 v%d, s43, v%d" % (V+2*e+1, L+12+e))
    G = 3 if NR == 8 else 5
    for e0 in range(0, NR+1, G):
        chains = []
        for e in range(e0, min(NR+1, e0+G)):
            c_ = Chain(); chains.append(c_)
            Pb = P0 + 12*(e - e0); Tb = Pb + 8
            P = [Pb, Pb+2, Pb+4, Pb+6]
            for q in range(4):
                j = 3 - q
                c_("v_pk_mul_f32 v[%d:%d], v[%d:%d], v[%d:%d]" % (P[q], P[q]+1, K+2*(e+q), K+1+2*(e+q), W+2*j, W+1+2*j))
            for q in range(4): c_("v_cvt_pk_bf16_f32 v%d, v%d, v%d" % (Tb+q, P[q], P[q]+1))
            for q in range(4):
                c_("v_lshlrev_b32 v%d, 16, v%d" % (P[q], Tb+q)); c_("v_and_b32 v%d, s43, v%d" % (P[q]+1, Tb+q))
            for q in range(1, 4):
                c_("v_pk_add_f32 v[%d:%d], v[%d:%d], v[%d:%d]" % (Pb, Pb+1, Pb, Pb+1, P[q], P[q]+1)); rnd_pair(c_, Pb, Tb)
            c_("v_pk_mul_f32 v[%d:%d], v[%d:%d], v[%d:%d]" % (U+2*e, U+1+2*e, Pb, Pb+1, V+2*e, V+1+2*e))
        interleave(a, chains)
    nd = NR // 2
    for c in range(2):
        for cp in range(2):
            base = L + (c*2+cp)*4
            for q in range(nd):
                hi_e = (NR if cp else NR-1) - 2*q
                a("v_cvt_pk_bf16_f32 v%d, v%d, v%d" % (base+q, U+2*hi_e+c, U+2*(hi_e-1)+c))
    if skip: a("s_cbranch_execz %s" % skip)
    for c in range(2):
        for cp in range(2):
            base = L + (c*2+cp)*4
            a("s_mov_b32 s48, %d" % (UG + cp*4096))
            if NR == 8: a("buffer_store_dwordx4 v[%d:%d], v%d, s[28:31], s48 offen sc1" % (base, base+3, R+6 if c == 0 else R+7))
            else:       a("buffer_store_dword v%d, v%d, s[28:31], s48 offen sc1" % (base, R+6 if c == 0 else R+7))

def ln_consts(a, rs):
    a("""
    v_and_b32 v9, 7, v2              ; r
    v_lshrrev_b32 v10, 3, v2         ; l>>3
    v_mul_u32_u24 v13, 1152, v9
    v_lshl_add_u32 v13, v10, 4, v13  ; x voffset
    v_lshlrev_b32 v12, 3, v9
    v_add_u32 v12, %d, v12
    s_lshl_b32 s47, s39, 6
    v_add_u32 v11, s47, v12
    s_mul_i32 s46, s37, 1152
    s_mul_i32 s47, s39, 384
    s_add_u32 s46, s46, s47          ; x soffset
    """ % rs)

def gen_one(dbg=False, sdbg=False, LMAX=12, LB=6, FLAGD=(36, 26), CHKD=25,
            POLLS=((215, 3, 0, 9), (280, 5, 9, 15), (345, 7, 15, 21), (415, 9, 21, 27)), DSP=4, VPS=2, SSP=10, PSP=5, P3D=16, P3C=(610, 636), verbose=False, XN0=5, XSP=2, TAIL='flag', EDF=(9, (0, 2, 4, 6)), MD=36, ML=36, NPRE=3, ZDIR=False, DRY=False, SIL=True, qst=None, bst=None):
    a = Asm()
    check_magic(1821, 16, 36, 2304); check_magic(7282, 16, 9, 288)
    a("s_cmp_ge_u32 s2, 256")
    a("s_cbranch_scc1 L_end")
    KT, VT = 131072, 141312
    check_magic(898, 16, 73, 640); check_magic(7282, 16, 9, 73)
    a("""
    s_load_dwordx2 s[8:9], s[0:1], 8
    s_load_dwordx2 s[12:13], s[0:1], 16
    s_load_dwordx2 s[24:25], s[0:1], 24
    s_getpc_b64 s[60:61]
    L_pc:
    s_lshr_b32 s33, s2, 3            ; rb / i
    s_lshl_b32 s62, s33, 5
    v_lshrrev_b32 v18, 3, v0         ; pair
    v_add_u32 v1, s62, v18
    v_min_u32 v1, NCODELINES, v1
    v_lshlrev_b32 v1, 7, v1
    global_load_dword v229, v1, s[60:61]
    v_lshrrev_b32 v1, 6, v0
    v_and_b32 v2, 63, v0
    v_readfirstlane_b32 s39, v1
    s_mov_b32 s10, 2359296
    s_mov_b32 s11, 0x20000
    s_mov_b32 s14, 2359296
    s_mov_b32 s15, 0x20000
    s_and_b32 s38, s2, 7             ; cg
    s_lshl_b32 s44, s33, 6
    s_mul_i32 s45, s38, 144
    s_lshr_b32 s46, s39, 1           ; 0: K tile, 1: V tile
    s_and_b32 s47, s39, 1
    s_mul_i32 s48, s47, 320          ; first chunk of this wave
    s_sub_u32 s49, s44, 4            ; first row (may be -4)
    s_mul_i32 s50, s39, 5120
    s_add_u32 s50, s50, %d
    v_mov_b32 v9, 0x80000000
    """ % KT)
    if dbg: a("s_memrealtime s[62:63]")
    for t in range(5):
        a("v_add_u32 v4, s48, v2")
        if t: a("v_add_u32 v4, %d, v4" % (64*t))
        a("v_mul_u32_u24 v5, 898, v4")
        a("v_lshrrev_b32 v5, 16, v5")
        a("v_mul_u32_u24 v6, 73, v5")
        a("v_sub_u32 v6, v4, v6")
        a("v_mul_u32_u24 v7, 7282, v6")
        a("v_lshrrev_b32 v7, 16, v7")
        a("v_mul_u32_u24 v8, 9, v7")
        a("v_sub_u32 v8, v6, v8")
        a("v_lshl_add_u32 v5, v5, 3, v7")
        a("v_add_u32 v5, s49, v5")
        a("v_cmp_gt_i32 vcc, 0, v5")
        a("v_mul_u32_u24 v5, 1152, v5")
        a("v_lshl_add_u32 v%d, v8, 4, v5" % (10+t))
        a("v_cndmask_b32 v%d, v%d, v9, vcc" % (10+t, 10+t))
    a("s_waitcnt lgkmcnt(0)")
    a("s_cmp_eq_u32 s46, 0")
    a("s_cselect_b32 s16, s8, s12")
    a("s_cselect_b32 s17, s9, s13")
    a("s_mov_b32 s18, 2359296")
    a("s_mov_b32 s19, 0x20000")
    for t in range(5):
        a("s_add_u32 m0, s50, %d" % (1024*t))
        a("s_nop 0")
        a("buffer_load_dwordx4 v%d, s[16:19], s45 offen lds" % (10+t))
    a("""
    s_mov_b32 s26, 4608
    s_mov_b32 s27, 0x20000
    s_mul_i32 s46, s38, 576
    s_mul_i32 s47, s38, 589824
    v_lshlrev_b32 v22, 4, v18
    buffer_load_dwordx4 v[48:51], v22, s[24:27], s46 offen
    s_lshl_b32 s48, s39, 4
    s_add_u32 s48, s48, s46
    v_mov_b32 v22, 512
    buffer_load_dwordx4 v[84:87], v22, s[24:27], s48 offen
    s_load_dwordx16 s[64:79], s[0:1], 0
    s_load_dwordx8 s[80:87], s[0:1], 64
    s_memrealtime s[90:91]
    v_lshlrev_b32 v3, 4, v2
    s_mov_b32 s43, 0xffff0000
    v_and_b32 v17, 7, v0             ; rg
    v_mul_u32_u24 v19, 1168, v17
    v_lshl_add_u32 v19, v18, 2, v19
    v_add_u32 v19, %d, v19           ; LDS read addr (item a)
    v_lshlrev_b32 v17, 3, v17
    v_add_u32 v17, s44, v17          ; s0
    v_lshlrev_b32 v22, 14, v18
    v_lshlrev_b32 v23, 1, v17
    v_sub_u32 v23, 4080, v23
    v_add3_u32 v22, v22, v23, s47
    v_add_u32 v23, 8192, v22
    v_lshlrev_b32 v53, 1, v2         ; item b: local row' base 2*lane
    s_lshl_b32 s48, s39, 2
    s_add_u32 s48, s48, %d
    """ % (KT, KT + 128))
    for k_ in range(3):
        a("v_add_u32 v54, %d, v53" % (2*k_))
        a("v_lshrrev_b32 v58, 3, v54")
        a("v_mul_u32_u24 v54, 144, v54")
        a("v_lshl_add_u32 v54, v58, 4, v54")
        a("v_add_u32 v%d, s48, v54" % (55+k_))
    a("""
    v_add_u32 v53, s44, v53
    s_add_u32 s48, s39, 32
    s_lshl_b32 s48, s48, 14
    s_add_u32 s48, s48, s47
    v_lshlrev_b32 v59, 1, v53
    v_sub_u32 v59, 4092, v59
    v_add_u32 v58, s48, v59
    v_add_u32 v59, 8192, v58
    """)
    a("s_waitcnt lgkmcnt(0)")
    srd(a, 16, 64, 2359296); srd(a, 20, 82, 2359296); srd(a, 28, 86, WS_SIZE); srd(a, 4, 84, 256)
    a("s_mov_b32 s92, s78\n s_mov_b32 s93, s79\n s_mov_b32 s94, s80\n s_mov_b32 s95, s81\n s_mov_b32 s96, s72\n s_mov_b32 s97, s73\n s_mov_b32 s98, s74\n s_mov_b32 s99, s75")
    if dbg: a("s_mov_b32 s64, s62")
    a("""
    s_or_b32 s62, s2, s39
    s_cmp_lg_u32 s62, 0
    s_cbranch_scc1 L_nonce_skip
    s_and_b32 s62, s90, 0xfffffff0
    s_or_b32 s62, s62, 0x80000000
    v_mov_b32 v4, s62
    v_mov_b32 v5, 0
    s_mov_b64 exec, 1
    buffer_store_dword v4, v5, s[4:7], 0 offen sc1
    s_mov_b64 exec, -1
    L_nonce_skip:
    """)
    a("""
    s_and_b32 s32, s2, 3             ; s
    s_and_b32 s34, s33, 3            ; n
    s_lshr_b32 s35, s33, 2
    s_bfe_u32 s36, s2, 0x10002
    s_lshl_b32 s36, s36, 3
    s_add_u32 s35, s35, s36          ; m
    s_lshl_b32 s36, s32, 2
    s_add_u32 s36, s36, s34          ; j
    s_lshl_b32 s37, s35, 7
    s_lshl_b32 s40, s36, 3
    s_add_u32 s37, s37, s40          ; R0
    s_mul_i32 s40, s39, 9216
    s_mul_i32 s41, s36, %d
    s_add_u32 s41, s41, s40
    s_add_u32 s41, s41, %d
    s_add_u32 s42, s41, %d
    v_mov_b32 v5, 0
    buffer_load_dword v4, v5, s[4:7], 0 offen sc1
    """ % (SLICE, W1P, W2P - W1P))
    fstamp(a, 1)
    a("s_waitcnt vmcnt(1)")
    a("s_barrier")
    fstamp(a, 2)
    def koff(i): return i*144 + (16 if i >= 8 else 0)
    for i in range(0, 12, 2): a("ds_read2_b32 v[%d:%d], v19 offset0:%d offset1:%d" % (24+i, 25+i, koff(i)//4 if koff(i)//4 < 256 else 0, 0) if False else
                               ("ds_read_b32 v%d, v19 offset:%d\n ds_read_b32 v%d, v19 offset:%d" % (24+i, koff(i), 25+i, koff(i+1))))
    for e in range(9): a("ds_read_b32 v%d, v19 offset:%d" % (36+e, VT - KT + koff(3+e)))
    for i in range(6): a("ds_read_b32 v%d, v%d offset:%d" % (60+i, 55 + i//2, (i & 1)*144))
    for e, (r, o) in enumerate([(56, 144), (57, 0), (57, 144)]): a("ds_read_b32 v%d, v%d offset:%d" % (72+e, r, VT - KT + o))
    a("s_waitcnt lgkmcnt(9)")
    kv_compute(a, 16, 100)
    fstamp(a, 3)
    a("s_waitcnt lgkmcnt(0)")
    a("s_mov_b32 exec_hi, 0")
    kv_compute(a, 52, 100, 2)
    a("s_mov_b32 exec_hi, -1")
    a.label("L_kvd")
    stamp(a, dbg, 1)
    ln_consts(a, 112640)
    a("s_cmp_ge_u32 s33, 24")
    a("s_cbranch_scc1 L_sec_pack")
    def x_loads():
        a("s_min_u32 s47, s39, 2")
        a("s_mul_i32 s47, s47, 384")
        a("s_mul_i32 s46, s37, 1152")
        a("s_add_u32 s46, s46, s47")
        for it in range(3):
            a("buffer_load_dwordx4 v[%d:%d], v13, s[16:19], s46 offen offset:%d" % (XQ+4*it, XQ+3+4*it, it*128))
    x_loads()
    srd(a, 24, 96, 2359296)
    a("s_mul_i32 s48, s38, 72\n s_mul_i32 s49, s33, 3\n s_add_u32 s48, s48, s49          ; d0")
    a("s_mul_i32 s49, s39, %d" % KC_STRIDE)
    a("s_lshl_b32 s50, s39, 2")
    for ch in range(3):
        a("s_add_u32 s51, s48, %d" % ch)
        a("s_lshl_b32 s51, s51, 12")
        a("s_add_u32 s51, s51, s50")
        a("s_add_u32 s51, s51, 4")
        a("s_add_u32 m0, s49, %d" % (ch*CH_BYTES + 64))
        a("s_nop 0")
        for q in range(4): a("buffer_load_dwordx4 v3, s[24:27], s51 offen offset:%d lds" % (q*1024))
    a("""
    s_min_u32 s49, s39, 2
    v_lshrrev_b32 v4+100, 4, v2
    """.replace("v4+100", "v104").strip().split("\n")[0])
    a("""
    v_lshrrev_b32 v104, 4, v2        ; a
    v_and_b32 v105, 15, v2           ; dw
    v_add_u32 v106, v104, v105
    v_subrev_u32 v106, 15, v106
    v_lshlrev_b32 v107, 2, v106
    v_cmp_gt_i32 vcc, 0, v106
    v_mov_b32 v108, 0x80000000
    s_nop 1
    v_cndmask_b32 v107, v107, v108, vcc
    s_add_u32 s51, s48, s49
    s_lshl_b32 s51, s51, 12
    buffer_load_dword v109, v107, s[24:27], s51 offen
    s_mul_i32 s49, s49, %d
    v_mul_u32_u24 v104, %d, v104
    v_lshl_add_u32 v104, v105, 2, v104
    v_add_u32 v104, s49, v104
    v_mov_b32 v110, 0
    v_mov_b32 v111, 0
    v_lshlrev_b32 v112, 3, v2
    v_add_u32 v112, s49, v112
    v_cmp_gt_u32 vcc, 56, v2
    s_and_saveexec_b64 s[50:51], vcc
    ds_write_b64 v112, v[110:111] offset:%d
    ds_write_b64 v112, v[110:111] offset:%d
    s_mov_b64 exec, s[50:51]
    s_waitcnt vmcnt(16)
    s_branch L_sec_done
    """ % (CH_BYTES, KC_STRIDE, 4*KC_STRIDE + 4096, 4*KC_STRIDE + UC_STRIDE + 4096))
    a.label("L_sec_pack")
    x_loads()
    a("s_waitcnt vmcnt(3)")
    a.label("L_sec_done")
    a("s_mov_b32 s58, 0")
    a.label("L_nonce_chk")
    a("""
    v_readfirstlane_b32 s%d, v4
    s_nop 3
    s_cmp_lg_u32 s%d, 0
    s_cbranch_scc1 L_nonce_ok
    s_add_u32 s58, s58, 1
    s_cmp_gt_u32 s58, %d
    s_cbranch_scc1 L_nonce_ok
    s_sleep 1
    buffer_load_dword v4, v5, s[4:7], 0 offen sc1
    s_waitcnt vmcnt(0)
    s_branch L_nonce_chk
    L_nonce_ok:
    s_xor_b32 s%d, s%d, 0x5bd1e995
    s_lshl_b32 s48, s38, 5
    s_add_u32 s48, s48, s33
    s_lshl_b32 s48, s48, 2
    s_add_u32 s48, s48, s39
    s_lshl_b32 s48, s48, 3
    s_add_u32 s48, s48, %d
    """ % (SN0, SN0, SPIN_MAX, SN1, SN0, FA))
    flag_store(a, 1, 48, 5, 6)
    stamp(a, dbg, 2)
    a("""
    s_lshl_b32 s48, s35, 2
    s_add_u32 s48, s48, s32
    s_lshl_b32 s48, s48, 2
    s_add_u32 s48, s48, s39
    s_lshl_b32 s48, s48, 7
    s_add_u32 s48, s48, %d
    buffer_load_dword v230, v5, s[28:31], s48 offen sc1
    s_lshl_b32 s48, s35, 2
    s_add_u32 s48, s48, s34
    s_lshl_b32 s48, s48, 2
    s_add_u32 s48, s48, s39
    s_lshl_b32 s48, s48, 7
    s_add_u32 s48, s48, %d
    buffer_load_dword v230, v5, s[28:31], s48 offen sc1
    s_lshl_b32 s48, s35, 2
    s_add_u32 s48, s48, s39
    s_lshl_b32 s48, s48, 7
    s_add_u32 s48, s48, %d
    buffer_load_dword v230, v5, s[28:31], s48 offen sc1
    s_lshl_b32 s48, s38, 11
    s_and_b32 s49, s33, 15
    s_lshl_b32 s49, s49, 7
    s_add_u32 s48, s48, s49
    s_add_u32 s48, s48, %d
    buffer_load_dword v230, v5, s[28:31], s48 offen sc1
    """ % (F2, F3, F1, FZ))
    a("s_cmp_ge_u32 s33, 24")
    a("s_cbranch_scc1 L_pack")

    def q_precompute(waitn, w3=True):
        l3 = a.newlabel("L_q3"); ld = a.newlabel("L_qd")
        if w3:
            a("s_cmp_eq_u32 s39, 3")
            a("s_cbranch_scc1 %s" % l3)
        a("s_waitcnt vmcnt(%d)" % waitn)
        X = 120; T = 150
        for i in range(12):
            a("v_lshlrev_b32 v%d, 16, v%d" % (X+2*i, XQ+i)); a("v_and_b32 v%d, s43, v%d" % (X+2*i+1, XQ+i))
        ln_stats(a, X, T, 0)
        for i0 in range(0, 12, 4):
            chains = []
            for i in range(i0, i0+4):
                c_ = Chain(); chains.append(c_); d = 170 + 4*(i - i0)
                c_("v_pk_add_f32 v[%d:%d], v[%d:%d], v[%d:%d]" % (d, d+1, X+2*i, X+2*i+1, T, T+1)); rnd_pair(c_, d, d+2)
                c_("v_pk_mul_f32 v[%d:%d], v[%d:%d], v[%d:%d]" % (d, d+1, d, d+1, T+2, T+3))
                c_("v_cvt_pk_bf16_f32 v%d, v%d, v%d" % (XQ+12+i, d, d+1))
            interleave(a, chains)
        if w3:
            a("s_branch %s" % ld)
            a.label(l3); a("s_barrier"); a.label(ld)

    def pack_setup(nper):
        a("""
        s_movk_i32 s44, 1821
        s_movk_i32 s45, 9216
        s_mul_i32 s49, s39, %d
        s_mul_i32 s57, s39, %d
        """ % (64*nper, 1024*nper))
        for i in range(nper):
            a("v_add_u32 v196, s49, v2")
            if i: a("v_add_u32 v196, %d, v196" % (64*i))
            a("v_mul_lo_u32 v197, v196, s44")
            a("v_lshrrev_b32 v197, 16, v197")
            a("v_mul_u32_u24 v198, 36, v197")
            a("v_sub_u32 v198, v196, v198")
            a("v_mul_lo_u32 v197, v197, s45")
            a("v_lshl_add_u32 v%d, v198, 4, v197" % (176+i))
        srd(a, 8, 92, 5308416); srd(a, 12, 94, 5308416)
    def pack_setup2():
        a("""
        v_lshrrev_b32 v192, 4, v2
        v_bfe_u32 v193, v2, 2, 2
        v_lshl_add_u32 v194, v192, 3, v193
        v_mul_u32_u24 v194, 576, v194
        v_and_b32 v195, 3, v2
        v_lshl_add_u32 v194, v195, 3, v194
        s_lshr_b32 s46, s39, 1
        s_and_b32 s47, s39, 1
        s_mul_i32 s50, s46, 18432
        s_mul_i32 s51, s47, 288
        s_add_u32 s50, s50, s51
        v_add_u32 v189, s50, v194
        v_lshl_add_u32 v194, v192, 2, v193
        v_mul_u32_u24 v194, 1152, v194
        v_lshl_add_u32 v194, v195, 3, v194
        v_mov_b32 v190, v194
        """)
    def conv_strip(f1, f2):
        l2 = a.newlabel("L_cs"); ld = a.newlabel("L_csd")
        a("s_cmp_ge_u32 s2, 144"); a("s_cbranch_scc1 %s" % l2)
        a("s_mov_b32 s52, s2"); f1(SBUF); a("s_branch %s" % ld)
        a.label(l2); a("s_sub_u32 s52, s2, 144"); f2(SBUF)
        a.label(ld)
    def issue_w1(slot, nper=12):
        a("s_mul_i32 s53, s52, 7282\n s_lshr_b32 s53, s53, 16\n s_mul_i32 s54, s53, 9\n s_sub_u32 s54, s52, s54")
        a("s_mul_i32 s54, s54, 589824\n s_mul_i32 s53, s53, 576\n s_add_u32 s54, s54, s53")
        for i in range(nper):
            a("s_add_u32 m0, s57, %d" % (slot + 1024*i))
            a("s_nop 0")
            a("buffer_load_dwordx4 v%d, s[8:11], s54 offen nt lds" % (176+i))
    def issue_w2(slot, nper=12):
        a("s_mul_i32 s54, s52, 36864\n s_add_u32 s54, s54, s57")
        for i in range(nper):
            if i % 4 == 0:
                a("s_add_u32 m0, s57, %d" % (slot + 1024*i))
                a("s_add_u32 s53, s54, %d" % (1024*i))
            a("buffer_load_dwordx4 v3, s[12:15], s53 offen offset:%d nt lds" % ((i % 4)*1024))
    def proc_w1(slot, D):
        a("v_add_u32 v191, %d, v189" % (slot))
        for i in range(9):
            a("ds_read_b64_tr_b16 v[%d:%d], v191 offset:%d" % (D+4*i, D+1+4*i, 32*i))
            a("ds_read_b64_tr_b16 v[%d:%d], v191 offset:%d" % (D+2+4*i, D+3+4*i, 32*i + 4*576))
        a("s_mul_i32 s53, s52, 7282\n s_lshr_b32 s53, s53, 16\n s_mul_i32 s54, s53, 9\n s_sub_u32 s54, s52, s54")
        a("s_mul_i32 s50, s53, %d\n s_add_u32 s50, s50, %d" % (SLICE, W1P))
        a("s_lshl_b32 s51, s54, 1\n s_add_u32 s51, s51, s46")
        a("s_lshl_b32 s53, s53, 9\n s_lshl_b32 s54, s54, 5\n s_add_u32 s49, s53, s54\n s_lshl_b32 s54, s39, 3\n s_add_u32 s49, s49, s54\n s_add_u32 s49, s49, %d" % FP1)
        for i in range(9):
            a("s_mul_i32 s53, s47, 9\n s_add_u32 s53, s53, %d" % i)
            a("s_mul_i32 s54, s51, 6\n s_add_u32 s54, s54, s53\n s_lshl_b32 s54, s54, 10")
            a("s_lshr_b32 s55, s53, 1\n s_mul_i32 s55, s55, 36\n s_lshl_b32 s56, s51, 1\n s_add_u32 s55, s55, s56")
            a("s_and_b32 s56, s53, 1\n s_add_u32 s55, s55, s56\n s_lshl_b32 s55, s55, 10")
            a("s_cmp_lt_u32 s53, 6\n s_cselect_b32 s55, s54, s55\n s_add_u32 s55, s55, s50")
            a("s_waitcnt lgkmcnt(%d)" % min(14, 16 - 2*i))
            a("buffer_store_dwordx4 v[%d:%d], v3, s[28:31], s55 offen sc1" % (D+4*i, D+3+4*i))
    def proc_w2(slot, vw, D):
        a("v_add_u32 v191, %d, v190" % (slot + 288*vw))
        for i in range(9):
            a("ds_read_b64_tr_b16 v[%d:%d], v191 offset:%d" % (D+4*i, D+1+4*i, 32*i))
            a("ds_read_b64_tr_b16 v[%d:%d], v191 offset:%d" % (D+2+4*i, D+3+4*i, 32*i + 16*1152))
        a("""
        s_mul_i32 s53, s52, 1821
        s_lshr_b32 s53, s53, 16          ; s
        s_mul_i32 s54, s53, 36
        s_sub_u32 s54, s52, s54          ; kk%%36
        s_lshl_b32 s60, s53, 2
        s_add_u32 s60, s60, VW
        s_lshl_b32 s49, s60, 9
        s_lshl_b32 s55, s54, 3
        s_add_u32 s49, s49, s55
        s_add_u32 s49, s49, %d           ; flag addr
        s_mul_i32 s55, s54, 7282
        s_lshr_b32 s55, s55, 16          ; nb
        s_mul_i32 s56, s55, 9
        s_sub_u32 s56, s54, s56          ; k9
        s_sub_u32 s50, s55, VW
        s_sub_u32 s50, s50, 1
        s_and_b32 s50, s50, 3            ; pr
        s_mul_i32 s51, s56, 3
        s_add_u32 s51, s51, s50
        s_add_u32 s53, s51, 27
        s_add_u32 s54, s51, 45
        s_add_u32 s57, s51, 45
        s_add_u32 s61, s51, 54
        s_cmp_ge_u32 s56, 6
        s_cselect_b32 s53, s57, s53
        s_cselect_b32 s54, s61, s54
        s_add_u32 s55, s51, 81
        s_add_u32 s57, s56, 9
        s_add_u32 s61, s56, 18
        s_cmp_eq_u32 s50, 3
        s_cselect_b32 s53, s56, s53
        s_cselect_b32 s54, s57, s54
        s_cselect_b32 s55, s61, s55
        s_mul_i32 s60, s60, %d
        s_add_u32 s60, s60, %d
        s_mul_i32 s53, s53, 3072
        s_mul_i32 s54, s54, 3072
        s_mul_i32 s55, s55, 3072
        s_add_u32 s53, s53, s60
        s_add_u32 s54, s54, s60
        s_add_u32 s55, s55, s60
        """.replace("VW", str(vw)) % (FP2, SLICE, W2P))
        for i in range(9):
            a("s_waitcnt lgkmcnt(%d)" % min(14, 16 - 2*i))
            a("buffer_store_dwordx4 v[%d:%d], v3, s[28:31], s%d offen offset:%d sc1" % (D+4*i, D+3+4*i, 53 + i//3, (i%3)*1024))
    srd(a, 4, 98, 1152)
    a("""
    s_mul_i32 s48, s38, 72
    s_mul_i32 s49, s33, 3
    s_add_u32 s48, s48, s49          ; d0
    s_lshl_b32 s49, s48, 1
    buffer_load_ushort v24, v5, s[4:7], s49 offen
    buffer_load_ushort v25, v5, s[4:7], s49 offen offset:2
    buffer_load_ushort v26, v5, s[4:7], s49 offen offset:4
    s_cmp_eq_u32 s39, 3
    s_cbranch_scc1 L_cw3
    """)
    q_precompute(21, False)
    a("s_waitcnt vmcnt(0)")
    a("ds_write_b32 v104, v109")
    a("s_branch L_cwd")
    a.label("L_cw3")
    a("s_barrier")
    a("""
    s_lshl_b32 s49, s38, 10
    s_add_u32 s49, s49, %d
    """ % FA)
    flag_load(a, 224, 3, 49, True)
    poll(a, 0, [(224, 3, 49, True, 0, FULL)], 1, 20, "L_pfa", alt=16)
    stamp(a, dbg, 3)
    for ch in range(3):
        for cp in range(2):
            a("s_add_u32 s52, s48, %d" % ch)
            a("s_lshl_b32 s52, s52, 13")
            a("s_add_u32 s52, s52, %d" % (UG + cp*4096))
            a("s_mov_b32 m0, %d" % (4*KC_STRIDE + ch*CH_BYTES + cp*UC_STRIDE))
            a("s_nop 0")
            for q in range(4): a("buffer_load_dwordx4 v3, s[28:31], s52 offen offset:%d sc1 lds" % (q*1024))
    a("s_waitcnt vmcnt(0)")
    a.label("L_cwd")
    a("""
    v_and_b32 v4, 15, v2
    v_lshrrev_b32 v5, 4, v2
    v_and_b32 v6, 3, v4
    v_lshrrev_b32 v7, 2, v4
    v_sub_u32 v7, v7, v5
    v_lshlrev_b32 v7, 4, v7
    v_add_u32 v7, 48, v7
    v_mul_u32_u24 v6, %d, v6
    v_add_u32 v20, v6, v7
    v_and_b32 v6, 1, v4
    v_lshrrev_b32 v7, 1, v4
    v_lshlrev_b32 v7, 6, v7
    v_lshl_add_u32 v7, v5, 4, v7
    v_sub_u32 v7, %d, v7
    v_mul_u32_u24 v6, %d, v6
    v_add_u32 v21, v6, v7
    """ % (KC_STRIDE, 496 + 4*KC_STRIDE, UC_STRIDE))
    a("s_waitcnt lgkmcnt(0)")
    a("s_barrier")
    stamp(a, dbg, 4)
    a("s_mov_b32 s8, s92\n s_mov_b32 s9, s93\n s_mov_b32 s10, 5308416\n s_mov_b32 s11, 0x20000")
    a("s_mov_b32 s12, s94\n s_mov_b32 s13, s95\n s_mov_b32 s14, 5308416\n s_mov_b32 s15, 0x20000")
    if SIL:
        a("s_mul_i32 s57, s39, 12288")
        a("s_mul_i32 s54, s2, 36864")
        a("s_add_u32 s54, s54, s57")
    else:
        a("s_cmp_eq_u32 s39, 3")
        a("s_cbranch_scc1 L_nostrip")
        a("s_cmp_ge_u32 s2, 144")
        a("s_cbranch_scc1 L_nostrip")
        a("s_mul_i32 s57, s39, 12288")
        a("s_mov_b32 s52, s2")
        issue_w2(SBUF, 12)
    a.label("L_nostrip")
    RED = 3*CH_BYTES
    units_of = {0: [(0,p) for p in range(6)], 1: [(0,6),(0,7)]+[(1,p) for p in range(4)],
                2: [(1,p) for p in range(4,8)]+[(2,0),(2,1)], 3: [(2,p) for p in range(2,8)]}
    setid = {0: {0:0}, 1: {0:1, 1:2}, 2: {1:3, 2:4}, 3: {2:5}}
    for w in range(4):
        if w: a.label("L_mm%d" % w)
        if w < 3:
            a("s_cmp_lg_u32 s39, %d" % w)
            a("s_cbranch_scc1 L_mm%d" % (w+1))
        units = units_of[w]
        chs = sorted(set(c for c,_ in units))
        accbase = {c: 160 + 32*i for i, c in enumerate(chs)}
        started = set()
        def reads(ui):
            ch, phi = units[ui]
            fb = 32 + 64*(ui & 1)
            out = []
            for n in range(8):
                out.append("ds_read_b128 v[%d:%d], v21 offset:%d" % (fb+32+4*n, fb+35+4*n, ch*CH_BYTES + 3584 - 512*n + 64*phi))
                out.append("ds_read_b128 v[%d:%d], v20 offset:%d" % (fb+4*n, fb+3+4*n, ch*CH_BYTES + 512*n + 64*phi))
            return out
        for l in reads(0): a(l)
        for ui, (ch, phi) in enumerate(units):
            fb = 32 + 64*(ui & 1)
            nxt = reads(ui+1) if ui+1 < len(units) else []
            k = 0
            for t in range(8):
                if ui == 0: a("s_waitcnt lgkmcnt(%d)" % min(15, 14 - 2*t + (16 - len(nxt) if nxt is not None else 0)))
                elif t == 0: a("s_waitcnt lgkmcnt(0)")
                for ap in range(t+1):
                    ac = accbase[ch] + 4*t
                    j = t - ap
                    c_ = "v[%d:%d]" % (ac, ac+3) if (ch, t) in started else "0"
                    started.add((ch, t))
                    a("v_mfma_f32_16x16x32_bf16 v[%d:%d], v[%d:%d], v[%d:%d], %s" % (ac, ac+3, fb+32+4*j, fb+35+4*j, fb+4*ap, fb+3+4*ap, c_))
                    k += 1
                    if k % 2 == 0 and nxt and (ui > 0 or t >= 4): a(nxt.pop(0))
                    if SIL and w < 3 and ui in (1, 2) and k % 6 == 3:
                        i_ = (ui-1)*6 + k//6
                        if i_ % 4 == 0:
                            a("s_add_u32 m0, s57, %d" % (SBUF + 1024*i_))
                            a("s_add_u32 s53, s54, %d" % (1024*i_))
                        a("buffer_load_dwordx4 v3, s[12:15], s53 offen offset:%d nt lds" % ((i_ % 4)*1024))
            while nxt: a(nxt.pop(0))
        a("s_nop 7\n s_nop 7")
        a("v_lshlrev_b32 v6, 8, v5\n v_lshl_add_u32 v6, v4, 3, v6")
        for c in chs:
            a("v_add_u32 v7, %d, v6" % (RED + setid[w][c]*8192))
            for t in range(8):
                ac = accbase[c] + 4*t
                a("ds_write_b64 v7, v[%d:%d] offset:%d" % (ac, ac+1, 1024*t))
                a("ds_write_b64 v7, v[%d:%d] offset:%d" % (ac+2, ac+3, 1024*t + 128))
        if w < 3: a("s_branch L_mmd")
    a.label("L_mmd")
    fstamp(a, 9)
    stamp(a, dbg, 5)
    a("""
    v_lshlrev_b32 v9, 5, v0
    v_lshlrev_b32 v10, 4, v0
    v_sub_u32 v11, %d, v10
    s_waitcnt lgkmcnt(0)
    s_barrier
    """ % (4080 + 4*KC_STRIDE))
    for c in range(3):
        b = 32 + 24*c
        a("v_add_u32 v12, %d, v9" % (RED + 2*c*8192))
        a("ds_read_b128 v[%d:%d], v12" % (b, b+3))
        a("ds_read_b128 v[%d:%d], v12 offset:16" % (b+4, b+7))
        a("ds_read_b128 v[%d:%d], v12 offset:8192" % (b+8, b+11))
        a("ds_read_b128 v[%d:%d], v12 offset:8208" % (b+12, b+15))
        a("ds_read_b128 v[%d:%d], v11 offset:%d" % (b+16, b+19, c*CH_BYTES + UC_STRIDE))
    fstamp(a, 10)
    for c in range(3): a("v_lshlrev_b32 v%d, 16, v%d" % (24+c, 24+c))
    for c in range(3):
        b = 32 + 24*c
        a("s_waitcnt lgkmcnt(%d)" % (10 - 5*c))
        chains = []
        for e in range(0, 8, 2):
            c_ = Chain(); chains.append(c_)
            t = 110 + 2*e + 0; o = 130 + 4*c + e//2; q = 3 - e//2
            c_("v_pk_add_f32 v[%d:%d], v[%d:%d], v[%d:%d]" % (b+e, b+e+1, b+e, b+e+1, b+8+e, b+9+e))
            c_("v_lshlrev_b32 v%d, 16, v%d" % (b+9+e, b+16+q))
            c_("v_and_b32 v%d, s43, v%d" % (b+8+e, b+16+q))
            rnd_pair(c_, b+e, t)
            c_("v_mul_f32 v%d, v%d, v%d" % (b+8+e, b+8+e, 24+c))
            c_("v_mul_f32 v%d, v%d, v%d" % (b+9+e, b+9+e, 24+c))
            rnd_pair(c_, b+8+e, t+1)
            c_("v_pk_add_f32 v[%d:%d], v[%d:%d], v[%d:%d]" % (b+e, b+e+1, b+e, b+e+1, b+8+e, b+9+e))
            c_("v_cvt_pk_bf16_f32 v%d, v%d, v%d" % (o, b+e, b+e+1))
        interleave(a, chains)
        b = 130 + 4*c - 16
        if ZDIR:
            a("s_add_u32 s49, s48, %d" % c)
            a("s_mul_i32 s49, s49, %d" % ZTS)
            a("s_add_u32 s49, s49, %d" % ZT)
            a("buffer_store_dwordx4 v[%d:%d], v10, s[28:31], s49 offen sc1" % (b+16, b+19))
        else:
            a("ds_write_b128 v10, v[%d:%d] offset:%d" % (b+16, b+19, c*CH_BYTES))
    if ZDIR:
        a("""
        s_waitcnt vmcnt(0)
        s_barrier
        s_cmp_lg_u32 s39, 3
        s_cbranch_scc1 L_fzs
        """)
    else:
        a("""
        s_waitcnt lgkmcnt(0)
        s_barrier
        s_cmp_lg_u32 s39, 3
        s_cbranch_scc1 L_fzs
        """)
        for c in range(3):
            for q in range(4): a("ds_read_b128 v[%d:%d], v3 offset:%d" % (32+16*c+4*q, 35+16*c+4*q, c*CH_BYTES + q*1024))
        for c in range(3):
            a("s_add_u32 s49, s48, %d" % c)
            a("s_mul_i32 s49, s49, %d" % ZTS)
            a("s_add_u32 s49, s49, %d" % ZT)
            for q in range(4):
                a("s_waitcnt lgkmcnt(%d)" % (11 - 4*c - q))
                a("buffer_store_dwordx4 v[%d:%d], v3, s[28:31], s49 offen offset:%d sc1" % (32+16*c+4*q, 35+16*c+4*q, q*1024))
    a("""
    s_mul_i32 s49, s38, 24
    s_add_u32 s49, s49, s33
    s_lshl_b32 s49, s49, 3
    s_add_u32 s49, s49, %d
    v_lshlrev_b32 v5, 11, v2
    s_add_u32 s61, s%d, 1
    v_mov_b32 v6, s61
    v_mov_b32 v7, s%d
    s_waitcnt vmcnt(0)
    s_mov_b64 exec, 0xff
    buffer_store_dwordx2 v[6:7], v5, s[28:31], s49 offen sc1
    s_mov_b64 exec, -1
    """ % (FZ, SN0, SN1))
    a.label("L_fzs")
    fstamp(a, 11)
    stamp(a, dbg, 6)
    a("s_waitcnt vmcnt(0)")
    a("s_barrier")
    a("s_branch L_join")

    a.label("L_pack")
    pack_setup(9); pack_setup2()
    a("s_sub_u32 s48, s2, 192")
    a("v_mov_b32 v5, 0")
    a("s_mov_b32 s52, s48"); issue_w1(0, 9)
    a("s_add_u32 s52, s48, 64"); issue_w1(36864, 9)
    a("s_cmp_ge_u32 s48, 16")
    a("s_cbranch_scc1 L_pack2")
    a("s_add_u32 s52, s48, 128"); issue_w1(73728, 9)
    q_precompute(32)
    a("s_waitcnt vmcnt(18)\n s_barrier")
    a("s_mov_b32 s52, s48"); proc_w1(0, 32); a("s_mov_b32 s100, s49")
    a("s_waitcnt vmcnt(18)\n s_barrier")
    a("s_add_u32 s52, s48, 64"); proc_w1(36864, 68); a("s_mov_b32 s101, s49")
    a("s_waitcnt vmcnt(18)\n s_barrier")
    a("s_add_u32 s52, s48, 128"); proc_w1(73728, 104)
    a("s_waitcnt vmcnt(0)")
    flag_store(a, 1, 49, 5, 6)
    a("s_branch L_pack_fin")
    a.label("L_pack2")
    q_precompute(23)
    a("s_waitcnt vmcnt(9)\n s_barrier")
    a("s_mov_b32 s52, s48"); proc_w1(0, 32); a("s_mov_b32 s100, s49")
    a("s_waitcnt vmcnt(9)\n s_barrier")
    a("s_add_u32 s52, s48, 64"); proc_w1(36864, 68); a("s_mov_b32 s101, s49")
    a.label("L_pack_fin")
    a("s_waitcnt vmcnt(0)")
    flag_store(a, 1, 100, 5, 6)
    flag_store(a, 1, 101, 5, 6)
    stamp(a, dbg, 6)
    a("s_barrier")

    a.label("L_join")
    vm = VM()
    for sl in range(4): a("v_add_u32 v%d, %d, v3" % (4+sl, sl*36864))
    a("s_lshl_b32 s45, s38, 11")
    a("s_add_u32 s45, s45, %d" % FZ)
    def dma(stage, i, S_=None):
        slot = stage % 4
        if i % 4 == 0:
            a_ = a if S_ is None else S_.a
            a_("s_add_u32 m0, s40, %d" % (slot*36864 + i*1024))
            if stage < 9: a_("s_add_u32 s44, s41, %d" % (stage*36864 + i*1024))
            else:         a_("s_add_u32 s44, s42, %d" % ((stage-9)*36864 + i*1024))
        (a if S_ is None else S_.a)("buffer_load_dwordx4 v3, s[28:31], s44 offen offset:%d sc1 lds" % ((i % 4)*1024))
    ln_consts(a, RS)
    a("""
    v_lshlrev_b32 v8, 13, v2
    s_min_u32 s50, s39, 2
    s_mul_i32 s48, s50, 1572864
    s_lshl_b32 s49, s37, 1
    s_add_u32 s48, s48, s49
    s_add_u32 s48, s48, %d
    s_mul_i32 s49, s50, 3072
    v_lshrrev_b32 v14, 4, v2
    v_lshlrev_b32 v14, 8, v14
    v_bfe_u32 v15, v2, 1, 1
    v_lshl_add_u32 v14, v15, 7, v14
    v_bfe_u32 v15, v2, 2, 2
    v_lshl_add_u32 v14, v15, 4, v14
    v_and_b32 v15, 1, v2
    v_lshl_add_u32 v14, v15, 3, v14
    v_add_u32 v14, s49, v14
    v_add_u32 v14, %d, v14
    s_cmp_eq_u32 s39, 3
    s_cbranch_scc1 L_w3
    """ % (ZT, ZL))
    a("v_mov_b32 v150, %d" % LW)
    a("s_cmp_lg_u32 s39, 0")
    a("s_cbranch_scc1 L_fz_lds")
    flag_load(a, 208, 3, 45, True); flag_load(a, 212, 3, 45, True, 1024)
    poll(a, 0, [(208, 3, 45, True, 0, FULL), (212, 3, 45, True, 1024, (1 << 32) - 1)], 1, 18, "L_pfz", alt=216)
    a("v_mov_b32 v151, s%d" % SN0)
    a("ds_write_b32 v150, v151")
    a("s_branch L_fz_go")
    a.label("L_fz_lds")
    a("s_mov_b32 s58, 0")
    a.label("L_fz_spin")
    a("""
    ds_read_b32 v151, v150
    s_waitcnt lgkmcnt(0)
    v_readfirstlane_b32 s59, v151
    s_add_u32 s58, s58, 1
    s_cmp_eq_u32 s59, s%d
    s_cbranch_scc1 L_fz_go
    s_cmp_gt_u32 s58, 4000000
    s_cbranch_scc1 L_fz_go
    s_sleep 1
    s_branch L_fz_spin
    """ % SN0)
    a.label("L_fz_go")
    stamp(a, dbg, 7)
    for it in range(3):
        a("s_add_u32 m0, s49, %d" % (ZL + it*1024))
        a("s_add_u32 s47, s48, %d" % (it*524288))
        a("buffer_load_dwordx4 v8, s[28:31], s47 offen sc1 lds")
    X = 40; Q = 64; Hh = 88; T = 120
    for i in range(12):
        a("v_lshlrev_b32 v%d, 16, v%d" % (X+2*i, XQ+i)); a("v_and_b32 v%d, s43, v%d" % (X+2*i+1, XQ+i))
        a("v_lshlrev_b32 v%d, 16, v%d" % (Q+2*i, XQ+12+i)); a("v_and_b32 v%d, s43, v%d" % (Q+2*i+1, XQ+12+i))
    a("s_waitcnt vmcnt(0)")
    stamp(a, dbg, 8)
    fstamp(a, 4)
    for it in range(3):
        a("ds_read_b64_tr_b16 v[%d:%d], v14 offset:%d" % (28+4*it, 29+4*it, it*1024))
        a("ds_read_b64_tr_b16 v[%d:%d], v14 offset:%d" % (30+4*it, 31+4*it, it*1024 + 64))
    a("s_waitcnt lgkmcnt(0)")
    for i0 in range(0, 12, 4):
        chains = []
        for i in range(i0, i0+4):
            c_ = Chain(); chains.append(c_); d = 140 + 6*(i - i0)
            c_("v_lshlrev_b32 v%d, 16, v%d" % (d+2, 28+i))
            c_("v_and_b32 v%d, s43, v%d" % (d+3, 28+i))
            c_("v_pk_mul_f32 v[%d:%d], v[%d:%d], v[%d:%d]" % (d, d+1, Q+2*i, Q+2*i+1, d+2, d+3)); rnd_pair(c_, d, d+4)
            c_("v_pk_add_f32 v[%d:%d], v[%d:%d], v[%d:%d]" % (Hh+2*i, Hh+2*i+1, X+2*i, X+2*i+1, d, d+1)); rnd_pair(c_, Hh+2*i, 232+i)
        interleave(a, chains)
    fstamp(a, 5)
    a("s_add_u32 s101, s46, %d" % HB)
    a("v_mov_b32 v249, v13")
    ln_stats(a, Hh, T, 1, spin=SN0)
    fstamp(a, 6)
    for i0 in range(0, 12, 4):
        chains = []
        for i in range(i0, i0+4):
            c_ = Chain(); chains.append(c_); d = 140 + 4*(i - i0)
            c_("v_pk_add_f32 v[%d:%d], v[%d:%d], v[%d:%d]" % (d, d+1, Hh+2*i, Hh+2*i+1, T, T+1)); rnd_pair(c_, d, d+2)
            c_("v_pk_mul_f32 v[%d:%d], v[%d:%d], v[%d:%d]" % (d, d+1, d, d+1, T+2, T+3))
            c_("v_cvt_pk_bf16_f32 v%d, v%d, v%d" % (28+i, d, d+1))
        interleave(a, chains)
    a("""
    v_lshrrev_b32 v8, 5, v2
    v_lshlrev_b32 v8, 10, v8
    v_bfe_u32 v15, v2, 3, 2
    v_lshl_add_u32 v8, v15, 8, v8
    v_lshl_add_u32 v8, v9, 4, v8
    s_lshr_b32 s47, s37, 4
    s_mul_i32 s47, s47, 18
    s_mul_i32 s48, s39, 6
    s_add_u32 s47, s47, s48
    s_and_b32 s48, s36, 1
    s_lshl_b32 s48, s48, 7
    s_add_u32 s48, s48, %d
    """ % (UG + 4096))
    for it in range(3):
        a("s_add_u32 s49, s47, %d" % (2*it))
        a("s_lshr_b32 s50, s49, 2")
        a("s_lshl_b32 s50, s50, 13")
        a("s_and_b32 s49, s49, 3")
        a("s_lshl_b32 s49, s49, 10")
        a("s_add_u32 s50, s50, s49")
        a("s_add_u32 s50, s50, s48")
        a("buffer_store_dwordx4 v[%d:%d], v8, s[28:31], s50 offen sc1" % (28+4*it, 31+4*it))
    a("""
    s_lshl_b32 s47, s35, 2
    s_add_u32 s47, s47, s32
    s_lshl_b32 s47, s47, 7
    s_lshl_b32 s48, s34, 5
    s_add_u32 s47, s47, s48
    s_lshl_b32 s48, s39, 3
    s_add_u32 s47, s47, s48
    s_add_u32 s47, s47, %d
    v_mov_b32 v8, 0
    """ % F1)
    fstamp(a, 7)
    a("s_waitcnt vmcnt(0)")
    fstamp(a, 8)
    flag_store(a, 1, 47, 8, 16)
    a("s_branch L_lnd")
    a.label("L_w3")
    a("""
    v_mov_b32 v249, 0x80000000
    v_lshlrev_b32 v8, 3, v2
    s_lshl_b32 s101, s36, 9
    s_add_u32 s101, s101, %d
    v_mov_b32 v10, 0
    """ % FP1)
    flag_load(a, 16, 8, 101)
    a("s_cmp_ge_u32 s2, 144")
    a("s_cbranch_scc1 L_w3_nostrip")
    pack_setup2()
    a("s_mov_b32 s52, s2")
    for vw in range(4): proc_w2(SBUF, vw, 32 + 36*vw)
    a("s_mov_b32 s100, s49")
    a("s_branch L_w3_chk")
    a.label("L_w3_nostrip")
    a("s_waitcnt vmcnt(0)")
    a.label("L_w3_chk")
    poll(a, 36, [(16, 8, 101, False, 0, (1 << 36) - 1)], 1, 18, "L_pp1")
    a("s_sub_u32 s46, s41, s40")
    for st in range(NPRE):
        for i in range(36):
            if i % 4 == 0:
                a("s_mov_b32 m0, %d" % (st*36864 + i*1024))
                a("s_add_u32 s44, s46, %d" % (st*36864 + i*1024))
            a("buffer_load_dwordx4 v3, s[28:31], s44 offen offset:%d sc1 lds" % ((i % 4)*1024))
    a("s_cmp_ge_u32 s2, 144")
    a("s_cbranch_scc1 L_lnd")
    a("s_waitcnt vmcnt(%d)" % min(63, 36*NPRE))
    for vw in range(4):
        a("s_sub_u32 s49, s100, %d" % (512*(3-vw)))
        flag_store(a, 1, 49, 10, 16)
    a.label("L_lnd")
    stamp(a, dbg, 9)
    a("""
    s_lshl_b32 s45, s35, 2
    s_add_u32 s45, s45, s39
    s_mul_i32 s46, s45, %d
    s_add_u32 s46, s46, %d
    s_mul_i32 s47, s36, 9216
    s_add_u32 s47, s47, s46
    s_lshl_b32 s48, s35, 2
    s_add_u32 s48, s48, s32
    s_lshl_b32 s48, s48, 2
    s_add_u32 s48, s48, s39
    s_lshl_b32 s48, s48, 7
    s_add_u32 s48, s48, %d
    s_lshl_b32 s49, s35, 2
    s_add_u32 s49, s49, s34
    s_lshl_b32 s49, s49, 2
    s_add_u32 s49, s49, s39
    s_mul_i32 s50, s49, 73728
    s_add_u32 s50, s50, %d
    s_lshl_b32 s49, s49, 7
    s_add_u32 s49, s49, %d
    v_and_b32 v8, 3, v2
    v_lshlrev_b32 v8, 3, v8
    v_mov_b32 v10, 0
    s_lshl_b32 s51, s34, 3
    s_add_u32 s51, s51, s48
    s_lshl_b32 s52, s32, 3
    s_add_u32 s52, s52, s49
    v_lshlrev_b32 v9, 3, v2
    s_lshl_b32 s100, s36, 9
    s_add_u32 s100, s100, %d
    """ % (2*HFS, HF, F2, PART, F3, FP2))
    for pr in range(3):
        a("s_add_u32 s%d, s34, %d" % (53+pr, 1+pr))
        a("s_and_b32 s%d, s%d, 3" % (53+pr, 53+pr))
        a("s_lshl_b32 s56, s32, 2")
        a("s_add_u32 s%d, s%d, s56" % (53+pr, 53+pr))
        a("s_mul_i32 s%d, s%d, 9216" % (53+pr, 53+pr))
        a("s_add_u32 s%d, s%d, s46" % (53+pr, 53+pr))
    a("""
    v_and_b32 v11, 15, v2
    v_mul_u32_u24 v11, 1152, v11
    v_lshrrev_b32 v12, 4, v2
    v_lshl_add_u32 v11, v12, 3, v11
    s_lshl_b32 s56, s35, 7
    s_lshl_b32 s57, s39, 5
    s_add_u32 s56, s56, s57
    s_mul_i32 s56, s56, 1152
    s_mul_i32 s57, s34, 288
    s_add_u32 s56, s56, s57
    s_add_u32 s57, s56, %d
    s_lshl_b32 s93, s32, 12
    s_add_u32 s93, s93, s50
    s_add_u32 s94, s93, 65536
    s_add_u32 s93, s93, 49152
    s_cmp_lt_u32 s32, 2
    s_cselect_b32 s94, s94, s93
    s_mov_b32 s95, 0
    v_mov_b32 v252, -1
    v_mov_b32 v253, -1
    v_mov_b32 v254, -1
    v_mov_b32 v255, -1
    """ % HB)
    a("""
    s_lshl_b32 s92, s35, 2
    s_add_u32 s92, s92, s39
    s_lshl_b32 s92, s92, 7
    s_add_u32 s92, s92, %d
    v_and_b32 v12, 15, v2
    v_lshlrev_b32 v12, 3, v12
    """ % F1)
    flag_load(a, 224, 12, 92)
    poll(a, 0, [(224, 12, 92, False, 0, 0x7777)], 1, 18, "L_pf1", alt=226)
    stamp(a, dbg, 10)
    a("""
    s_lshl_b32 s92, s35, 3
    s_lshl_b32 s45, s39, 1
    s_add_u32 s92, s92, s45
    s_mul_i32 s92, s92, 36864
    s_add_u32 s92, s92, %d
    """ % (UG + 4096))
    xn_seq = {}
    def xn_load(a, vm_, ks, mt):
        f_ = mt*18 + ks
        off = (f_ >> 2)*8192 + (f_ & 3)*1024
        a("s_add_u32 s45, s92, %d" % (off - off % 4096))
        r = (ks*2+mt)*4
        a("buffer_load_dwordx4 a[%d:%d], v3, s[28:31], s45 offen offset:%d sc1" % (r, r+3, off % 4096))
        xn_seq[(ks, mt)] = vm_.issue()
    for ks in range(XN0):
        for mt in range(2): xn_load(a, vm, ks, mt)
    units = order_units()
    NF = 648
    SPLITQ = 536
    def frag_mfmas(gf):
        st, f = divmod(gf, 36)
        rb = VB + (gf % RING)*4
        out = []
        if st < 9:
            if st < 3: ks = 6*st + f // 6; T_ = f % 6
            else:      ks = f // 2; T_ = 2*st + (f & 1)
            for mt in range(2):
                ac = acc1_reg(T_, mt); xr = (ks*2+mt)*4
                src = "0" if ks == 0 else "v[%d:%d]" % (ac, ac+3)
                out.append("v_mfma_f32_16x16x32_bf16 v[%d:%d], v[%d:%d], a[%d:%d], %s" % (ac, ac+3, rb, rb+3, xr, xr+3, src))
        else:
            uu, tt = divmod(gf - 324, 3)
            c2, (kind, pr, k9) = units[uu]
            first = uu in (0, 9, 18)
            for mt in range(2):
                ac = acc2_reg(c2, tt, mt)
                if kind == "o": hr = "v[%d:%d]" % (HO + (k9*2+mt)*4, HO + (k9*2+mt)*4 + 3)
                else:
                    r = areg_partner(pr, k9, mt); hr = "a[%d:%d]" % (r, r+3)
                src = "0" if first else "v[%d:%d]" % (ac, ac+3)
                out.append("v_mfma_f32_16x16x32_bf16 v[%d:%d], v[%d:%d], %s, %s" % (ac, ac+3, rb, rb+3, hr, src))
        return out
    class S: pass
    def tau_info(tau):
        c2, r = divmod(tau, 6); tt, mt = divmod(r, 2)
        return c2, tt, mt
    def build_tasks(svar):
        tasks = {}
        def at(q, fn): tasks.setdefault(q, []).append(fn)
        busy = set()
        edf = []
        if EDF:
            allowed = lambda q: (q % EDF[0]) in EDF[1]
            def vslot(q):
                while q in busy or not allowed(q): q += 1
                busy.add(q); return q
            for st in range(NPRE, 18):
                for i in range(9):
                    def dm(a, S_, st=st, i=i): dma(st, i); S_.dseq[st] = S_.vm.issue()
                    edf.append((max(0, 36*(st-3) - LB) + 1, 36*st - LB - (MD if st > 2 else 20), len(edf), dm))
        else:
            for nb in range(15):
                b0 = max(0, 36*nb - LB)
                for i in range(9): busy.add(b0 + 1 + (DSP if nb else 3)*i)
            def vslot(q):
                while q in busy or (q-1) in busy or (q+1) in busy: q += 1
                busy.add(q); return q
        qw = vslot(100)
        def wl(a, S_): flag_load(a, 12, 9, 100); S_.fseq = S_.vm.issue()
        at(qw, wl)
        def wc(a, S_): poll(a, S_.vm.wait_cnt(S_.fseq), [(12, 9, 100, False, 0, (1 << 36) - 1)], 1, 14, "L_pw2")
        at(qw + 30, wc)
        lq = 0
        for ks in range(XN0, 18):
            for mt in range(2):
                def xl(a, S_, ks=ks, mt=mt): xn_load(a, S_.vm, ks, mt)
                if EDF: edf.append((0, 6*ks - 30, len(edf), xl)); continue
                while lq in busy: lq += 1
                busy.add(lq); at(lq, xl); lq += XSP
                assert lq < 6*ks + 2, (ks, lq)
        for it in range(3):
            def hs(a, S_, it=it):
                a("buffer_store_dwordx4 v[%d:%d], v249, s[28:31], s101 offen offset:%d sc1" % (232+4*it, 235+4*it, it*128)); S_.vm.issue()
            at(vslot(70 + 8*it), hs)
        if TAIL != 'flag':
            lq = 84
            for t2 in range(2):
                for k in range(4):
                    def po(a, S_, t2=t2, k=k):
                        a("buffer_store_dwordx4 v[252:255], v3, s[28:31], s%d offen offset:%d sc1" % (93+t2, k*1024)); S_.pois = S_.vm.issue()
                    lq = vslot(lq); at(lq, po)
            def pf(a, S_):
                a("s_waitcnt vmcnt(%d)" % S_.vm.wait_cnt(S_.pois))
                flag_store(a, 1, 52, 10, 14); S_.vm.issue()
            at(vslot(lq + 60), pf)
            q3 = vslot(470)
            def p3l(a, S_): flag_load(a, 12, 8, 49); S_.fseq = S_.vm.issue()
            at(q3, p3l)
            def p3c(a, S_): poll(a, S_.vm.wait_cnt(S_.fseq), [(12, 8, 49, False, 0, FULL)], 1, 14, "L_p3p")
            at(q3 + CHKD, p3c)
        lastq = 0; kq = 0
        for k9 in range(9):
            q0 = max(108, 36*(k9+1)) + 1
            kq = max(kq, q0*VPS)
            for mt in range(2):
                hr = HO + (k9*2+mt)*4
                for half in range(2):
                    ac = acc1_reg(2*k9+half, mt)
                    for e in range(2):
                        def f(a, S_, d=hr+2*half+e, s0=ac+2*e): a("v_cvt_pk_bf16_f32 v%d, v%d, v%d" % (d, s0, s0+1))
                        f.valu = True; at(kq//VPS, f); kq += 1
                for e in range(4):
                    def g(a, S_, r=hr+e): a("v_pk_max_i16 v%d, v%d, v10" % (r, r))
                    g.valu = True; at(kq//VPS, g); kq += 1
                def h(a, S_, hr=hr, k9=k9, mt=mt):
                    a("s_add_u32 s45, s47, %d" % (mt*HFS + k9*1024))
                    a("buffer_store_dwordx4 v[%d:%d], v3, s[28:31], s45 offen sc1" % (hr, hr+3))
                    S_.hst[k9] = S_.vm.issue()
                lastq = vslot(max(lastq + (SSP if k9 > 2 else 6), kq//VPS + 1))
                at(lastq, h)
            if k9 in (2, 4, 6, 8):
                def fl(a, S_, k9=k9):
                    a("s_waitcnt vmcnt(%d)" % S_.vm.wait_cnt(S_.hst[k9]))
                    flag_store(a, k9+1, 51, 10, 14); S_.vm.issue()
                at(vslot(lastq + FLAGD[0]), fl)
        lastq = 0
        pq = [vslot(p[0]) for p in POLLS]
        for pi, (qp, need, lo, hi) in enumerate(POLLS):
            def pl(a, S_): flag_load(a, 12, 8, 48); S_.fseq = S_.vm.issue()
            qp = pq[pi]; at(qp, pl)
            qc = qp + CHKD
            assert qc < SPLITQ
            def pc(a, S_, pi=pi, need=need):
                poll(a, S_.vm.wait_cnt(S_.fseq), [(12, 8, 48, False, 0, FULL)], need, 14, "L_p2_%d" % pi)
            at(qc, pc)
            lastq = max(lastq, qc + 1)
            for i in range(lo, hi):
                k9, pr = divmod(i, 3)
                if i >= 14: lastq = max(lastq, 326)
                for mt in range(2):
                    def ld(a, S_, pr=pr, k9=k9, mt=mt):
                        r = areg_partner(pr, k9, mt)
                        a("s_add_u32 s45, s%d, %d" % (53+pr, mt*HFS + k9*1024))
                        a("buffer_load_dwordx4 a[%d:%d], v3, s[28:31], s45 offen sc1" % (r, r+3))
                        S_.hld[(pr, k9, mt)] = S_.vm.issue()
                    if EDF:
                        edf.append((max(qc + 1, 326 if i >= 14 else 0), (405 + 3*i if i < 18 else 513 + 3*(i-18)) - ML, len(edf), ld)); continue
                    lastq = vslot(lastq); at(lastq, ld)
        lastq = 0
        own01 = [t for t in range(12) if t % 4 == svar]
        plan = []
        for c2, qe in ((0, 324 + 72*3), (1, 324 + 81*3)):
            for tt in range(3):
                for mt in range(2):
                    tau = 6*c2 + 2*tt + mt
                    if tau % 4 == svar: continue
                    def ps(a, S_, tau=tau, ac=acc2_reg(c2, tt, mt), c2=c2):
                        a("s_add_u32 s45, s50, %d" % ((tau*4 + svar)*1024))
                        a("buffer_store_dwordx4 v[%d:%d], v3, s[28:31], s45 offen sc1" % (ac, ac+3))
                        S_.pst[c2] = S_.vm.issue()
                    lastq = vslot(max(lastq + PSP, qe + 1)); at(lastq, ps)
            def fl3(a, S_, c2=c2):
                a("s_waitcnt vmcnt(%d)" % S_.vm.wait_cnt(S_.pst[c2]))
                flag_store(a, 2+c2, 52, 10, 14); S_.vm.issue()
            fq = vslot(lastq + FLAGD[1]); at(fq, fl3); plan.append(fq)
        if TAIL == 'nb':
            for c2 in range(2):
                qc = P3C[c2]
                def p3e(a, S_): flag_load(a, 12, 8, 49); S_.fseq3 = S_.vm.issue()
                at(vslot(qc - P3D), p3e)
                def p3k(a, S_, c2=c2):
                    lab = "L_nb_%d_%d" % (c2, svar)
                    a("s_waitcnt vmcnt(%d)" % S_.vm.wait_cnt(S_.fseq3))
                    a("s_add_u32 s59, s%d, %d" % (SN0, 2+c2))
                    a("v_subrev_u32 v14, s59, v12")
                    a("v_cmp_gt_u32 vcc, %d, v14" % (14-c2))
                    a("v_cmp_eq_u32 s[62:63], s%d, v13" % SN1)
                    a("s_nop 1")
                    a("s_and_b64 vcc, vcc, s[62:63]")
                    a("s_cmp_eq_u64 vcc, -1")
                    a("s_cbranch_scc0 %s" % lab)
                    a("s_or_b32 s95, s95, %d" % (1 << c2))
                    Sx = copy.deepcopy(S_)
                    for i, tau in enumerate(own01):
                        if tau // 6 == c2: fin_loads(a, Sx, tau, HO + 16*i, svar)
                    a.label(lab)
                assert qc > 36*17 - LB
                at(qc, p3k)
        if EDF:
            pend_ = sorted(edf, key=lambda t: (t[1], t[2]))
            q = 0; late = 0
            while pend_:
                if q not in busy and (allowed(q) or (q < 40 and (q-1) not in busy)):
                    for t in pend_:
                        if t[0] <= q:
                            busy.add(q); at(q, t[3]); pend_.remove(t); late = max(late, q - t[1]); break
                q += 1
            if verbose: print("edf max lateness", late, "last", max(busy))
        assert max(tasks) < NF
        return tasks
    def part_loads(a, S_, tau, B, svar):
        for i, s_ in enumerate([x for x in range(4) if x != svar]):
            a("s_add_u32 s45, s50, %d" % ((tau*4 + s_)*1024))
            a("buffer_load_dwordx4 v[%d:%d], v3, s[28:31], s45 offen sc1" % (B+4*i, B+4*i+3)); S_.fin[tau] = S_.vm.issue()
    def h_load(a, S_, tau, B):
        c2, tt, mt = tau_info(tau)
        a("s_add_u32 s45, s57, %d" % (mt*18432 + c2*96 + tt*32))
        a("buffer_load_dwordx2 v[%d:%d], v11, s[28:31], s45 offen sc1" % (B+12, B+13))
        S_.fin[tau] = S_.vm.issue()
    def fin_loads(a, S_, tau, B, svar):
        part_loads(a, S_, tau, B, svar); h_load(a, S_, tau, B)
    def fin_math(a, S_, tau, B, svar):
        c2, tt, mt = tau_info(tau)
        ac = acc2_reg(c2, tt, mt)
        regs = {s_: B + 4*i for i, s_ in enumerate([x for x in range(4) if x != svar])}
        regs[svar] = ac
        a("s_waitcnt vmcnt(%d)" % min(63, S_.vm.wait_cnt(S_.fin[tau])))
        cur = ac if svar in (0, 1) else regs[0]
        for h_ in range(2):
            a("v_pk_add_f32 v[%d:%d], v[%d:%d], v[%d:%d]" % (cur+2*h_, cur+2*h_+1, regs[0]+2*h_, regs[0]+2*h_+1, regs[1]+2*h_, regs[1]+2*h_+1))
        for s_ in (2, 3):
            for h_ in range(2):
                a("v_pk_add_f32 v[%d:%d], v[%d:%d], v[%d:%d]" % (cur+2*h_, cur+2*h_+1, cur+2*h_, cur+2*h_+1, regs[s_]+2*h_, regs[s_]+2*h_+1))
        for h_ in range(2):
            r = cur + 2*h_
            rnd_pair(a, r, B+14)
            a("v_lshlrev_b32 v%d, 16, v%d" % (B+4+2*h_, B+12+h_))
            a("v_and_b32 v%d, s43, v%d" % (B+5+2*h_, B+12+h_))
            a("v_pk_add_f32 v[%d:%d], v[%d:%d], v[%d:%d]" % (r, r+1, r, r+1, B+4+2*h_, B+5+2*h_))
        for h_ in range(2): a("v_cvt_pk_bf16_f32 v%d, v%d, v%d" % (B+8+h_, cur+2*h_, cur+2*h_+1))
        a("s_add_u32 s45, s56, %d" % (mt*18432 + c2*96 + tt*32))
        a("buffer_store_dwordx2 v[%d:%d], v11, s[20:23], s45 offen" % (B+8, B+9)); S_.vm.issue()
    def run_main(a, S_, q_from, q_to, tasks):
        for q in range(q_from, q_to):
            st, f = divmod(q, 36)
            nb = S_.bar + 1
            if nb < 18 and q == max(0, 36*nb - LB):
                if nb > 0: a("s_waitcnt lgkmcnt(0)")
                S_.rd_done = S_.p
                bi = bst.index(nb)*3 if bst and nb in bst else None
                if bi is not None: a("s_memtime s[%d:%d]" % (64+2*bi, 65+2*bi))
                a("s_waitcnt vmcnt(%d)" % min(63, S_.vm.wait_cnt(S_.dseq[nb])))
                if bi is not None: a("s_memtime s[%d:%d]" % (66+2*bi, 67+2*bi))
                a("s_barrier")
                if bi is not None: a("s_memtime s[%d:%d]" % (68+2*bi, 69+2*bi))
                if nb == 0: stamp(a, dbg, 11)
                if sdbg is not False and 0 <= nb - sdbg < 12: a("s_memtime s[%d:%d]" % (64+2*(nb-sdbg), 65+2*(nb-sdbg)))
                S_.bar = nb
                assert not S_.pend
                if nb + 3 < 18 and not EDF: S_.pend = [(nb+3, i) for i in range(9)]
            def rd():
                if S_.p < NF and S_.p <= q + LMAX and S_.p < 36*(S_.bar+1):
                    gp = S_.p; r = VB + (gp % RING)*4
                    a("ds_read_b128 v[%d:%d], v%d offset:%d" % (r, r+3, 4 + (gp//36) % 4, (gp % 36)*1024))
                    S_.p += 1
                    return True
                return False
            if q == 0:
                while rd(): pass
            if q >= S_.rd_done:
                tgt = min(q + 1, S_.p - 1)
                a("s_waitcnt lgkmcnt(%d)" % min(15, S_.p - tgt - 1))
                S_.rd_done = tgt + 1
            if st < 3 and f % 6 == 0:
                a("s_waitcnt vmcnt(%d)" % min(63, S_.vm.wait_cnt(xn_seq[(6*st + f//6, 1)])))
            if st >= 9:
                uu, tt = divmod(q - 324, 3)
                c2, (kind, pr, k9) = units[uu]
                if kind == "p" and tt == 0 and (pr, k9) not in S_.hwaited:
                    S_.hwaited.add((pr, k9))
                    a("s_waitcnt vmcnt(%d)" % min(63, S_.vm.wait_cnt(S_.hld[(pr, k9, 1)])))
            if qst and q in qst: a("s_memtime s[%d:%d]" % (64+2*qst.index(q), 65+2*qst.index(q)))
            m1, m2 = frag_mfmas(q)
            tl = list(tasks.get(q, []))
            a(m1)
            rd()
            if tl and getattr(tl[0], "valu", False): tl.pop(0)(a, S_)
            a(m2)
            did = False
            if S_.pend and (q - max(0, 36*S_.bar - LB)) % (DSP if S_.bar else 3) == 1:
                stg, i = S_.pend.pop(0)
                dma(stg, i); S_.dseq[stg] = S_.vm.issue(); did = True
            for fn in tl: fn(a, S_); did = True
            if not did: rd()
    S0 = S(); S0.vm = vm; S0.bar = -1; S0.p = 0; S0.rd_done = 0; S0.pend = []
    S0.dseq = {0: 0, 1: 0, 2: 0}; S0.hst = {}; S0.hld = {}; S0.hwaited = set(); S0.fin = {}; S0.pst = {}
    run_main(a, S0, 0, SPLITQ, build_tasks(0))
    for svar in range(4):
        if svar: a.label("L_v%d" % svar)
        if svar < 3:
            a("s_cmp_lg_u32 s32, %d" % svar)
            a("s_cbranch_scc1 L_v%d" % (svar+1))
        S_ = copy.deepcopy(S0)
        run_main(a, S_, SPLITQ, NF, build_tasks(svar))
        if dbg: a("s_memrealtime s[90:91]")
        if sdbg is not False: a("s_memtime s[90:91]")
        own01 = [t for t in range(12) if t % 4 == svar]
        own = [t for t in range(12, 18) if t % 4 == svar]
        a("s_nop 7")
        stamp(a, dbg == 3, 7)
        n_at_end = S_.vm.n
        for tau in range(12, 18):
            if tau % 4 == svar: continue
            c2, tt, mt = tau_info(tau); ac = acc2_reg(c2, tt, mt)
            a("s_add_u32 s45, s50, %d" % ((tau*4 + svar)*1024))
            a("buffer_store_dwordx4 v[%d:%d], v3, s[28:31], s45 offen sc1" % (ac, ac+3)); S_.vm.issue()
        if TAIL == 'flag':
            flag_load(a, 12, 8, 49); seq = S_.vm.issue()
            a("s_waitcnt vmcnt(0)")
            flag_store(a, 4, 52, 10, 14); S_.vm.issue()
            poll(a, S_.vm.wait_cnt(seq), [(12, 8, 49, False, 0, FULL)], 3, 14, "L_p3a_%d" % svar, alt=250)
            for i, tau in enumerate(own01): fin_loads(a, S_, tau, HO + 16*i, svar)
            flag_load(a, 12, 8, 49); seq = S_.vm.issue()
            poll(a, S_.vm.wait_cnt(seq), [(12, 8, 49, False, 0, FULL)], 4, 14, "L_p3b_%d" % svar, alt=250)
            for i, tau in enumerate(own): fin_loads(a, S_, tau, VB + 16*i, svar)
            for i, tau in enumerate(own01): fin_math(a, S_, tau, HO + 16*i, svar)
        else:
            for i, tau in enumerate(own): fin_loads(a, S_, tau, VB + 16*i, svar)
            ntail = S_.vm.n - n_at_end
            for c2 in range(2):
                lab = "L_tl_%d_%d" % (c2, svar)
                a("s_bitcmp1_b32 s95, %d" % c2)
                a("s_cbranch_scc1 %s" % lab)
                flag_load(a, 12, 8, 49)
                poll(a, 0, [(12, 8, 49, False, 0, FULL)], 2+c2, 14, lab + "p", alt=250)
                Sx = copy.deepcopy(S_)
                for i, tau in enumerate(own01):
                    if tau // 6 == c2: fin_loads(a, Sx, tau, HO + 16*i, svar)
                a("s_waitcnt vmcnt(0)")
                a.label(lab)
            a("s_waitcnt vmcnt(%d)" % ntail)
            for tau in own01: S_.fin[tau] = 0
            for i, tau in enumerate(own01): fin_math(a, S_, tau, HO + 16*i, svar)
            stamp(a, dbg == 3, 8)
            lab = "L_sen_%d" % svar
            a("s_mov_b32 s58, 0")
            a("s_waitcnt vmcnt(%d)" % S_.vm.wait_cnt(S_.fin[own[-1]]))
            a.label(lab)
            a("s_mov_b64 s[60:61], 0")
            for i, tau in enumerate(own):
                for r in range(12):
                    a("v_cmp_eq_u32 vcc, -1, v%d" % (VB + 16*i + r))
                    a("s_or_b64 s[60:61], s[60:61], vcc")
            a("s_cmp_eq_u64 s[60:61], 0")
            a("s_cbranch_scc1 %s_ok" % lab)
            a("s_add_u32 s58, s58, 1")
            a("s_cmp_gt_u32 s58, %d" % SPIN_MAX)
            a("s_cbranch_scc1 %s_ok" % lab)
            Sx = copy.deepcopy(S_)
            for i, tau in enumerate(own): part_loads(a, Sx, tau, VB + 16*i, svar)
            a("s_waitcnt vmcnt(0)")
            a("s_branch %s" % lab)
            a.label(lab + "_ok")
        stamp(a, dbg == 3, 9)
        for i, tau in enumerate(own): fin_math(a, S_, tau, VB + 16*i, svar)
        stamp(a, dbg == 3, 10)
        if svar == 0:
            a("s_or_b32 s62, s2, s39")
            a("s_cmp_lg_u32 s62, 0")
            a("s_cbranch_scc1 L_nores")
            a("s_load_dwordx2 s[60:61], s[0:1], 80")
            a("s_waitcnt lgkmcnt(0)")
            srd(a, 4, 60, 256)
            a("s_mov_b64 exec, 1")
            a("buffer_store_dword v10, v10, s[4:7], 0 offen sc1")
            a("s_mov_b64 exec, -1")
            a.label("L_nores")
        if dbg or sdbg is not False:
            a("s_waitcnt vmcnt(0)")
            a("s_memrealtime s[92:93]")
            a("s_waitcnt lgkmcnt(0)")
            for i in range(12): a("v_mov_b32 v%d, s%d" % (16+i, 64+2*i))
            a("v_mov_b32 v28, s90\n v_mov_b32 v29, s92\n v_mov_b32 v30, 0\n v_mov_b32 v31, 0")
            a("s_lshl_b32 s62, s2, 2\n s_add_u32 s62, s62, s39\n s_lshl_b32 s62, s62, 6\n s_add_u32 s62, s62, %d" % STAMP)
            a("s_mov_b64 exec, 1")
            for k_ in range(4): a("buffer_store_dwordx4 v[%d:%d], v10, s[28:31], s62 offen offset:%d" % (16+4*k_, 19+4*k_, 16*k_))
            if dbg == 2:
                lab = a.newlabel("L_dd")
                a("s_load_dwordx2 s[60:61], s[0:1], 80")
                a("s_waitcnt lgkmcnt(0)")
                srd(a, 4, 60, 256)
                a("s_or_b32 s62, s2, s39\n s_cmp_lg_u32 s62, 0\n s_cbranch_scc1 %s" % lab)
                for i in range(1, 14): a("v_subrev_u32 v%d, s64, v%d" % (16+i, 16+i))
                for i in range(1, 14): a("buffer_store_dword v%d, v10, s[4:7], 0 offen offset:%d" % (16+i, 4*i))
                a.label(lab)
        a("s_endpgm")
    a.label("L_end")
    a("s_endpgm")
    return dict(name=KNAME, grid=256, block=256, lds=ONE_LDS, body=a.text(), vgpr=512, sgpr=102, accum=256)

def make_single(k, hdr):
    import subprocess, re
    t = make_file([k], hdr)
    open("_sz.s", "w").write(t.replace("NCODELINES", "1"))
    subprocess.check_call(["clang", "-x", "assembler", "-target", "amdgcn-amd-amdhsa", "-mcpu=gfx950", "-c", "_sz.s", "-o", "_sz.o"])
    o = subprocess.check_output(["llvm-readelf", "-S", "_sz.o"]).decode()
    size = int(re.search(r"\.text\s+PROGBITS\s+\S+\s+\S+\s+(\S+)", o).group(1), 16)
    nl = (size - 64) // 128 - 1
    assert nl < 1024
    t = t.replace("NCODELINES", str(nl))
    return t.replace("; @launch kernel=%s grid" % KNAME, "; @launch grid")

if __name__ == "__main__":
    hdr = open("sequential_preLN__ssm_conv_h3__dense_activation_relu__prompt.s.ref").read().split("; Override")[0]
    t1 = make_single(gen_one(verbose=True), hdr); t2 = make_single(gen_one(dbg=True), hdr)
    open("three.s", "w").write(t1); open("three_dbg.s", "w").write(t2)
    open("three_s0.s", "w").write(make_single(gen_one(sdbg=0), hdr)); open("three_s6.s", "w").write(make_single(gen_one(sdbg=6), hdr))
    open("../cdna_kernels/varDbg.s", "w").write(make_single(gen_one(dbg=2), hdr))
    open("three_dbg3.s", "w").write(make_single(gen_one(dbg=3), hdr))
    import sys
    base = make_single(gen_one(), hdr)
    open("v_base.s", "w").write(base)
    for k_, kw in {"nb": dict(TAIL='nb', PSP=2), "zdir": dict(ZDIR=True), "n2x8": dict(NPRE=2, XN0=8), "e2": dict(EDF=(2, (1,)), MD=50, ML=45), "e73": dict(EDF=(7, (0, 2, 4)), MD=30, ML=30)}.items():
        open("../cdna_kernels/h_%s.s" % k_, "w").write(make_single(gen_one(**kw), hdr))
    FINE[0] = True
    open("three_fine.s", "w").write(make_single(gen_one(dbg=True), hdr))
```

```python
import copy
from asmlib import *
from layout import *
from gen_front import srd, check_magic
from gen_kb import VM, order_units, areg_partner, acc2_reg, acc1_reg, rnd_pair, rnd1, ln_stats, ZL, RS, KB_LDS, RING, VB, HO, ACC

KNAME = "sequential_preLN__ssm_conv_h3__dense_activation_relu__prompt_kernel"
FA  = FLAGS
FZ  = FLAGS + 0x20000
FP1 = FLAGS + 0x3000
FP2 = FLAGS + 0x5000
F1  = FLAGS + 0x7000
F2  = FLAGS + 0x10000
F3  = FLAGS + 0x18000
SPIN_MAX = 20000
STAMP = 0x6000000 + BASE
SN0, SN1 = 88, 89
ZT = UG; ZTS = 8192
ZL = 110592; RS = ZL + 9216; LW = RS + 640
SBUF = 3*CH_BYTES + 6*8192
ONE_LDS = SBUF + 36864
XQ = 232

class Chain:
    def __init__(self): self.l = []
    def __call__(self, t): self.l.append(t)
def interleave(a, chains):
    ls = [list(c.l) for c in chains]
    while any(ls):
        for l in ls:
            if l: a(l.pop(0))

FINE = [False]
def stamp(a, dbg, i):
    if dbg and not (FINE[0] and i > 0): a("s_memrealtime s[%d:%d]" % (64+2*i, 65+2*i))
def fstamp(a, i):
    if FINE[0]: a("s_memrealtime s[%d:%d]" % (64+2*i, 65+2*i))

def flag_store(a, val, soff, vz, vt):
    a("s_add_u32 s61, s%d, %d" % (SN0, val))
    a("v_mov_b32 v%d, s61" % vt)
    a("v_mov_b32 v%d, s%d" % (vt+1, SN1))
    a("s_mov_b64 exec, 1")
    a("buffer_store_dwordx2 v[%d:%d], v%d, s[28:31], s%d offen sc1" % (vt, vt+1, vz, soff))
    a("s_mov_b64 exec, -1")

def flag_load(a, vd, vaddr, soff, wide=False, off=0):
    if wide: a("buffer_load_dwordx4 v[%d:%d], v%d, s[28:31], s%d offen offset:%d sc1" % (vd, vd+3, vaddr, soff, off))
    else:    a("buffer_load_dwordx2 v[%d:%d], v%d, s[28:31], s%d offen offset:%d sc1" % (vd, vd+1, vaddr, soff, off))

def poll(a, waitn, loads, need, vt, lab, alt=None):
    def check(shift):
        a("s_mov_b64 s[60:61], -1")
        for (vd, vaddr, soff, wide, off, mask) in loads:
            vd += shift
            for h in range(2 if wide else 1):
                a("v_subrev_u32 v%d, s59, v%d" % (vt, vd+2*h))
                a("v_cmp_gt_u32 vcc, %d, v%d" % (16-need, vt))
                a("v_cmp_eq_u32 s[62:63], s%d, v%d" % (SN1, vd+2*h+1))
                a("s_nop 1")
                a("s_and_b64 vcc, vcc, s[62:63]")
                if mask != (1 << 64) - 1:
                    a("s_mov_b32 s62, 0x%x" % (~mask & 0xffffffff))
                    a("s_mov_b32 s63, 0x%x" % ((~mask >> 32) & 0xffffffff))
                    a("s_or_b64 vcc, vcc, s[62:63]")
                a("s_and_b64 s[60:61], s[60:61], vcc")
        a("s_cmp_eq_u64 s[60:61], -1")
        a("s_cbranch_scc1 %s_ok" % lab)
    def issue(shift):
        for (vd, vaddr, soff, wide, off, mask) in loads: flag_load(a, vd+shift, vaddr, soff, wide, off)
    a("s_waitcnt vmcnt(%d)" % min(63, waitn))
    a("s_mov_b32 s58, 0")
    a("s_add_u32 s59, s%d, %d" % (SN0, need))
    if alt is None:
        a.label(lab + "_chk")
        check(0)
        a("s_add_u32 s58, s58, 1")
        a("s_cmp_gt_u32 s58, %d" % SPIN_MAX)
        a("s_cbranch_scc1 %s_ok" % lab)
        issue(0)
        a("s_waitcnt vmcnt(0)")
        a("s_branch %s_chk" % lab)
    else:
        sh = alt - loads[0][0]; n = len(loads)
        check(0)
        issue(0)
        a("s_sleep 4")
        issue(sh)
        a.label(lab + "_chk")
        a("s_waitcnt vmcnt(%d)" % n)
        check(0)
        issue(0)
        a("s_waitcnt vmcnt(%d)" % n)
        check(sh)
        issue(sh)
        a("s_add_u32 s58, s58, 1")
        a("s_cmp_gt_u32 s58, %d" % SPIN_MAX)
        a("s_cbranch_scc0 %s_chk" % lab)
    a.label(lab + "_ok")
FULL = (1 << 64) - 1

def kv_item(a, R, sfx):
    a("v_and_b32 v%d, 7, v0" % (R+1))
    a("v_lshlrev_b32 v%d, 3, v%d" % (R+1, R+1))
    a("v_add_u32 v%d, s44, v%d" % (R+1, R+1))
    a("v_mul_u32_u24 v%d, 1152, v%d" % (R+3, R+1))
    a("v_lshlrev_b32 v%d, 2, v%d" % (R+4, R+2))
    a("v_add3_u32 v%d, v%d, v%d, s45" % (R+3, R+3, R+4))
    a("v_add_u32 v%d, 4608, v%d" % (R+4, R+3))
    a("v_subrev_u32 v%d, 4608, v%d" % (R+5, R+3))
    a("v_cmp_eq_u32 vcc, 0, v%d" % (R+1))
    a("v_mov_b32 v%d, 0x80000000" % (R+6))
    a("s_nop 1")
    a("v_cndmask_b32 v%d, v%d, v%d, vcc" % (R+5, R+5, R+6))
    L = R + 8
    a("s_waitcnt lgkmcnt(0)")
    for i in range(4): a("buffer_load_dword v%d, v%d, s[8:11], 0 offen offset:%d nt" % (L+i, R+5, i*1152))
    for i in range(4): a("buffer_load_dword v%d, v%d, s[8:11], 0 offen offset:%d nt" % (L+4+i, R+3, i*1152))
    for i in range(4): a("buffer_load_dword v%d, v%d, s[8:11], 0 offen offset:%d nt" % (L+8+i, R+4, i*1152))
    a("buffer_load_dword v%d, v%d, s[12:15], 0 offen offset:3456 nt" % (L+12, R+5))
    for i in range(4): a("buffer_load_dword v%d, v%d, s[12:15], 0 offen offset:%d nt" % (L+13+i, R+3, i*1152))
    for i in range(4): a("buffer_load_dword v%d, v%d, s[12:15], 0 offen offset:%d nt" % (L+17+i, R+4, i*1152))
    a("s_mov_b32 s26, 4608\n s_mov_b32 s27, 0x20000\n s_mul_i32 s46, s38, 576\n s_mul_i32 s47, s38, 589824")
    a("v_lshlrev_b32 v%d, 4, v%d" % (R+6, R+2))
    a("buffer_load_dwordx4 v[%d:%d], v%d, s[24:27], s46 offen" % (R+32, R+35, R+6))
    a("v_lshlrev_b32 v%d, 14, v%d" % (R+6, R+2))
    a("v_lshlrev_b32 v%d, 1, v%d" % (R+7, R+1))
    a("v_sub_u32 v%d, 4080, v%d" % (R+7, R+7))
    a("v_add3_u32 v%d, v%d, v%d, s47" % (R+6, R+6, R+7))
    a("v_add_u32 v%d, 8192, v%d" % (R+7, R+6))

def kv_item2(a, R):
    a("v_and_b32 v%d, 15, v2" % (R+1))
    a("v_lshlrev_b32 v%d, 2, v%d" % (R+1, R+1))
    a("v_add_u32 v%d, s44, v%d" % (R+1, R+1))
    a("v_lshrrev_b32 v%d, 4, v2" % (R+2))
    a("v_add_u32 v%d, 32, v%d" % (R+2, R+2))
    a("v_mul_u32_u24 v%d, 1152, v%d" % (R+3, R+1))
    a("v_lshlrev_b32 v%d, 2, v%d" % (R+4, R+2))
    a("v_add3_u32 v%d, v%d, v%d, s45" % (R+3, R+3, R+4))
    a("v_subrev_u32 v%d, 4608, v%d" % (R+5, R+3))
    a("v_cmp_eq_u32 vcc, 0, v%d" % (R+1))
    a("v_mov_b32 v%d, 0x80000000" % (R+6))
    a("s_nop 1")
    a("v_cndmask_b32 v%d, v%d, v%d, vcc" % (R+5, R+5, R+6))
    a("v_lshlrev_b32 v%d, 4, v%d" % (R+6, R+2))
    L = R + 8
    for i in range(4): a("buffer_load_dword v%d, v%d, s[8:11], 0 offen offset:%d nt" % (L+i, R+5, i*1152))
    for i in range(4): a("buffer_load_dword v%d, v%d, s[8:11], 0 offen offset:%d nt" % (L+4+i, R+3, i*1152))
    a("buffer_load_dword v%d, v%d, s[12:15], 0 offen offset:3456 nt" % (L+12, R+5))
    for i in range(4): a("buffer_load_dword v%d, v%d, s[12:15], 0 offen offset:%d nt" % (L+13+i, R+3, i*1152))
    a("buffer_load_dwordx4 v[%d:%d], v%d, s[24:27], s46 offen" % (R+32, R+35, R+6))
    a("v_lshlrev_b32 v%d, 14, v%d" % (R+6, R+2))
    a("v_lshlrev_b32 v%d, 1, v%d" % (R+7, R+1))
    a("v_sub_u32 v%d, 4088, v%d" % (R+7, R+7))
    a("v_add3_u32 v%d, v%d, v%d, s47" % (R+6, R+6, R+7))
    a("v_add_u32 v%d, 8192, v%d" % (R+7, R+6))

def kv_compute(a, R, W, NR=8, skip=None):
    L = R + 8
    for j in range(4):
        for c in range(2):
            src = R + 32 + 2*c + (j >> 1)
            if j & 1: a("v_and_b32 v%d, s43, v%d" % (W+2*j+c, src))
            else:     a("v_lshlrev_b32 v%d, 16, v%d" % (W+2*j+c, src))
    K = W + 8; V = W + 32; U = W + 50; P0 = W + 68; T = W + 76
    for i in range(NR+4):
        a("v_lshlrev_b32 v%d, 16, v%d" % (K+2*i, L+i)); a("v_and_b32 v%d, s43, v%d" % (K+2*i+1, L+i))
    for e in range(NR+1):
        a("v_lshlrev_b32 v%d, 16, v%d" % (V+2*e, L+12+e)); a("v_and_b32 v%d, s43, v%d" % (V+2*e+1, L+12+e))
    G = 3 if NR == 8 else 5
    for e0 in range(0, NR+1, G):
        chains = []
        for e in range(e0, min(NR+1, e0+G)):
            c_ = Chain(); chains.append(c_)
            Pb = P0 + 12*(e - e0); Tb = Pb + 8
            P = [Pb, Pb+2, Pb+4, Pb+6]
            for q in range(4):
                j = 3 - q
                c_("v_pk_mul_f32 v[%d:%d], v[%d:%d], v[%d:%d]" % (P[q], P[q]+1, K+2*(e+q), K+1+2*(e+q), W+2*j, W+1+2*j))
            for q in range(4): c_("v_cvt_pk_bf16_f32 v%d, v%d, v%d" % (Tb+q, P[q], P[q]+1))
            for q in range(4):
                c_("v_lshlrev_b32 v%d, 16, v%d" % (P[q], Tb+q)); c_("v_and_b32 v%d, s43, v%d" % (P[q]+1, Tb+q))
            for q in range(1, 4):
                c_("v_pk_add_f32 v[%d:%d], v[%d:%d], v[%d:%d]" % (Pb, Pb+1, Pb, Pb+1, P[q], P[q]+1)); rnd_pair(c_, Pb, Tb)
            c_("v_pk_mul_f32 v[%d:%d], v[%d:%d], v[%d:%d]" % (U+2*e, U+1+2*e, Pb, Pb+1, V+2*e, V+1+2*e))
        interleave(a, chains)
    nd = NR // 2
    for c in range(2):
        for cp in range(2):
            base = L + (c*2+cp)*4
            for q in range(nd):
                hi_e = (NR if cp else NR-1) - 2*q
                a("v_cvt_pk_bf16_f32 v%d, v%d, v%d" % (base+q, U+2*hi_e+c, U+2*(hi_e-1)+c))
    if skip: a("s_cbranch_execz %s" % skip)
    for c in range(2):
        for cp in range(2):
            base = L + (c*2+cp)*4
            a("s_mov_b32 s48, %d" % (UG + cp*4096))
            if NR == 8: a("buffer_store_dwordx4 v[%d:%d], v%d, s[28:31], s48 offen sc1" % (base, base+3, R+6 if c == 0 else R+7))
            else:       a("buffer_store_dword v%d, v%d, s[28:31], s48 offen sc1" % (base, R+6 if c == 0 else R+7))

def ln_consts(a, rs):
    a("""
    v_and_b32 v9, 7, v2              ; r
    v_lshrrev_b32 v10, 3, v2         ; l>>3
    v_mul_u32_u24 v13, 1152, v9
    v_lshl_add_u32 v13, v10, 4, v13  ; x voffset
    v_lshlrev_b32 v12, 3, v9
    v_add_u32 v12, %d, v12
    s_lshl_b32 s47, s39, 6
    v_add_u32 v11, s47, v12
    s_mul_i32 s46, s37, 1152
    s_mul_i32 s47, s39, 384
    s_add_u32 s46, s46, s47          ; x soffset
    """ % rs)

def gen_one(dbg=False, sdbg=False, LMAX=12, LB=6, FLAGD=(36, 26), CHKD=25,
            POLLS=((215, 3, 0, 9), (280, 5, 9, 15), (345, 7, 15, 21), (415, 9, 21, 27)), DSP=4, VPS=2, SSP=10, PSP=5, P3D=16, P3C=(610, 636), verbose=False, XN0=5, XSP=2, TAIL='flag', EDF=(9, (0, 2, 4, 6)), MD=36, ML=36, NPRE=3, ZDIR=False, DRY=False, SIL=True, KPOS='mid', qst=None, bst=None):
    a = Asm()
    check_magic(1821, 16, 36, 2304); check_magic(7282, 16, 9, 288)
    a("s_cmp_ge_u32 s2, 256")
    a("s_cbranch_scc1 L_end")
    KT, VT = 131072, 141312
    check_magic(898, 16, 73, 640); check_magic(7282, 16, 9, 73)
    a("""
    s_load_dwordx2 s[8:9], s[0:1], 8
    s_load_dwordx2 s[12:13], s[0:1], 16
    s_load_dwordx2 s[24:25], s[0:1], 24
    s_getpc_b64 s[60:61]
    L_pc:
    s_lshr_b32 s33, s2, 3            ; rb / i
    s_lshl_b32 s62, s33, 5
    v_lshrrev_b32 v18, 3, v0         ; pair
    v_add_u32 v1, s62, v18
    v_min_u32 v1, NCODELINES, v1
    v_lshlrev_b32 v1, 7, v1
    global_load_dword v229, v1, s[60:61]
    v_lshrrev_b32 v1, 6, v0
    v_and_b32 v2, 63, v0
    v_readfirstlane_b32 s39, v1
    s_mov_b32 s10, 2359296
    s_mov_b32 s11, 0x20000
    s_mov_b32 s14, 2359296
    s_mov_b32 s15, 0x20000
    s_and_b32 s38, s2, 7             ; cg
    s_lshl_b32 s44, s33, 6
    s_mul_i32 s45, s38, 144
    s_lshr_b32 s46, s39, 1           ; 0: K tile, 1: V tile
    s_and_b32 s47, s39, 1
    s_mul_i32 s48, s47, 320          ; first chunk of this wave
    s_sub_u32 s49, s44, 4            ; first row (may be -4)
    s_mul_i32 s50, s39, 5120
    s_add_u32 s50, s50, %d
    v_mov_b32 v9, 0x80000000
    """ % KT)
    if dbg: a("s_memrealtime s[62:63]")
    for t in range(5):
        a("v_add_u32 v4, s48, v2")
        if t: a("v_add_u32 v4, %d, v4" % (64*t))
        a("v_mul_u32_u24 v5, 898, v4")
        a("v_lshrrev_b32 v5, 16, v5")
        a("v_mul_u32_u24 v6, 73, v5")
        a("v_sub_u32 v6, v4, v6")
        a("v_mul_u32_u24 v7, 7282, v6")
        a("v_lshrrev_b32 v7, 16, v7")
        a("v_mul_u32_u24 v8, 9, v7")
        a("v_sub_u32 v8, v6, v8")
        a("v_lshl_add_u32 v5, v5, 3, v7")
        a("v_add_u32 v5, s49, v5")
        a("v_cmp_gt_i32 vcc, 0, v5")
        a("v_mul_u32_u24 v5, 1152, v5")
        a("v_lshl_add_u32 v%d, v8, 4, v5" % (10+t))
        a("v_cndmask_b32 v%d, v%d, v9, vcc" % (10+t, 10+t))
    a("s_waitcnt lgkmcnt(0)")
    a("s_cmp_eq_u32 s46, 0")
    a("s_cselect_b32 s16, s8, s12")
    a("s_cselect_b32 s17, s9, s13")
    a("s_mov_b32 s18, 2359296")
    a("s_mov_b32 s19, 0x20000")
    for t in range(5):
        a("s_add_u32 m0, s50, %d" % (1024*t))
        a("s_nop 0")
        a("buffer_load_dwordx4 v%d, s[16:19], s45 offen lds" % (10+t))
    a("""
    s_mov_b32 s26, 4608
    s_mov_b32 s27, 0x20000
    s_mul_i32 s46, s38, 576
    s_mul_i32 s47, s38, 589824
    v_lshlrev_b32 v22, 4, v18
    buffer_load_dwordx4 v[48:51], v22, s[24:27], s46 offen
    s_lshl_b32 s48, s39, 4
    s_add_u32 s48, s48, s46
    v_mov_b32 v22, 512
    buffer_load_dwordx4 v[84:87], v22, s[24:27], s48 offen
    s_load_dwordx16 s[64:79], s[0:1], 0
    s_load_dwordx8 s[80:87], s[0:1], 64
    s_memrealtime s[90:91]
    v_lshlrev_b32 v3, 4, v2
    s_mov_b32 s43, 0xffff0000
    v_and_b32 v17, 7, v0             ; rg
    v_mul_u32_u24 v19, 1168, v17
    v_lshl_add_u32 v19, v18, 2, v19
    v_add_u32 v19, %d, v19           ; LDS read addr (item a)
    v_lshlrev_b32 v17, 3, v17
    v_add_u32 v17, s44, v17          ; s0
    v_lshlrev_b32 v22, 14, v18
    v_lshlrev_b32 v23, 1, v17
    v_sub_u32 v23, 4080, v23
    v_add3_u32 v22, v22, v23, s47
    v_add_u32 v23, 8192, v22
    v_lshlrev_b32 v53, 1, v2         ; item b: local row' base 2*lane
    s_lshl_b32 s48, s39, 2
    s_add_u32 s48, s48, %d
    """ % (KT, KT + 128))
    for k_ in range(3):
        a("v_add_u32 v54, %d, v53" % (2*k_))
        a("v_lshrrev_b32 v58, 3, v54")
        a("v_mul_u32_u24 v54, 144, v54")
        a("v_lshl_add_u32 v54, v58, 4, v54")
        a("v_add_u32 v%d, s48, v54" % (55+k_))
    a("""
    v_add_u32 v53, s44, v53
    s_add_u32 s48, s39, 32
    s_lshl_b32 s48, s48, 14
    s_add_u32 s48, s48, s47
    v_lshlrev_b32 v59, 1, v53
    v_sub_u32 v59, 4092, v59
    v_add_u32 v58, s48, v59
    v_add_u32 v59, 8192, v58
    """)
    a("s_waitcnt lgkmcnt(0)")
    srd(a, 16, 64, 2359296); srd(a, 20, 82, 2359296); srd(a, 28, 86, WS_SIZE); srd(a, 4, 84, 256)
    a("s_mov_b32 s92, s78\n s_mov_b32 s93, s79\n s_mov_b32 s94, s80\n s_mov_b32 s95, s81\n s_mov_b32 s96, s72\n s_mov_b32 s97, s73\n s_mov_b32 s98, s74\n s_mov_b32 s99, s75")
    if dbg: a("s_mov_b32 s64, s62")
    a("""
    s_or_b32 s62, s2, s39
    s_cmp_lg_u32 s62, 0
    s_cbranch_scc1 L_nonce_skip
    s_and_b32 s62, s90, 0xfffffff0
    s_or_b32 s62, s62, 0x80000000
    v_mov_b32 v4, s62
    v_mov_b32 v5, 0
    s_mov_b64 exec, 1
    buffer_store_dword v4, v5, s[4:7], 0 offen sc1
    s_mov_b64 exec, -1
    L_nonce_skip:
    """)
    a("""
    s_and_b32 s32, s2, 3             ; s
    s_and_b32 s34, s33, 3            ; n
    s_lshr_b32 s35, s33, 2
    s_bfe_u32 s36, s2, 0x10002
    s_lshl_b32 s36, s36, 3
    s_add_u32 s35, s35, s36          ; m
    s_lshl_b32 s36, s32, 2
    s_add_u32 s36, s36, s34          ; j
    s_lshl_b32 s37, s35, 7
    s_lshl_b32 s40, s36, 3
    s_add_u32 s37, s37, s40          ; R0
    s_mul_i32 s40, s39, 9216
    s_mul_i32 s41, s36, %d
    s_add_u32 s41, s41, s40
    s_add_u32 s41, s41, %d
    s_add_u32 s42, s41, %d
    v_mov_b32 v5, 0
    buffer_load_dword v4, v5, s[4:7], 0 offen sc1
    """ % (SLICE, W1P, W2P - W1P))
    def x_loads():
        a("s_min_u32 s47, s39, 2")
        a("s_mul_i32 s47, s47, 384")
        a("s_mul_i32 s46, s37, 1152")
        a("s_add_u32 s46, s46, s47")
        for it in range(3):
            a("buffer_load_dwordx4 v[%d:%d], v13, s[16:19], s46 offen offset:%d" % (XQ+4*it, XQ+3+4*it, it*128))
    def k_loads():
        lab = a.newlabel("L_nok")
        a("s_cmp_ge_u32 s33, 24")
        a("s_cbranch_scc1 %s" % lab)
        srd(a, 24, 96, 2359296)
        a("s_mul_i32 s48, s38, 72\n s_mul_i32 s49, s33, 3\n s_add_u32 s48, s48, s49          ; d0")
        a("s_mul_i32 s49, s39, %d" % KC_STRIDE)
        a("s_lshl_b32 s50, s39, 2")
        for ch in range(3):
            a("s_add_u32 s51, s48, %d" % ch)
            a("s_lshl_b32 s51, s51, 12")
            a("s_add_u32 s51, s51, s50")
            a("s_add_u32 s51, s51, 4")
            a("s_add_u32 m0, s49, %d" % (ch*CH_BYTES + 64))
            a("s_nop 0")
            for q in range(4): a("buffer_load_dwordx4 v3, s[24:27], s51 offen offset:%d lds" % (q*1024))
        a("""
        s_min_u32 s49, s39, 2
        v_lshrrev_b32 v4+100, 4, v2
        """.replace("v4+100", "v220").strip().split("\n")[0])
        a("""
        v_lshrrev_b32 v220, 4, v2        ; a
        v_and_b32 v221, 15, v2           ; dw
        v_add_u32 v222, v220, v221
        v_subrev_u32 v222, 15, v222
        v_lshlrev_b32 v223, 2, v222
        v_cmp_gt_i32 vcc, 0, v222
        v_mov_b32 v224, 0x80000000
        s_nop 1
        v_cndmask_b32 v223, v223, v224, vcc
        s_add_u32 s51, s48, s49
        s_lshl_b32 s51, s51, 12
        buffer_load_dword v225, v223, s[24:27], s51 offen
        s_mul_i32 s49, s49, %d
        v_mul_u32_u24 v220, %d, v220
        v_lshl_add_u32 v220, v221, 2, v220
        v_add_u32 v220, s49, v220
        v_mov_b32 v226, 0
        v_mov_b32 v227, 0
        v_lshlrev_b32 v228, 3, v2
        v_add_u32 v228, s49, v228
        v_cmp_gt_u32 vcc, 56, v2
        s_and_saveexec_b64 s[50:51], vcc
        ds_write_b64 v228, v[226:227] offset:%d
        ds_write_b64 v228, v[226:227] offset:%d
        s_mov_b64 exec, s[50:51]
        """ % (CH_BYTES, KC_STRIDE, 4*KC_STRIDE + 4096, 4*KC_STRIDE + UC_STRIDE + 4096))
        a.label(lab)
    if KPOS == 'early':
        ln_consts(a, 112640)
        srd_sh = True
        x_loads()
        a("s_mov_b32 s100, s24\n s_mov_b32 s101, s25")
        k_loads()
        a("s_cmp_ge_u32 s33, 24")
        a("s_cbranch_scc1 L_kw_pack")
        a("s_waitcnt vmcnt(17)")
        a("s_branch L_kw_done")
        a.label("L_kw_pack")
        a("s_waitcnt vmcnt(4)")
        a.label("L_kw_done")
    fstamp(a, 1)
    if KPOS != 'early': a("s_waitcnt vmcnt(1)")
    a("s_barrier")
    fstamp(a, 2)
    def koff(i): return i*144 + (16 if i >= 8 else 0)
    for i in range(0, 12, 2): a("ds_read2_b32 v[%d:%d], v19 offset0:%d offset1:%d" % (24+i, 25+i, koff(i)//4 if koff(i)//4 < 256 else 0, 0) if False else
                               ("ds_read_b32 v%d, v19 offset:%d\n ds_read_b32 v%d, v19 offset:%d" % (24+i, koff(i), 25+i, koff(i+1))))
    for e in range(9): a("ds_read_b32 v%d, v19 offset:%d" % (36+e, VT - KT + koff(3+e)))
    for i in range(6): a("ds_read_b32 v%d, v%d offset:%d" % (60+i, 55 + i//2, (i & 1)*144))
    for e, (r, o) in enumerate([(56, 144), (57, 0), (57, 144)]): a("ds_read_b32 v%d, v%d offset:%d" % (72+e, r, VT - KT + o))
    a("s_waitcnt lgkmcnt(9)")
    kv_compute(a, 16, 100)
    fstamp(a, 3)
    a("s_waitcnt lgkmcnt(0)")
    a("s_mov_b32 exec_hi, 0")
    kv_compute(a, 52, 100, 2)
    a("s_mov_b32 exec_hi, -1")
    a.label("L_kvd")
    stamp(a, dbg, 1)
    if KPOS != 'early':
        ln_consts(a, 112640)
        x_loads()
    if KPOS == 'mid':
        a("s_cmp_ge_u32 s33, 24")
        a("s_cbranch_scc1 L_sec_pack")
        k_loads()
        a("s_waitcnt vmcnt(16)")
        a("s_branch L_sec_done")
        a.label("L_sec_pack")
    a("s_waitcnt vmcnt(%d)" % (0 if KPOS == 'early' else 3)) if KPOS != 'mid' else a("s_waitcnt vmcnt(3)\n L_sec_done:")
    a("s_mov_b32 s58, 0")
    a.label("L_nonce_chk")
    a("""
    v_readfirstlane_b32 s%d, v4
    s_nop 3
    s_cmp_lg_u32 s%d, 0
    s_cbranch_scc1 L_nonce_ok
    s_add_u32 s58, s58, 1
    s_cmp_gt_u32 s58, %d
    s_cbranch_scc1 L_nonce_ok
    s_sleep 1
    buffer_load_dword v4, v5, s[4:7], 0 offen sc1
    s_waitcnt vmcnt(0)
    s_branch L_nonce_chk
    L_nonce_ok:
    s_xor_b32 s%d, s%d, 0x5bd1e995
    s_lshl_b32 s48, s38, 5
    s_add_u32 s48, s48, s33
    s_lshl_b32 s48, s48, 2
    s_add_u32 s48, s48, s39
    s_lshl_b32 s48, s48, 3
    s_add_u32 s48, s48, %d
    """ % (SN0, SN0, SPIN_MAX, SN1, SN0, FA))
    flag_store(a, 1, 48, 5, 6)
    stamp(a, dbg, 2)
    a("""
    s_lshl_b32 s48, s35, 2
    s_add_u32 s48, s48, s32
    s_lshl_b32 s48, s48, 2
    s_add_u32 s48, s48, s39
    s_lshl_b32 s48, s48, 7
    s_add_u32 s48, s48, %d
    buffer_load_dword v230, v5, s[28:31], s48 offen sc1
    s_lshl_b32 s48, s35, 2
    s_add_u32 s48, s48, s34
    s_lshl_b32 s48, s48, 2
    s_add_u32 s48, s48, s39
    s_lshl_b32 s48, s48, 7
    s_add_u32 s48, s48, %d
    buffer_load_dword v230, v5, s[28:31], s48 offen sc1
    s_lshl_b32 s48, s35, 2
    s_add_u32 s48, s48, s39
    s_lshl_b32 s48, s48, 7
    s_add_u32 s48, s48, %d
    buffer_load_dword v230, v5, s[28:31], s48 offen sc1
    s_lshl_b32 s48, s38, 11
    s_and_b32 s49, s33, 15
    s_lshl_b32 s49, s49, 7
    s_add_u32 s48, s48, s49
    s_add_u32 s48, s48, %d
    buffer_load_dword v230, v5, s[28:31], s48 offen sc1
    """ % (F2, F3, F1, FZ))
    if KPOS == 'late': k_loads()
    a("s_cmp_ge_u32 s33, 24")
    a("s_cbranch_scc1 L_pack")

    def q_precompute(waitn, w3=True):
        l3 = a.newlabel("L_q3"); ld = a.newlabel("L_qd")
        if w3:
            a("s_cmp_eq_u32 s39, 3")
            a("s_cbranch_scc1 %s" % l3)
        a("s_waitcnt vmcnt(%d)" % waitn)
        X = 120; T = 150
        for i in range(12):
            a("v_lshlrev_b32 v%d, 16, v%d" % (X+2*i, XQ+i)); a("v_and_b32 v%d, s43, v%d" % (X+2*i+1, XQ+i))
        ln_stats(a, X, T, 0)
        for i0 in range(0, 12, 4):
            chains = []
            for i in range(i0, i0+4):
                c_ = Chain(); chains.append(c_); d = 170 + 4*(i - i0)
                c_("v_pk_add_f32 v[%d:%d], v[%d:%d], v[%d:%d]" % (d, d+1, X+2*i, X+2*i+1, T, T+1)); rnd_pair(c_, d, d+2)
                c_("v_pk_mul_f32 v[%d:%d], v[%d:%d], v[%d:%d]" % (d, d+1, d, d+1, T+2, T+3))
                c_("v_cvt_pk_bf16_f32 v%d, v%d, v%d" % (XQ+12+i, d, d+1))
            interleave(a, chains)
        if w3:
            a("s_branch %s" % ld)
            a.label(l3); a("s_barrier"); a.label(ld)

    def pack_setup(nper):
        a("""
        s_movk_i32 s44, 1821
        s_movk_i32 s45, 9216
        s_mul_i32 s49, s39, %d
        s_mul_i32 s57, s39, %d
        """ % (64*nper, 1024*nper))
        for i in range(nper):
            a("v_add_u32 v196, s49, v2")
            if i: a("v_add_u32 v196, %d, v196" % (64*i))
            a("v_mul_lo_u32 v197, v196, s44")
            a("v_lshrrev_b32 v197, 16, v197")
            a("v_mul_u32_u24 v198, 36, v197")
            a("v_sub_u32 v198, v196, v198")
            a("v_mul_lo_u32 v197, v197, s45")
            a("v_lshl_add_u32 v%d, v198, 4, v197" % (176+i))
        srd(a, 8, 92, 5308416); srd(a, 12, 94, 5308416)
    def pack_setup2():
        a("""
        v_lshrrev_b32 v192, 4, v2
        v_bfe_u32 v193, v2, 2, 2
        v_lshl_add_u32 v194, v192, 3, v193
        v_mul_u32_u24 v194, 576, v194
        v_and_b32 v195, 3, v2
        v_lshl_add_u32 v194, v195, 3, v194
        s_lshr_b32 s46, s39, 1
        s_and_b32 s47, s39, 1
        s_mul_i32 s50, s46, 18432
        s_mul_i32 s51, s47, 288
        s_add_u32 s50, s50, s51
        v_add_u32 v189, s50, v194
        v_lshl_add_u32 v194, v192, 2, v193
        v_mul_u32_u24 v194, 1152, v194
        v_lshl_add_u32 v194, v195, 3, v194
        v_mov_b32 v190, v194
        """)
    def conv_strip(f1, f2):
        l2 = a.newlabel("L_cs"); ld = a.newlabel("L_csd")
        a("s_cmp_ge_u32 s2, 144"); a("s_cbranch_scc1 %s" % l2)
        a("s_mov_b32 s52, s2"); f1(SBUF); a("s_branch %s" % ld)
        a.label(l2); a("s_sub_u32 s52, s2, 144"); f2(SBUF)
        a.label(ld)
    def issue_w1(slot, nper=12):
        a("s_mul_i32 s53, s52, 7282\n s_lshr_b32 s53, s53, 16\n s_mul_i32 s54, s53, 9\n s_sub_u32 s54, s52, s54")
        a("s_mul_i32 s54, s54, 589824\n s_mul_i32 s53, s53, 576\n s_add_u32 s54, s54, s53")
        for i in range(nper):
            a("s_add_u32 m0, s57, %d" % (slot + 1024*i))
            a("s_nop 0")
            a("buffer_load_dwordx4 v%d, s[8:11], s54 offen nt lds" % (176+i))
    def issue_w2(slot, nper=12):
        a("s_mul_i32 s54, s52, 36864\n s_add_u32 s54, s54, s57")
        for i in range(nper):
            if i % 4 == 0:
                a("s_add_u32 m0, s57, %d" % (slot + 1024*i))
                a("s_add_u32 s53, s54, %d" % (1024*i))
            a("buffer_load_dwordx4 v3, s[12:15], s53 offen offset:%d nt lds" % ((i % 4)*1024))
    def proc_w1(slot, D):
        a("v_add_u32 v191, %d, v189" % (slot))
        for i in range(9):
            a("ds_read_b64_tr_b16 v[%d:%d], v191 offset:%d" % (D+4*i, D+1+4*i, 32*i))
            a("ds_read_b64_tr_b16 v[%d:%d], v191 offset:%d" % (D+2+4*i, D+3+4*i, 32*i + 4*576))
        a("s_mul_i32 s53, s52, 7282\n s_lshr_b32 s53, s53, 16\n s_mul_i32 s54, s53, 9\n s_sub_u32 s54, s52, s54")
        a("s_mul_i32 s50, s53, %d\n s_add_u32 s50, s50, %d" % (SLICE, W1P))
        a("s_lshl_b32 s51, s54, 1\n s_add_u32 s51, s51, s46")
        a("s_lshl_b32 s53, s53, 9\n s_lshl_b32 s54, s54, 5\n s_add_u32 s49, s53, s54\n s_lshl_b32 s54, s39, 3\n s_add_u32 s49, s49, s54\n s_add_u32 s49, s49, %d" % FP1)
        for i in range(9):
            a("s_mul_i32 s53, s47, 9\n s_add_u32 s53, s53, %d" % i)
            a("s_mul_i32 s54, s51, 6\n s_add_u32 s54, s54, s53\n s_lshl_b32 s54, s54, 10")
            a("s_lshr_b32 s55, s53, 1\n s_mul_i32 s55, s55, 36\n s_lshl_b32 s56, s51, 1\n s_add_u32 s55, s55, s56")
            a("s_and_b32 s56, s53, 1\n s_add_u32 s55, s55, s56\n s_lshl_b32 s55, s55, 10")
            a("s_cmp_lt_u32 s53, 6\n s_cselect_b32 s55, s54, s55\n s_add_u32 s55, s55, s50")
            a("s_waitcnt lgkmcnt(%d)" % min(14, 16 - 2*i))
            a("buffer_store_dwordx4 v[%d:%d], v3, s[28:31], s55 offen sc1" % (D+4*i, D+3+4*i))
    def proc_w2(slot, vw, D):
        a("v_add_u32 v191, %d, v190" % (slot + 288*vw))
        for i in range(9):
            a("ds_read_b64_tr_b16 v[%d:%d], v191 offset:%d" % (D+4*i, D+1+4*i, 32*i))
            a("ds_read_b64_tr_b16 v[%d:%d], v191 offset:%d" % (D+2+4*i, D+3+4*i, 32*i + 16*1152))
        a("""
        s_mul_i32 s53, s52, 1821
        s_lshr_b32 s53, s53, 16          ; s
        s_mul_i32 s54, s53, 36
        s_sub_u32 s54, s52, s54          ; kk%%36
        s_lshl_b32 s60, s53, 2
        s_add_u32 s60, s60, VW
        s_lshl_b32 s49, s60, 9
        s_lshl_b32 s55, s54, 3
        s_add_u32 s49, s49, s55
        s_add_u32 s49, s49, %d           ; flag addr
        s_mul_i32 s55, s54, 7282
        s_lshr_b32 s55, s55, 16          ; nb
        s_mul_i32 s56, s55, 9
        s_sub_u32 s56, s54, s56          ; k9
        s_sub_u32 s50, s55, VW
        s_sub_u32 s50, s50, 1
        s_and_b32 s50, s50, 3            ; pr
        s_mul_i32 s51, s56, 3
        s_add_u32 s51, s51, s50
        s_add_u32 s53, s51, 27
        s_add_u32 s54, s51, 45
        s_add_u32 s57, s51, 45
        s_add_u32 s61, s51, 54
        s_cmp_ge_u32 s56, 6
        s_cselect_b32 s53, s57, s53
        s_cselect_b32 s54, s61, s54
        s_add_u32 s55, s51, 81
        s_add_u32 s57, s56, 9
        s_add_u32 s61, s56, 18
        s_cmp_eq_u32 s50, 3
        s_cselect_b32 s53, s56, s53
        s_cselect_b32 s54, s57, s54
        s_cselect_b32 s55, s61, s55
        s_mul_i32 s60, s60, %d
        s_add_u32 s60, s60, %d
        s_mul_i32 s53, s53, 3072
        s_mul_i32 s54, s54, 3072
        s_mul_i32 s55, s55, 3072
        s_add_u32 s53, s53, s60
        s_add_u32 s54, s54, s60
        s_add_u32 s55, s55, s60
        """.replace("VW", str(vw)) % (FP2, SLICE, W2P))
        for i in range(9):
            a("s_waitcnt lgkmcnt(%d)" % min(14, 16 - 2*i))
            a("buffer_store_dwordx4 v[%d:%d], v3, s[28:31], s%d offen offset:%d sc1" % (D+4*i, D+3+4*i, 53 + i//3, (i%3)*1024))
    srd(a, 4, 98, 1152)
    a("""
    s_mul_i32 s48, s38, 72
    s_mul_i32 s49, s33, 3
    s_add_u32 s48, s48, s49          ; d0
    s_lshl_b32 s49, s48, 1
    buffer_load_ushort v24, v5, s[4:7], s49 offen
    buffer_load_ushort v25, v5, s[4:7], s49 offen offset:2
    buffer_load_ushort v26, v5, s[4:7], s49 offen offset:4
    s_cmp_eq_u32 s39, 3
    s_cbranch_scc1 L_cw3
    """)
    q_precompute(8 if KPOS == 'early' else 21, False)
    a("s_waitcnt vmcnt(0)")
    a("ds_write_b32 v220, v225")
    a("s_branch L_cwd")
    a.label("L_cw3")
    a("s_barrier")
    a("""
    s_lshl_b32 s49, s38, 10
    s_add_u32 s49, s49, %d
    """ % FA)
    flag_load(a, 224, 3, 49, True)
    poll(a, 0, [(224, 3, 49, True, 0, FULL)], 1, 20, "L_pfa", alt=16)
    stamp(a, dbg, 3)
    for ch in range(3):
        for cp in range(2):
            a("s_add_u32 s52, s48, %d" % ch)
            a("s_lshl_b32 s52, s52, 13")
            a("s_add_u32 s52, s52, %d" % (UG + cp*4096))
            a("s_mov_b32 m0, %d" % (4*KC_STRIDE + ch*CH_BYTES + cp*UC_STRIDE))
            a("s_nop 0")
            for q in range(4): a("buffer_load_dwordx4 v3, s[28:31], s52 offen offset:%d sc1 lds" % (q*1024))
    a("s_waitcnt vmcnt(0)")
    a.label("L_cwd")
    a("""
    v_and_b32 v4, 15, v2
    v_lshrrev_b32 v5, 4, v2
    v_and_b32 v6, 3, v4
    v_lshrrev_b32 v7, 2, v4
    v_sub_u32 v7, v7, v5
    v_lshlrev_b32 v7, 4, v7
    v_add_u32 v7, 48, v7
    v_mul_u32_u24 v6, %d, v6
    v_add_u32 v20, v6, v7
    v_and_b32 v6, 1, v4
    v_lshrrev_b32 v7, 1, v4
    v_lshlrev_b32 v7, 6, v7
    v_lshl_add_u32 v7, v5, 4, v7
    v_sub_u32 v7, %d, v7
    v_mul_u32_u24 v6, %d, v6
    v_add_u32 v21, v6, v7
    """ % (KC_STRIDE, 496 + 4*KC_STRIDE, UC_STRIDE))
    a("s_waitcnt lgkmcnt(0)")
    a("s_barrier")
    stamp(a, dbg, 4)
    a("s_mov_b32 s8, s92\n s_mov_b32 s9, s93\n s_mov_b32 s10, 5308416\n s_mov_b32 s11, 0x20000")
    a("s_mov_b32 s12, s94\n s_mov_b32 s13, s95\n s_mov_b32 s14, 5308416\n s_mov_b32 s15, 0x20000")
    if SIL:
        a("s_mul_i32 s57, s39, 12288")
        a("s_mul_i32 s54, s2, 36864")
        a("s_add_u32 s54, s54, s57")
    else:
        a("s_cmp_eq_u32 s39, 3")
        a("s_cbranch_scc1 L_nostrip")
        a("s_cmp_ge_u32 s2, 144")
        a("s_cbranch_scc1 L_nostrip")
        a("s_mul_i32 s57, s39, 12288")
        a("s_mov_b32 s52, s2")
        issue_w2(SBUF, 12)
    a.label("L_nostrip")
    RED = 3*CH_BYTES
    units_of = {0: [(0,p) for p in range(6)], 1: [(0,6),(0,7)]+[(1,p) for p in range(4)],
                2: [(1,p) for p in range(4,8)]+[(2,0),(2,1)], 3: [(2,p) for p in range(2,8)]}
    setid = {0: {0:0}, 1: {0:1, 1:2}, 2: {1:3, 2:4}, 3: {2:5}}
    for w in range(4):
        if w: a.label("L_mm%d" % w)
        if w < 3:
            a("s_cmp_lg_u32 s39, %d" % w)
            a("s_cbranch_scc1 L_mm%d" % (w+1))
        units = units_of[w]
        chs = sorted(set(c for c,_ in units))
        accbase = {c: 160 + 32*i for i, c in enumerate(chs)}
        started = set()
        def reads(ui):
            ch, phi = units[ui]
            fb = 32 + 64*(ui & 1)
            out = []
            for n in range(8):
                out.append("ds_read_b128 v[%d:%d], v21 offset:%d" % (fb+32+4*n, fb+35+4*n, ch*CH_BYTES + 3584 - 512*n + 64*phi))
                out.append("ds_read_b128 v[%d:%d], v20 offset:%d" % (fb+4*n, fb+3+4*n, ch*CH_BYTES + 512*n + 64*phi))
            return out
        for l in reads(0): a(l)
        for ui, (ch, phi) in enumerate(units):
            fb = 32 + 64*(ui & 1)
            nxt = reads(ui+1) if ui+1 < len(units) else []
            k = 0
            for t in range(8):
                if ui == 0: a("s_waitcnt lgkmcnt(%d)" % min(15, 14 - 2*t + (16 - len(nxt) if nxt is not None else 0)))
                elif t == 0: a("s_waitcnt lgkmcnt(0)")
                for ap in range(t+1):
                    ac = accbase[ch] + 4*t
                    j = t - ap
                    c_ = "v[%d:%d]" % (ac, ac+3) if (ch, t) in started else "0"
                    started.add((ch, t))
                    a("v_mfma_f32_16x16x32_bf16 v[%d:%d], v[%d:%d], v[%d:%d], %s" % (ac, ac+3, fb+32+4*j, fb+35+4*j, fb+4*ap, fb+3+4*ap, c_))
                    k += 1
                    if k % 2 == 0 and nxt and (ui > 0 or t >= 4): a(nxt.pop(0))
                    if SIL and w < 3 and ui in (1, 2) and k % 6 == 3:
                        i_ = (ui-1)*6 + k//6
                        if i_ % 4 == 0:
                            a("s_add_u32 m0, s57, %d" % (SBUF + 1024*i_))
                            a("s_add_u32 s53, s54, %d" % (1024*i_))
                        a("buffer_load_dwordx4 v3, s[12:15], s53 offen offset:%d nt lds" % ((i_ % 4)*1024))
            while nxt: a(nxt.pop(0))
        a("s_nop 7\n s_nop 7")
        a("v_lshlrev_b32 v6, 8, v5\n v_lshl_add_u32 v6, v4, 3, v6")
        for c in chs:
            a("v_add_u32 v7, %d, v6" % (RED + setid[w][c]*8192))
            for t in range(8):
                ac = accbase[c] + 4*t
                a("ds_write_b64 v7, v[%d:%d] offset:%d" % (ac, ac+1, 1024*t))
                a("ds_write_b64 v7, v[%d:%d] offset:%d" % (ac+2, ac+3, 1024*t + 128))
        if w < 3: a("s_branch L_mmd")
    a.label("L_mmd")
    fstamp(a, 9)
    stamp(a, dbg, 5)
    a("""
    v_lshlrev_b32 v9, 5, v0
    v_lshlrev_b32 v10, 4, v0
    v_sub_u32 v11, %d, v10
    s_waitcnt lgkmcnt(0)
    s_barrier
    """ % (4080 + 4*KC_STRIDE))
    for c in range(3):
        b = 32 + 24*c
        a("v_add_u32 v12, %d, v9" % (RED + 2*c*8192))
        a("ds_read_b128 v[%d:%d], v12" % (b, b+3))
        a("ds_read_b128 v[%d:%d], v12 offset:16" % (b+4, b+7))
        a("ds_read_b128 v[%d:%d], v12 offset:8192" % (b+8, b+11))
        a("ds_read_b128 v[%d:%d], v12 offset:8208" % (b+12, b+15))
        a("ds_read_b128 v[%d:%d], v11 offset:%d" % (b+16, b+19, c*CH_BYTES + UC_STRIDE))
    fstamp(a, 10)
    for c in range(3): a("v_lshlrev_b32 v%d, 16, v%d" % (24+c, 24+c))
    for c in range(3):
        b = 32 + 24*c
        a("s_waitcnt lgkmcnt(%d)" % (10 - 5*c))
        chains = []
        for e in range(0, 8, 2):
            c_ = Chain(); chains.append(c_)
            t = 110 + 2*e + 0; o = 130 + 4*c + e//2; q = 3 - e//2
            c_("v_pk_add_f32 v[%d:%d], v[%d:%d], v[%d:%d]" % (b+e, b+e+1, b+e, b+e+1, b+8+e, b+9+e))
            c_("v_lshlrev_b32 v%d, 16, v%d" % (b+9+e, b+16+q))
            c_("v_and_b32 v%d, s43, v%d" % (b+8+e, b+16+q))
            rnd_pair(c_, b+e, t)
            c_("v_mul_f32 v%d, v%d, v%d" % (b+8+e, b+8+e, 24+c))
            c_("v_mul_f32 v%d, v%d, v%d" % (b+9+e, b+9+e, 24+c))
            rnd_pair(c_, b+8+e, t+1)
            c_("v_pk_add_f32 v[%d:%d], v[%d:%d], v[%d:%d]" % (b+e, b+e+1, b+e, b+e+1, b+8+e, b+9+e))
            c_("v_cvt_pk_bf16_f32 v%d, v%d, v%d" % (o, b+e, b+e+1))
        interleave(a, chains)
        b = 130 + 4*c - 16
        if ZDIR:
            a("s_add_u32 s49, s48, %d" % c)
            a("s_mul_i32 s49, s49, %d" % ZTS)
            a("s_add_u32 s49, s49, %d" % ZT)
            a("buffer_store_dwordx4 v[%d:%d], v10, s[28:31], s49 offen sc1" % (b+16, b+19))
        else:
            a("ds_write_b128 v10, v[%d:%d] offset:%d" % (b+16, b+19, c*CH_BYTES))
    if ZDIR:
        a("""
        s_waitcnt vmcnt(0)
        s_barrier
        s_cmp_lg_u32 s39, 3
        s_cbranch_scc1 L_fzs
        """)
    else:
        a("""
        s_waitcnt lgkmcnt(0)
        s_barrier
        s_cmp_lg_u32 s39, 3
        s_cbranch_scc1 L_fzs
        """)
        for c in range(3):
            for q in range(4): a("ds_read_b128 v[%d:%d], v3 offset:%d" % (32+16*c+4*q, 35+16*c+4*q, c*CH_BYTES + q*1024))
        for c in range(3):
            a("s_add_u32 s49, s48, %d" % c)
            a("s_mul_i32 s49, s49, %d" % ZTS)
            a("s_add_u32 s49, s49, %d" % ZT)
            for q in range(4):
                a("s_waitcnt lgkmcnt(%d)" % (11 - 4*c - q))
                a("buffer_store_dwordx4 v[%d:%d], v3, s[28:31], s49 offen offset:%d sc1" % (32+16*c+4*q, 35+16*c+4*q, q*1024))
    a("""
    s_mul_i32 s49, s38, 24
    s_add_u32 s49, s49, s33
    s_lshl_b32 s49, s49, 3
    s_add_u32 s49, s49, %d
    v_lshlrev_b32 v5, 11, v2
    s_add_u32 s61, s%d, 1
    v_mov_b32 v6, s61
    v_mov_b32 v7, s%d
    s_waitcnt vmcnt(0)
    s_mov_b64 exec, 0xff
    buffer_store_dwordx2 v[6:7], v5, s[28:31], s49 offen sc1
    s_mov_b64 exec, -1
    """ % (FZ, SN0, SN1))
    a.label("L_fzs")
    fstamp(a, 11)
    stamp(a, dbg, 6)
    a("s_waitcnt vmcnt(0)")
    a("s_barrier")
    a("s_branch L_join")

    a.label("L_pack")
    pack_setup(9); pack_setup2()
    a("s_sub_u32 s48, s2, 192")
    a("v_mov_b32 v5, 0")
    a("s_mov_b32 s52, s48"); issue_w1(0, 9)
    a("s_add_u32 s52, s48, 64"); issue_w1(36864, 9)
    a("s_cmp_ge_u32 s48, 16")
    a("s_cbranch_scc1 L_pack2")
    a("s_add_u32 s52, s48, 128"); issue_w1(73728, 9)
    q_precompute(32)
    a("s_waitcnt vmcnt(18)\n s_barrier")
    a("s_mov_b32 s52, s48"); proc_w1(0, 32); a("s_mov_b32 s100, s49")
    a("s_waitcnt vmcnt(18)\n s_barrier")
    a("s_add_u32 s52, s48, 64"); proc_w1(36864, 68); a("s_mov_b32 s101, s49")
    a("s_waitcnt vmcnt(18)\n s_barrier")
    a("s_add_u32 s52, s48, 128"); proc_w1(73728, 104)
    a("s_waitcnt vmcnt(0)")
    flag_store(a, 1, 49, 5, 6)
    a("s_branch L_pack_fin")
    a.label("L_pack2")
    q_precompute(23)
    a("s_waitcnt vmcnt(9)\n s_barrier")
    a("s_mov_b32 s52, s48"); proc_w1(0, 32); a("s_mov_b32 s100, s49")
    a("s_waitcnt vmcnt(9)\n s_barrier")
    a("s_add_u32 s52, s48, 64"); proc_w1(36864, 68); a("s_mov_b32 s101, s49")
    a.label("L_pack_fin")
    a("s_waitcnt vmcnt(0)")
    flag_store(a, 1, 100, 5, 6)
    flag_store(a, 1, 101, 5, 6)
    stamp(a, dbg, 6)
    a("s_barrier")

    a.label("L_join")
    vm = VM()
    for sl in range(4): a("v_add_u32 v%d, %d, v3" % (4+sl, sl*36864))
    a("s_lshl_b32 s45, s38, 11")
    a("s_add_u32 s45, s45, %d" % FZ)
    def dma(stage, i, S_=None):
        slot = stage % 4
        if i % 4 == 0:
            a_ = a if S_ is None else S_.a
            a_("s_add_u32 m0, s40, %d" % (slot*36864 + i*1024))
            if stage < 9: a_("s_add_u32 s44, s41, %d" % (stage*36864 + i*1024))
            else:         a_("s_add_u32 s44, s42, %d" % ((stage-9)*36864 + i*1024))
        (a if S_ is None else S_.a)("buffer_load_dwordx4 v3, s[28:31], s44 offen offset:%d sc1 lds" % ((i % 4)*1024))
    ln_consts(a, RS)
    a("""
    v_lshlrev_b32 v8, 13, v2
    s_min_u32 s50, s39, 2
    s_mul_i32 s48, s50, 1572864
    s_lshl_b32 s49, s37, 1
    s_add_u32 s48, s48, s49
    s_add_u32 s48, s48, %d
    s_mul_i32 s49, s50, 3072
    v_lshrrev_b32 v14, 4, v2
    v_lshlrev_b32 v14, 8, v14
    v_bfe_u32 v15, v2, 1, 1
    v_lshl_add_u32 v14, v15, 7, v14
    v_bfe_u32 v15, v2, 2, 2
    v_lshl_add_u32 v14, v15, 4, v14
    v_and_b32 v15, 1, v2
    v_lshl_add_u32 v14, v15, 3, v14
    v_add_u32 v14, s49, v14
    v_add_u32 v14, %d, v14
    s_cmp_eq_u32 s39, 3
    s_cbranch_scc1 L_w3
    """ % (ZT, ZL))
    a("v_mov_b32 v150, %d" % LW)
    a("s_cmp_lg_u32 s39, 0")
    a("s_cbranch_scc1 L_fz_lds")
    flag_load(a, 208, 3, 45, True); flag_load(a, 212, 3, 45, True, 1024)
    poll(a, 0, [(208, 3, 45, True, 0, FULL), (212, 3, 45, True, 1024, (1 << 32) - 1)], 1, 18, "L_pfz", alt=216)
    a("v_mov_b32 v151, s%d" % SN0)
    a("ds_write_b32 v150, v151")
    a("s_branch L_fz_go")
    a.label("L_fz_lds")
    a("s_mov_b32 s58, 0")
    a.label("L_fz_spin")
    a("""
    ds_read_b32 v151, v150
    s_waitcnt lgkmcnt(0)
    v_readfirstlane_b32 s59, v151
    s_add_u32 s58, s58, 1
    s_cmp_eq_u32 s59, s%d
    s_cbranch_scc1 L_fz_go
    s_cmp_gt_u32 s58, 4000000
    s_cbranch_scc1 L_fz_go
    s_sleep 1
    s_branch L_fz_spin
    """ % SN0)
    a.label("L_fz_go")
    stamp(a, dbg, 7)
    for it in range(3):
        a("s_add_u32 m0, s49, %d" % (ZL + it*1024))
        a("s_add_u32 s47, s48, %d" % (it*524288))
        a("buffer_load_dwordx4 v8, s[28:31], s47 offen sc1 lds")
    X = 40; Q = 64; Hh = 88; T = 120
    for i in range(12):
        a("v_lshlrev_b32 v%d, 16, v%d" % (X+2*i, XQ+i)); a("v_and_b32 v%d, s43, v%d" % (X+2*i+1, XQ+i))
        a("v_lshlrev_b32 v%d, 16, v%d" % (Q+2*i, XQ+12+i)); a("v_and_b32 v%d, s43, v%d" % (Q+2*i+1, XQ+12+i))
    a("s_waitcnt vmcnt(0)")
    stamp(a, dbg, 8)
    fstamp(a, 4)
    for it in range(3):
        a("ds_read_b64_tr_b16 v[%d:%d], v14 offset:%d" % (28+4*it, 29+4*it, it*1024))
        a("ds_read_b64_tr_b16 v[%d:%d], v14 offset:%d" % (30+4*it, 31+4*it, it*1024 + 64))
    a("s_waitcnt lgkmcnt(0)")
    for i0 in range(0, 12, 4):
        chains = []
        for i in range(i0, i0+4):
            c_ = Chain(); chains.append(c_); d = 140 + 6*(i - i0)
            c_("v_lshlrev_b32 v%d, 16, v%d" % (d+2, 28+i))
            c_("v_and_b32 v%d, s43, v%d" % (d+3, 28+i))
            c_("v_pk_mul_f32 v[%d:%d], v[%d:%d], v[%d:%d]" % (d, d+1, Q+2*i, Q+2*i+1, d+2, d+3)); rnd_pair(c_, d, d+4)
            c_("v_pk_add_f32 v[%d:%d], v[%d:%d], v[%d:%d]" % (Hh+2*i, Hh+2*i+1, X+2*i, X+2*i+1, d, d+1)); rnd_pair(c_, Hh+2*i, 232+i)
        interleave(a, chains)
    fstamp(a, 5)
    a("s_add_u32 s101, s46, %d" % HB)
    a("v_mov_b32 v249, v13")
    ln_stats(a, Hh, T, 1, spin=SN0)
    fstamp(a, 6)
    for i0 in range(0, 12, 4):
        chains = []
        for i in range(i0, i0+4):
            c_ = Chain(); chains.append(c_); d = 140 + 4*(i - i0)
            c_("v_pk_add_f32 v[%d:%d], v[%d:%d], v[%d:%d]" % (d, d+1, Hh+2*i, Hh+2*i+1, T, T+1)); rnd_pair(c_, d, d+2)
            c_("v_pk_mul_f32 v[%d:%d], v[%d:%d], v[%d:%d]" % (d, d+1, d, d+1, T+2, T+3))
            c_("v_cvt_pk_bf16_f32 v%d, v%d, v%d" % (28+i, d, d+1))
        interleave(a, chains)
    a("""
    v_lshrrev_b32 v8, 5, v2
    v_lshlrev_b32 v8, 10, v8
    v_bfe_u32 v15, v2, 3, 2
    v_lshl_add_u32 v8, v15, 8, v8
    v_lshl_add_u32 v8, v9, 4, v8
    s_lshr_b32 s47, s37, 4
    s_mul_i32 s47, s47, 18
    s_mul_i32 s48, s39, 6
    s_add_u32 s47, s47, s48
    s_and_b32 s48, s36, 1
    s_lshl_b32 s48, s48, 7
    s_add_u32 s48, s48, %d
    """ % (UG + 4096))
    for it in range(3):
        a("s_add_u32 s49, s47, %d" % (2*it))
        a("s_lshr_b32 s50, s49, 2")
        a("s_lshl_b32 s50, s50, 13")
        a("s_and_b32 s49, s49, 3")
        a("s_lshl_b32 s49, s49, 10")
        a("s_add_u32 s50, s50, s49")
        a("s_add_u32 s50, s50, s48")
        a("buffer_store_dwordx4 v[%d:%d], v8, s[28:31], s50 offen sc1" % (28+4*it, 31+4*it))
    a("""
    s_lshl_b32 s47, s35, 2
    s_add_u32 s47, s47, s32
    s_lshl_b32 s47, s47, 7
    s_lshl_b32 s48, s34, 5
    s_add_u32 s47, s47, s48
    s_lshl_b32 s48, s39, 3
    s_add_u32 s47, s47, s48
    s_add_u32 s47, s47, %d
    v_mov_b32 v8, 0
    """ % F1)
    fstamp(a, 7)
    a("s_waitcnt vmcnt(0)")
    fstamp(a, 8)
    flag_store(a, 1, 47, 8, 16)
    a("s_branch L_lnd")
    a.label("L_w3")
    a("""
    v_mov_b32 v249, 0x80000000
    v_lshlrev_b32 v8, 3, v2
    s_lshl_b32 s101, s36, 9
    s_add_u32 s101, s101, %d
    v_mov_b32 v10, 0
    """ % FP1)
    flag_load(a, 16, 8, 101)
    a("s_cmp_ge_u32 s2, 144")
    a("s_cbranch_scc1 L_w3_nostrip")
    pack_setup2()
    a("s_mov_b32 s52, s2")
    for vw in range(4): proc_w2(SBUF, vw, 32 + 36*vw)
    a("s_mov_b32 s100, s49")
    a("s_branch L_w3_chk")
    a.label("L_w3_nostrip")
    a("s_waitcnt vmcnt(0)")
    a.label("L_w3_chk")
    poll(a, 36, [(16, 8, 101, False, 0, (1 << 36) - 1)], 1, 18, "L_pp1")
    a("s_sub_u32 s46, s41, s40")
    for st in range(NPRE):
        for i in range(36):
            if i % 4 == 0:
                a("s_mov_b32 m0, %d" % (st*36864 + i*1024))
                a("s_add_u32 s44, s46, %d" % (st*36864 + i*1024))
            a("buffer_load_dwordx4 v3, s[28:31], s44 offen offset:%d sc1 lds" % ((i % 4)*1024))
    a("s_cmp_ge_u32 s2, 144")
    a("s_cbranch_scc1 L_lnd")
    a("s_waitcnt vmcnt(%d)" % min(63, 36*NPRE))
    for vw in range(4):
        a("s_sub_u32 s49, s100, %d" % (512*(3-vw)))
        flag_store(a, 1, 49, 10, 16)
    a.label("L_lnd")
    stamp(a, dbg, 9)
    a("""
    s_lshl_b32 s45, s35, 2
    s_add_u32 s45, s45, s39
    s_mul_i32 s46, s45, %d
    s_add_u32 s46, s46, %d
    s_mul_i32 s47, s36, 9216
    s_add_u32 s47, s47, s46
    s_lshl_b32 s48, s35, 2
    s_add_u32 s48, s48, s32
    s_lshl_b32 s48, s48, 2
    s_add_u32 s48, s48, s39
    s_lshl_b32 s48, s48, 7
    s_add_u32 s48, s48, %d
    s_lshl_b32 s49, s35, 2
    s_add_u32 s49, s49, s34
    s_lshl_b32 s49, s49, 2
    s_add_u32 s49, s49, s39
    s_mul_i32 s50, s49, 73728
    s_add_u32 s50, s50, %d
    s_lshl_b32 s49, s49, 7
    s_add_u32 s49, s49, %d
    v_and_b32 v8, 3, v2
    v_lshlrev_b32 v8, 3, v8
    v_mov_b32 v10, 0
    s_lshl_b32 s51, s34, 3
    s_add_u32 s51, s51, s48
    s_lshl_b32 s52, s32, 3
    s_add_u32 s52, s52, s49
    v_lshlrev_b32 v9, 3, v2
    s_lshl_b32 s100, s36, 9
    s_add_u32 s100, s100, %d
    """ % (2*HFS, HF, F2, PART, F3, FP2))
    for pr in range(3):
        a("s_add_u32 s%d, s34, %d" % (53+pr, 1+pr))
        a("s_and_b32 s%d, s%d, 3" % (53+pr, 53+pr))
        a("s_lshl_b32 s56, s32, 2")
        a("s_add_u32 s%d, s%d, s56" % (53+pr, 53+pr))
        a("s_mul_i32 s%d, s%d, 9216" % (53+pr, 53+pr))
        a("s_add_u32 s%d, s%d, s46" % (53+pr, 53+pr))
    a("""
    v_and_b32 v11, 15, v2
    v_mul_u32_u24 v11, 1152, v11
    v_lshrrev_b32 v12, 4, v2
    v_lshl_add_u32 v11, v12, 3, v11
    s_lshl_b32 s56, s35, 7
    s_lshl_b32 s57, s39, 5
    s_add_u32 s56, s56, s57
    s_mul_i32 s56, s56, 1152
    s_mul_i32 s57, s34, 288
    s_add_u32 s56, s56, s57
    s_add_u32 s57, s56, %d
    s_lshl_b32 s93, s32, 12
    s_add_u32 s93, s93, s50
    s_add_u32 s94, s93, 65536
    s_add_u32 s93, s93, 49152
    s_cmp_lt_u32 s32, 2
    s_cselect_b32 s94, s94, s93
    s_mov_b32 s95, 0
    v_mov_b32 v252, -1
    v_mov_b32 v253, -1
    v_mov_b32 v254, -1
    v_mov_b32 v255, -1
    """ % HB)
    a("""
    s_lshl_b32 s92, s35, 2
    s_add_u32 s92, s92, s39
    s_lshl_b32 s92, s92, 7
    s_add_u32 s92, s92, %d
    v_and_b32 v12, 15, v2
    v_lshlrev_b32 v12, 3, v12
    """ % F1)
    flag_load(a, 224, 12, 92)
    poll(a, 0, [(224, 12, 92, False, 0, 0x7777)], 1, 18, "L_pf1", alt=226)
    stamp(a, dbg, 10)
    a("""
    s_lshl_b32 s92, s35, 3
    s_lshl_b32 s45, s39, 1
    s_add_u32 s92, s92, s45
    s_mul_i32 s92, s92, 36864
    s_add_u32 s92, s92, %d
    """ % (UG + 4096))
    xn_seq = {}
    def xn_load(a, vm_, ks, mt):
        f_ = mt*18 + ks
        off = (f_ >> 2)*8192 + (f_ & 3)*1024
        a("s_add_u32 s45, s92, %d" % (off - off % 4096))
        r = (ks*2+mt)*4
        a("buffer_load_dwordx4 a[%d:%d], v3, s[28:31], s45 offen offset:%d sc1" % (r, r+3, off % 4096))
        xn_seq[(ks, mt)] = vm_.issue()
    for ks in range(XN0):
        for mt in range(2): xn_load(a, vm, ks, mt)
    units = order_units()
    NF = 648
    SPLITQ = 536
    def frag_mfmas(gf):
        st, f = divmod(gf, 36)
        rb = VB + (gf % RING)*4
        out = []
        if st < 9:
            if st < 3: ks = 6*st + f // 6; T_ = f % 6
            else:      ks = f // 2; T_ = 2*st + (f & 1)
            for mt in range(2):
                ac = acc1_reg(T_, mt); xr = (ks*2+mt)*4
                src = "0" if ks == 0 else "v[%d:%d]" % (ac, ac+3)
                out.append("v_mfma_f32_16x16x32_bf16 v[%d:%d], v[%d:%d], a[%d:%d], %s" % (ac, ac+3, rb, rb+3, xr, xr+3, src))
        else:
            uu, tt = divmod(gf - 324, 3)
            c2, (kind, pr, k9) = units[uu]
            first = uu in (0, 9, 18)
            for mt in range(2):
                ac = acc2_reg(c2, tt, mt)
                if kind == "o": hr = "v[%d:%d]" % (HO + (k9*2+mt)*4, HO + (k9*2+mt)*4 + 3)
                else:
                    r = areg_partner(pr, k9, mt); hr = "a[%d:%d]" % (r, r+3)
                src = "0" if first else "v[%d:%d]" % (ac, ac+3)
                out.append("v_mfma_f32_16x16x32_bf16 v[%d:%d], v[%d:%d], %s, %s" % (ac, ac+3, rb, rb+3, hr, src))
        return out
    class S: pass
    def tau_info(tau):
        c2, r = divmod(tau, 6); tt, mt = divmod(r, 2)
        return c2, tt, mt
    def build_tasks(svar):
        tasks = {}
        def at(q, fn): tasks.setdefault(q, []).append(fn)
        busy = set()
        edf = []
        if EDF:
            allowed = lambda q: (q % EDF[0]) in EDF[1]
            def vslot(q):
                while q in busy or not allowed(q): q += 1
                busy.add(q); return q
            for st in range(NPRE, 18):
                for i in range(9):
                    def dm(a, S_, st=st, i=i): dma(st, i); S_.dseq[st] = S_.vm.issue()
                    edf.append((max(0, 36*(st-3) - LB) + 1, 36*st - LB - (MD if st > 2 else 20), len(edf), dm))
        else:
            for nb in range(15):
                b0 = max(0, 36*nb - LB)
                for i in range(9): busy.add(b0 + 1 + (DSP if nb else 3)*i)
            def vslot(q):
                while q in busy or (q-1) in busy or (q+1) in busy: q += 1
                busy.add(q); return q
        qw = vslot(100)
        def wl(a, S_): flag_load(a, 12, 9, 100); S_.fseq = S_.vm.issue()
        at(qw, wl)
        def wc(a, S_): poll(a, S_.vm.wait_cnt(S_.fseq), [(12, 9, 100, False, 0, (1 << 36) - 1)], 1, 14, "L_pw2")
        at(qw + 30, wc)
        lq = 0
        for ks in range(XN0, 18):
            for mt in range(2):
                def xl(a, S_, ks=ks, mt=mt): xn_load(a, S_.vm, ks, mt)
                if EDF: edf.append((0, 6*ks - 30, len(edf), xl)); continue
                while lq in busy: lq += 1
                busy.add(lq); at(lq, xl); lq += XSP
                assert lq < 6*ks + 2, (ks, lq)
        for it in range(3):
            def hs(a, S_, it=it):
                a("buffer_store_dwordx4 v[%d:%d], v249, s[28:31], s101 offen offset:%d sc1" % (232+4*it, 235+4*it, it*128)); S_.vm.issue()
            at(vslot(70 + 8*it), hs)
        if TAIL != 'flag':
            lq = 84
            for t2 in range(2):
                for k in range(4):
                    def po(a, S_, t2=t2, k=k):
                        a("buffer_store_dwordx4 v[252:255], v3, s[28:31], s%d offen offset:%d sc1" % (93+t2, k*1024)); S_.pois = S_.vm.issue()
                    lq = vslot(lq); at(lq, po)
            def pf(a, S_):
                a("s_waitcnt vmcnt(%d)" % S_.vm.wait_cnt(S_.pois))
                flag_store(a, 1, 52, 10, 14); S_.vm.issue()
            at(vslot(lq + 60), pf)
            q3 = vslot(470)
            def p3l(a, S_): flag_load(a, 12, 8, 49); S_.fseq = S_.vm.issue()
            at(q3, p3l)
            def p3c(a, S_): poll(a, S_.vm.wait_cnt(S_.fseq), [(12, 8, 49, False, 0, FULL)], 1, 14, "L_p3p")
            at(q3 + CHKD, p3c)
        lastq = 0; kq = 0
        for k9 in range(9):
            q0 = max(108, 36*(k9+1)) + 1
            kq = max(kq, q0*VPS)
            for mt in range(2):
                hr = HO + (k9*2+mt)*4
                for half in range(2):
                    ac = acc1_reg(2*k9+half, mt)
                    for e in range(2):
                        def f(a, S_, d=hr+2*half+e, s0=ac+2*e): a("v_cvt_pk_bf16_f32 v%d, v%d, v%d" % (d, s0, s0+1))
                        f.valu = True; at(kq//VPS, f); kq += 1
                for e in range(4):
                    def g(a, S_, r=hr+e): a("v_pk_max_i16 v%d, v%d, v10" % (r, r))
                    g.valu = True; at(kq//VPS, g); kq += 1
                def h(a, S_, hr=hr, k9=k9, mt=mt):
                    a("s_add_u32 s45, s47, %d" % (mt*HFS + k9*1024))
                    a("buffer_store_dwordx4 v[%d:%d], v3, s[28:31], s45 offen sc1" % (hr, hr+3))
                    S_.hst[k9] = S_.vm.issue()
                lastq = vslot(max(lastq + (SSP if k9 > 2 else 6), kq//VPS + 1))
                at(lastq, h)
            if k9 in (2, 4, 6, 8):
                def fl(a, S_, k9=k9):
                    a("s_waitcnt vmcnt(%d)" % S_.vm.wait_cnt(S_.hst[k9]))
                    flag_store(a, k9+1, 51, 10, 14); S_.vm.issue()
                at(vslot(lastq + FLAGD[0]), fl)
        lastq = 0
        pq = [vslot(p[0]) for p in POLLS]
        for pi, (qp, need, lo, hi) in enumerate(POLLS):
            def pl(a, S_): flag_load(a, 12, 8, 48); S_.fseq = S_.vm.issue()
            qp = pq[pi]; at(qp, pl)
            qc = qp + CHKD
            assert qc < SPLITQ
            def pc(a, S_, pi=pi, need=need):
                poll(a, S_.vm.wait_cnt(S_.fseq), [(12, 8, 48, False, 0, FULL)], need, 14, "L_p2_%d" % pi)
            at(qc, pc)
            lastq = max(lastq, qc + 1)
            for i in range(lo, hi):
                k9, pr = divmod(i, 3)
                if i >= 14: lastq = max(lastq, 326)
                for mt in range(2):
                    def ld(a, S_, pr=pr, k9=k9, mt=mt):
                        r = areg_partner(pr, k9, mt)
                        a("s_add_u32 s45, s%d, %d" % (53+pr, mt*HFS + k9*1024))
                        a("buffer_load_dwordx4 a[%d:%d], v3, s[28:31], s45 offen sc1" % (r, r+3))
                        S_.hld[(pr, k9, mt)] = S_.vm.issue()
                    if EDF:
                        edf.append((max(qc + 1, 326 if i >= 14 else 0), (405 + 3*i if i < 18 else 513 + 3*(i-18)) - ML, len(edf), ld)); continue
                    lastq = vslot(lastq); at(lastq, ld)
        lastq = 0
        own01 = [t for t in range(12) if t % 4 == svar]
        plan = []
        for c2, qe in ((0, 324 + 72*3), (1, 324 + 81*3)):
            for tt in range(3):
                for mt in range(2):
                    tau = 6*c2 + 2*tt + mt
                    if tau % 4 == svar: continue
                    def ps(a, S_, tau=tau, ac=acc2_reg(c2, tt, mt), c2=c2):
                        a("s_add_u32 s45, s50, %d" % ((tau*4 + svar)*1024))
                        a("buffer_store_dwordx4 v[%d:%d], v3, s[28:31], s45 offen sc1" % (ac, ac+3))
                        S_.pst[c2] = S_.vm.issue()
                    lastq = vslot(max(lastq + PSP, qe + 1)); at(lastq, ps)
            def fl3(a, S_, c2=c2):
                a("s_waitcnt vmcnt(%d)" % S_.vm.wait_cnt(S_.pst[c2]))
                flag_store(a, 2+c2, 52, 10, 14); S_.vm.issue()
            fq = vslot(lastq + FLAGD[1]); at(fq, fl3); plan.append(fq)
        if TAIL == 'nb':
            for c2 in range(2):
                qc = P3C[c2]
                def p3e(a, S_): flag_load(a, 12, 8, 49); S_.fseq3 = S_.vm.issue()
                at(vslot(qc - P3D), p3e)
                def p3k(a, S_, c2=c2):
                    lab = "L_nb_%d_%d" % (c2, svar)
                    a("s_waitcnt vmcnt(%d)" % S_.vm.wait_cnt(S_.fseq3))
                    a("s_add_u32 s59, s%d, %d" % (SN0, 2+c2))
                    a("v_subrev_u32 v14, s59, v12")
                    a("v_cmp_gt_u32 vcc, %d, v14" % (14-c2))
                    a("v_cmp_eq_u32 s[62:63], s%d, v13" % SN1)
                    a("s_nop 1")
                    a("s_and_b64 vcc, vcc, s[62:63]")
                    a("s_cmp_eq_u64 vcc, -1")
                    a("s_cbranch_scc0 %s" % lab)
                    a("s_or_b32 s95, s95, %d" % (1 << c2))
                    Sx = copy.deepcopy(S_)
                    for i, tau in enumerate(own01):
                        if tau // 6 == c2: fin_loads(a, Sx, tau, HO + 16*i, svar)
                    a.label(lab)
                assert qc > 36*17 - LB
                at(qc, p3k)
        if EDF:
            pend_ = sorted(edf, key=lambda t: (t[1], t[2]))
            q = 0; late = 0
            while pend_:
                if q not in busy and (allowed(q) or (q < 40 and (q-1) not in busy)):
                    for t in pend_:
                        if t[0] <= q:
                            busy.add(q); at(q, t[3]); pend_.remove(t); late = max(late, q - t[1]); break
                q += 1
            if verbose: print("edf max lateness", late, "last", max(busy))
        assert max(tasks) < NF
        return tasks
    def part_loads(a, S_, tau, B, svar):
        for i, s_ in enumerate([x for x in range(4) if x != svar]):
            a("s_add_u32 s45, s50, %d" % ((tau*4 + s_)*1024))
            a("buffer_load_dwordx4 v[%d:%d], v3, s[28:31], s45 offen sc1" % (B+4*i, B+4*i+3)); S_.fin[tau] = S_.vm.issue()
    def h_load(a, S_, tau, B):
        c2, tt, mt = tau_info(tau)
        a("s_add_u32 s45, s57, %d" % (mt*18432 + c2*96 + tt*32))
        a("buffer_load_dwordx2 v[%d:%d], v11, s[28:31], s45 offen sc1" % (B+12, B+13))
        S_.fin[tau] = S_.vm.issue()
    def fin_loads(a, S_, tau, B, svar):
        part_loads(a, S_, tau, B, svar); h_load(a, S_, tau, B)
    def fin_math(a, S_, tau, B, svar):
        c2, tt, mt = tau_info(tau)
        ac = acc2_reg(c2, tt, mt)
        regs = {s_: B + 4*i for i, s_ in enumerate([x for x in range(4) if x != svar])}
        regs[svar] = ac
        a("s_waitcnt vmcnt(%d)" % min(63, S_.vm.wait_cnt(S_.fin[tau])))
        cur = ac if svar in (0, 1) else regs[0]
        for h_ in range(2):
            a("v_pk_add_f32 v[%d:%d], v[%d:%d], v[%d:%d]" % (cur+2*h_, cur+2*h_+1, regs[0]+2*h_, regs[0]+2*h_+1, regs[1]+2*h_, regs[1]+2*h_+1))
        for s_ in (2, 3):
            for h_ in range(2):
                a("v_pk_add_f32 v[%d:%d], v[%d:%d], v[%d:%d]" % (cur+2*h_, cur+2*h_+1, cur+2*h_, cur+2*h_+1, regs[s_]+2*h_, regs[s_]+2*h_+1))
        for h_ in range(2):
            r = cur + 2*h_
            rnd_pair(a, r, B+14)
            a("v_lshlrev_b32 v%d, 16, v%d" % (B+4+2*h_, B+12+h_))
            a("v_and_b32 v%d, s43, v%d" % (B+5+2*h_, B+12+h_))
            a("v_pk_add_f32 v[%d:%d], v[%d:%d], v[%d:%d]" % (r, r+1, r, r+1, B+4+2*h_, B+5+2*h_))
        for h_ in range(2): a("v_cvt_pk_bf16_f32 v%d, v%d, v%d" % (B+8+h_, cur+2*h_, cur+2*h_+1))
        a("s_add_u32 s45, s56, %d" % (mt*18432 + c2*96 + tt*32))
        a("buffer_store_dwordx2 v[%d:%d], v11, s[20:23], s45 offen" % (B+8, B+9)); S_.vm.issue()
    def run_main(a, S_, q_from, q_to, tasks):
        for q in range(q_from, q_to):
            st, f = divmod(q, 36)
            nb = S_.bar + 1
            if nb < 18 and q == max(0, 36*nb - LB):
                if nb > 0: a("s_waitcnt lgkmcnt(0)")
                S_.rd_done = S_.p
                bi = bst.index(nb)*3 if bst and nb in bst else None
                if bi is not None: a("s_memtime s[%d:%d]" % (64+2*bi, 65+2*bi))
                a("s_waitcnt vmcnt(%d)" % min(63, S_.vm.wait_cnt(S_.dseq[nb])))
                if bi is not None: a("s_memtime s[%d:%d]" % (66+2*bi, 67+2*bi))
                a("s_barrier")
                if bi is not None: a("s_memtime s[%d:%d]" % (68+2*bi, 69+2*bi))
                if nb == 0: stamp(a, dbg, 11)
                if sdbg is not False and 0 <= nb - sdbg < 12: a("s_memtime s[%d:%d]" % (64+2*(nb-sdbg), 65+2*(nb-sdbg)))
                S_.bar = nb
                assert not S_.pend
                if nb + 3 < 18 and not EDF: S_.pend = [(nb+3, i) for i in range(9)]
            def rd():
                if S_.p < NF and S_.p <= q + LMAX and S_.p < 36*(S_.bar+1):
                    gp = S_.p; r = VB + (gp % RING)*4
                    a("ds_read_b128 v[%d:%d], v%d offset:%d" % (r, r+3, 4 + (gp//36) % 4, (gp % 36)*1024))
                    S_.p += 1
                    return True
                return False
            if q == 0:
                while rd(): pass
            if q >= S_.rd_done:
                tgt = min(q + 1, S_.p - 1)
                a("s_waitcnt lgkmcnt(%d)" % min(15, S_.p - tgt - 1))
                S_.rd_done = tgt + 1
            if st < 3 and f % 6 == 0:
                a("s_waitcnt vmcnt(%d)" % min(63, S_.vm.wait_cnt(xn_seq[(6*st + f//6, 1)])))
            if st >= 9:
                uu, tt = divmod(q - 324, 3)
                c2, (kind, pr, k9) = units[uu]
                if kind == "p" and tt == 0 and (pr, k9) not in S_.hwaited:
                    S_.hwaited.add((pr, k9))
                    a("s_waitcnt vmcnt(%d)" % min(63, S_.vm.wait_cnt(S_.hld[(pr, k9, 1)])))
            if qst and q in qst: a("s_memtime s[%d:%d]" % (64+2*qst.index(q), 65+2*qst.index(q)))
            m1, m2 = frag_mfmas(q)
            tl = list(tasks.get(q, []))
            a(m1)
            rd()
            if tl and getattr(tl[0], "valu", False): tl.pop(0)(a, S_)
            a(m2)
            did = False
            if S_.pend and (q - max(0, 36*S_.bar - LB)) % (DSP if S_.bar else 3) == 1:
                stg, i = S_.pend.pop(0)
                dma(stg, i); S_.dseq[stg] = S_.vm.issue(); did = True
            for fn in tl: fn(a, S_); did = True
            if not did: rd()
    S0 = S(); S0.vm = vm; S0.bar = -1; S0.p = 0; S0.rd_done = 0; S0.pend = []
    S0.dseq = {0: 0, 1: 0, 2: 0}; S0.hst = {}; S0.hld = {}; S0.hwaited = set(); S0.fin = {}; S0.pst = {}
    run_main(a, S0, 0, SPLITQ, build_tasks(0))
    for svar in range(4):
        if svar: a.label("L_v%d" % svar)
        if svar < 3:
            a("s_cmp_lg_u32 s32, %d" % svar)
            a("s_cbranch_scc1 L_v%d" % (svar+1))
        S_ = copy.deepcopy(S0)
        run_main(a, S_, SPLITQ, NF, build_tasks(svar))
        if dbg: a("s_memrealtime s[90:91]")
        if sdbg is not False: a("s_memtime s[90:91]")
        own01 = [t for t in range(12) if t % 4 == svar]
        own = [t for t in range(12, 18) if t % 4 == svar]
        a("s_nop 7")
        stamp(a, dbg == 3, 7)
        n_at_end = S_.vm.n
        for tau in range(12, 18):
            if tau % 4 == svar: continue
            c2, tt, mt = tau_info(tau); ac = acc2_reg(c2, tt, mt)
            a("s_add_u32 s45, s50, %d" % ((tau*4 + svar)*1024))
            a("buffer_store_dwordx4 v[%d:%d], v3, s[28:31], s45 offen sc1" % (ac, ac+3)); S_.vm.issue()
        if TAIL == 'flag':
            flag_load(a, 12, 8, 49); seq = S_.vm.issue()
            a("s_waitcnt vmcnt(0)")
            flag_store(a, 4, 52, 10, 14); S_.vm.issue()
            poll(a, S_.vm.wait_cnt(seq), [(12, 8, 49, False, 0, FULL)], 3, 14, "L_p3a_%d" % svar, alt=250)
            for i, tau in enumerate(own01): fin_loads(a, S_, tau, HO + 16*i, svar)
            flag_load(a, 12, 8, 49); seq = S_.vm.issue()
            poll(a, S_.vm.wait_cnt(seq), [(12, 8, 49, False, 0, FULL)], 4, 14, "L_p3b_%d" % svar, alt=250)
            for i, tau in enumerate(own): fin_loads(a, S_, tau, VB + 16*i, svar)
            for i, tau in enumerate(own01): fin_math(a, S_, tau, HO + 16*i, svar)
        else:
            for i, tau in enumerate(own): fin_loads(a, S_, tau, VB + 16*i, svar)
            ntail = S_.vm.n - n_at_end
            for c2 in range(2):
                lab = "L_tl_%d_%d" % (c2, svar)
                a("s_bitcmp1_b32 s95, %d" % c2)
                a("s_cbranch_scc1 %s" % lab)
                flag_load(a, 12, 8, 49)
                poll(a, 0, [(12, 8, 49, False, 0, FULL)], 2+c2, 14, lab + "p", alt=250)
                Sx = copy.deepcopy(S_)
                for i, tau in enumerate(own01):
                    if tau // 6 == c2: fin_loads(a, Sx, tau, HO + 16*i, svar)
                a("s_waitcnt vmcnt(0)")
                a.label(lab)
            a("s_waitcnt vmcnt(%d)" % ntail)
            for tau in own01: S_.fin[tau] = 0
            for i, tau in enumerate(own01): fin_math(a, S_, tau, HO + 16*i, svar)
            stamp(a, dbg == 3, 8)
            lab = "L_sen_%d" % svar
            a("s_mov_b32 s58, 0")
            a("s_waitcnt vmcnt(%d)" % S_.vm.wait_cnt(S_.fin[own[-1]]))
            a.label(lab)
            a("s_mov_b64 s[60:61], 0")
            for i, tau in enumerate(own):
                for r in range(12):
                    a("v_cmp_eq_u32 vcc, -1, v%d" % (VB + 16*i + r))
                    a("s_or_b64 s[60:61], s[60:61], vcc")
            a("s_cmp_eq_u64 s[60:61], 0")
            a("s_cbranch_scc1 %s_ok" % lab)
            a("s_add_u32 s58, s58, 1")
            a("s_cmp_gt_u32 s58, %d" % SPIN_MAX)
            a("s_cbranch_scc1 %s_ok" % lab)
            Sx = copy.deepcopy(S_)
            for i, tau in enumerate(own): part_loads(a, Sx, tau, VB + 16*i, svar)
            a("s_waitcnt vmcnt(0)")
            a("s_branch %s" % lab)
            a.label(lab + "_ok")
        stamp(a, dbg == 3, 9)
        for i, tau in enumerate(own): fin_math(a, S_, tau, VB + 16*i, svar)
        stamp(a, dbg == 3, 10)
        if svar == 0:
            a("s_or_b32 s62, s2, s39")
            a("s_cmp_lg_u32 s62, 0")
            a("s_cbranch_scc1 L_nores")
            a("s_load_dwordx2 s[60:61], s[0:1], 80")
            a("s_waitcnt lgkmcnt(0)")
            srd(a, 4, 60, 256)
            a("s_mov_b64 exec, 1")
            a("buffer_store_dword v10, v10, s[4:7], 0 offen sc1")
            a("s_mov_b64 exec, -1")
            a.label("L_nores")
        if dbg or sdbg is not False:
            a("s_waitcnt vmcnt(0)")
            a("s_memrealtime s[92:93]")
            a("s_waitcnt lgkmcnt(0)")
            for i in range(12): a("v_mov_b32 v%d, s%d" % (16+i, 64+2*i))
            a("v_mov_b32 v28, s90\n v_mov_b32 v29, s92\n v_mov_b32 v30, 0\n v_mov_b32 v31, 0")
            a("s_lshl_b32 s62, s2, 2\n s_add_u32 s62, s62, s39\n s_lshl_b32 s62, s62, 6\n s_add_u32 s62, s62, %d" % STAMP)
            a("s_mov_b64 exec, 1")
            for k_ in range(4): a("buffer_store_dwordx4 v[%d:%d], v10, s[28:31], s62 offen offset:%d" % (16+4*k_, 19+4*k_, 16*k_))
            if dbg == 2:
                lab = a.newlabel("L_dd")
                a("s_load_dwordx2 s[60:61], s[0:1], 80")
                a("s_waitcnt lgkmcnt(0)")
                srd(a, 4, 60, 256)
                a("s_or_b32 s62, s2, s39\n s_cmp_lg_u32 s62, 0\n s_cbranch_scc1 %s" % lab)
                for i in range(1, 14): a("v_subrev_u32 v%d, s64, v%d" % (16+i, 16+i))
                for i in range(1, 14): a("buffer_store_dword v%d, v10, s[4:7], 0 offen offset:%d" % (16+i, 4*i))
                a.label(lab)
        a("s_endpgm")
    a.label("L_end")
    a("s_endpgm")
    return dict(name=KNAME, grid=256, block=256, lds=ONE_LDS, body=a.text(), vgpr=512, sgpr=102, accum=256)

def make_single(k, hdr):
    import subprocess, re
    t = make_file([k], hdr)
    open("_sz.s", "w").write(t.replace("NCODELINES", "1"))
    subprocess.check_call(["clang", "-x", "assembler", "-target", "amdgcn-amd-amdhsa", "-mcpu=gfx950", "-c", "_sz.s", "-o", "_sz.o"])
    o = subprocess.check_output(["llvm-readelf", "-S", "_sz.o"]).decode()
    size = int(re.search(r"\.text\s+PROGBITS\s+\S+\s+\S+\s+(\S+)", o).group(1), 16)
    nl = (size - 64) // 128 - 1
    assert nl < 1024
    t = t.replace("NCODELINES", str(nl))
    return t.replace("; @launch kernel=%s grid" % KNAME, "; @launch grid")

if __name__ == "__main__":
    hdr = open("sequential_preLN__ssm_conv_h3__dense_activation_relu__prompt.s.ref").read().split("; Override")[0]
    t1 = make_single(gen_one(verbose=True), hdr); t2 = make_single(gen_one(dbg=True), hdr)
    open("three.s", "w").write(t1); open("three_dbg.s", "w").write(t2)
    open("three_s0.s", "w").write(make_single(gen_one(sdbg=0), hdr)); open("three_s6.s", "w").write(make_single(gen_one(sdbg=6), hdr))
    open("../cdna_kernels/varDbg.s", "w").write(make_single(gen_one(dbg=2), hdr))
    open("three_dbg3.s", "w").write(make_single(gen_one(dbg=3), hdr))
    import sys
    base = make_single(gen_one(), hdr)
    open("v_base.s", "w").write(base)
    for k_, kw in {"kearly": dict(KPOS='early'), "klate": dict(KPOS='late'), "nb": dict(TAIL='nb', PSP=2), "zdir": dict(ZDIR=True), "n2x8": dict(NPRE=2, XN0=8), "e2": dict(EDF=(2, (1,)), MD=50, ML=45), "e73": dict(EDF=(7, (0, 2, 4)), MD=30, ML=30)}.items():
        open("../cdna_kernels/h_%s.s" % k_, "w").write(make_single(gen_one(**kw), hdr))
    FINE[0] = True
    open("three_fine.s", "w").write(make_single(gen_one(dbg=True), hdr))
```
